```python
import torch

def _softmax(x, axis=-1):
    return torch.softmax(x, dim=axis)
def _gelu(x):
    return torch.nn.functional.gelu(x, approximate="tanh")
def _silu(x):
    return torch.nn.functional.silu(x)
def _sigmoid(x):
    return torch.sigmoid(x)
def _layernorm(x, axis=-1, eps=1e-5):
    m = x.mean(dim=axis, keepdim=True)
    v = x.var(dim=axis, keepdim=True, unbiased=False)
    return (x - m) / torch.sqrt(v + eps)
def _scatter_add(tgt, idx, src, axis=0):
    return tgt.clone().index_add_(axis, idx, src)
def _segment_sum(src, seg, n):
    out = torch.zeros((n,) + src.shape[1:], dtype=src.dtype)
    return out.index_add_(0, seg, src)
def _pad(x, pw):
    flat = tuple(v for pair in reversed(pw) for v in pair)
    return torch.nn.functional.pad(x, flat)

kernel_name = 'concat_heads__sliding_block_cached__mha_block_cached__decode'

def setup_inputs():

    _w = (lambda a: (lambda t: t.to(torch.bfloat16) if t.is_floating_point() else t)(torch.as_tensor(a)))
    def _A_setup():
        B, Sq, D = 1, 1, 1024
        Hq, Hkv, Sk, Dh = 32, 4, 32768, 128
        assert Hq % Hkv == 0, (Hq, Hkv)
        return {
            "x": _w((lambda *s: torch.randn(*s, dtype=torch.bfloat16) * 0.8)(B, Sq, D)),
            "k_cache": _w((lambda *s: torch.randn(*s, dtype=torch.bfloat16) * 1.6)(B, Hkv, Sk, Dh)),
            "v_cache": _w((lambda *s: torch.randn(*s, dtype=torch.bfloat16) * 0.2)(B, Hkv, Sk, Dh)),
            "wq": _w((lambda *s: torch.randn(*s, dtype=torch.bfloat16) * 1.6)(D, Hq * Dh) * (D ** -0.5)),
            "wo": _w((lambda *s: torch.randn(*s, dtype=torch.bfloat16) * 0.2)(Hq * Dh, D) * ((Hq * Dh) ** -0.5)),
        }
    _A_in = _A_setup()

    def _B_setup():
        B, Sq, D = 1, 1, 1024
        H, Sk, Dh = 32, 32768, 128
        return {
            "x": _w((lambda *s: torch.randn(*s, dtype=torch.bfloat16) * 0.8)(B, Sq, D)),
            "k_cache": _w((lambda *s: torch.randn(*s, dtype=torch.bfloat16) * 1.6)(B, H, Sk, Dh)),
            "v_cache": _w((lambda *s: torch.randn(*s, dtype=torch.bfloat16) * 0.2)(B, H, Sk, Dh)),
            "wq": _w((lambda *s: torch.randn(*s, dtype=torch.bfloat16) * 1.6)(D, H * Dh) * (D ** -0.5)),
            "wo": _w((lambda *s: torch.randn(*s, dtype=torch.bfloat16) * 0.2)(H * Dh, D) * ((H * Dh) ** -0.5)),
        }
    _B_in = _B_setup()

    return {
        "A_x": _A_in["x"],
        "A_k_cache": _A_in["k_cache"],
        "A_v_cache": _A_in["v_cache"],
        "A_wq": _A_in["wq"],
        "A_wo": _A_in["wo"],
        "B_x": _B_in["x"],
        "B_k_cache": _B_in["k_cache"],
        "B_v_cache": _B_in["v_cache"],
        "B_wq": _B_in["wq"],
        "B_wo": _B_in["wo"],
    }

def reference(A_x, A_k_cache, A_v_cache, A_wq, A_wo, B_x, B_k_cache, B_v_cache, B_wq, B_wo):
    def _A_ref(x, k_cache, v_cache, wq, wo):
        B, Sq, D = x.shape
        Hq, Dh = 32, 128
        Hkv, Sk = k_cache.shape[1], k_cache.shape[2]
        W = min(4096, max(256, Sk // 4))
        rep = Hq // Hkv
        q = (lambda x, *d: x.permute(*d))((x @ wq).reshape(B, Sq, Hq, Dh), 0, 2, 1, 3)
        k = (lambda x, n, axis: torch.repeat_interleave(x, n, dim=axis))(k_cache[:, :, Sk - W:, :], rep, axis=1)
        v = (lambda x, n, axis: torch.repeat_interleave(x, n, dim=axis))(v_cache[:, :, Sk - W:, :], rep, axis=1)
        scores = torch.einsum("bhqd,bhkd->bhqk", q, k) * (Dh ** -0.5)
        p = _softmax(scores, axis=-1)
        o = torch.einsum("bhqk,bhkd->bhqd", p, v)
        return (lambda x, *d: x.permute(*d))(o, 0, 2, 1, 3).reshape(B, Sq, Hq * Dh) @ wo

    def _B_ref(x, k_cache, v_cache, wq, wo):
        B, Sq, D = x.shape
        H, Dh = 32, 128
        q = (lambda x, *d: x.permute(*d))((x @ wq).reshape(B, Sq, H, Dh), 0, 2, 1, 3)
        scores = torch.einsum("bhqd,bhkd->bhqk", q, k_cache) * (Dh ** -0.5)
        p = _softmax(scores, axis=-1)
        o = torch.einsum("bhqk,bhkd->bhqd", p, v_cache)
        return (lambda x, *d: x.permute(*d))(o, 0, 2, 1, 3).reshape(B, Sq, H * Dh) @ wo

    a = _A_ref(A_x, A_k_cache, A_v_cache, A_wq, A_wo)
    b = _B_ref(B_x, B_k_cache, B_v_cache, B_wq, B_wo)
    return torch.concatenate([a, b], axis=-1)
```

```python
import re

TRANS = ("v_exp_f32", "v_log_f32", "v_rcp_f32", "v_rsq_f32", "v_sqrt_f32", "v_sin_f32", "v_cos_f32")
_reg = re.compile(r"^(-|abs\()?([vsa])(?:(\d+)|\[(\d+):(\d+)\])\)?$")


def regs(tok):
    tok = tok.strip()
    if tok == "vcc":
        return [("s", 106), ("s", 107)]
    if tok == "exec":
        return [("s", 126), ("s", 127)]
    if tok == "m0":
        return [("s", 124)]
    if tok in ("vcc_lo", "vcc_hi"):
        return [("s", 106 + (tok == "vcc_hi"))]
    m = _reg.match(tok)
    if not m:
        return []
    k = m.group(2)
    if m.group(3) is not None:
        return [(k, int(m.group(3)))]
    return [(k, i) for i in range(int(m.group(4)), int(m.group(5)) + 1)]


def split_ops(s):
    out, depth, cur = [], 0, ""
    for ch in s:
        if ch in "[(":
            depth += 1
        if ch in "])":
            depth -= 1
        if ch == "," and depth == 0:
            out.append(cur.strip())
            cur = ""
        else:
            cur += ch
    if cur.strip():
        out.append(cur.strip())
    return out


class Ins:
    def __init__(self, text):
        self.text = text
        t = text.split(";")[0].strip()
        self.label = t[:-1] if t.endswith(":") else None
        self.op = ""
        self.rd, self.wr = set(), set()
        self.dpp_src = set()
        self.valu = self.vmem = self.dpp = False
        self.target = None
        self.ws = 0
        if self.label is not None or not t or t.startswith("."):
            return
        parts = t.split(None, 1)
        op = parts[0]
        self.op = op
        rest = parts[1] if len(parts) > 1 else ""
        ops = split_ops(rest)
        mods = ""
        if ops:
            last = ops[-1].split(None, 1)
            ops[-1] = last[0]
            mods = last[1] if len(last) > 1 else ""
        self.ops = ops
        self.ws = 1
        if op == "s_nop":
            self.ws = int(ops[0], 0) + 1
        if op.startswith("s_branch") or op.startswith("s_cbranch"):
            self.target = ops[0]
        R = lambda i: set(regs(ops[i])) if i < len(ops) else set()
        allr = lambda a: set().union(*[R(i) for i in range(a, len(ops))]) if a < len(ops) else set()
        if op.startswith("v_"):
            self.valu = True
            self.dpp = op.endswith("_dpp")
            base = op.replace("_dpp", "").replace("_e32", "").replace("_e64", "")
            self.base = base
            if base.startswith("v_permlane"):
                self.wr = R(0) | R(1)
                self.rd = R(0) | R(1)
            elif base.startswith("v_add_co") or base.startswith("v_addc_co") or base.startswith("v_sub_co"):
                self.wr = R(0) | R(1)
                self.rd = allr(2)
            else:
                self.wr = R(0)
                self.rd = allr(1)
                if base.startswith(("v_dot2c", "v_fmac", "v_writelane")):
                    self.rd |= R(0)
            if self.dpp:
                self.dpp_src = set(self.rd)
                if "bank_mask:0xf" not in mods or "row_mask:0xf" not in mods:
                    self.dpp_src |= R(0)
        elif op.startswith(("buffer_", "global_")):
            self.vmem = True
            if "load" in op:
                self.wr = R(0)
                self.rd = allr(1)
            else:
                self.rd = allr(0)
            self.wide = ("store" in op) and ("x3" in op or "x4" in op)
            if self.wide:
                self.sdata = R(0) if op.startswith("buffer_") else R(1)
        elif op.startswith("ds_"):
            if "read" in op or "rtn" in op or "permute" in op or "swizzle" in op:
                self.wr = R(0)
                self.rd = allr(1)
            else:
                self.rd = allr(0)
        elif op.startswith("s_"):
            self.wr = R(0)
            self.rd = allr(1)


def need(p, c):
    n = 0
    if p.valu:
        pv = {r for r in p.wr if r[0] == "v"}
        ps = {r for r in p.wr if r[0] == "s"}
        if c.valu:
            if pv & c.dpp_src:
                n = max(n, 2)
            if c.base.startswith("v_permlane") and pv & c.rd:
                n = max(n, 2)
            if c.base.startswith(("v_readlane", "v_readfirstlane")) and pv & c.rd:
                n = max(n, 1)
            if p.base in TRANS and c.base not in TRANS and pv & c.rd:
                n = max(n, 1)
            if p.base in TRANS and c.base in TRANS and pv & c.rd:
                n = max(n, 1)
            if p.base.startswith("v_dot"):
                if c.base == p.base:
                    srcab = set().union(*[set(regs(o)) for o in c.ops[1:3]])
                    if pv & srcab:
                        n = max(n, 3)
                elif pv & (c.rd | c.wr):
                    n = max(n, 3)
            if ps & c.rd:
                n = max(n, 4 if c.base.startswith(("v_readlane", "v_writelane")) else 2)
            if c.base.startswith("v_mfma") and pv & c.rd and not p.base.startswith("v_mfma"):
                n = max(n, 2)
            if p.base.startswith("v_mfma"):
                if c.base.startswith("v_mfma"):
                    srcab = set().union(*[set(regs(o)) for o in c.ops[1:3]])
                    if pv & srcab:
                        n = max(n, 8)
                    srcc = set(regs(c.ops[3]))
                    if pv & srcc and srcc != pv:
                        n = max(n, 6)
                elif pv & (c.rd | c.wr):
                    n = max(n, 8)
                if not c.base.startswith("v_mfma") and set(regs(p.ops[3])) & c.wr:
                    n = max(n, 3)
        else:
            if c.vmem and ps & c.rd:
                n = max(n, 5)
            if p.base.startswith("v_dot") and pv & c.rd:
                n = max(n, 3)
            if p.base.startswith("v_mfma") and pv & (c.rd | c.wr):
                n = max(n, 8)
            if c.op.startswith("s_") and ps & c.rd:
                n = max(n, 1)
            if c.op.startswith("s_cbranch_vcc") and ("s", 106) in ps:
                n = max(n, 1)
    if p.vmem and getattr(p, "wide", False) and c.valu and p.sdata & c.wr:
        n = max(n, 2)
    return n


class Asm:
    def __init__(self):
        self.L = []

    def __call__(self, text):
        for line in text.split("\n"):
            self.L.append(line)

    def pad(self):
        ins = [Ins(t) for t in self.L]
        changed = True
        while changed:
            changed = False
            labels = {x.label: i for i, x in enumerate(ins) if x.label}
            srcs = {}
            for i, x in enumerate(ins):
                if x.target in labels:
                    srcs.setdefault(labels[x.target], []).append(i)

            def preds(i):
                out = []
                if i > 0 and not (ins[i - 1].op in ("s_branch", "s_endpgm")):
                    out.append(i - 1)
                out += srcs.get(i, [])
                return out

            for i, c in enumerate(ins):
                if not c.op or c.op == "s_nop":
                    continue
                short = 0
                stack = [(p, 0) for p in preds(i)]
                seen = set()
                while stack:
                    j, dist = stack.pop()
                    if (j, dist) in seen or dist >= 9:
                        continue
                    seen.add((j, dist))
                    p = ins[j]
                    if p.op:
                        short = max(short, need(p, c) - dist)
                    for q in preds(j):
                        stack.append((q, dist + p.ws))
                if short > 0:
                    ins.insert(i, Ins(f"  s_nop {short-1}"))
                    changed = True
                    break
        self.L = [x.text for x in ins]

    def text(self):
        return "\n".join(self.L) + "\n"
```

```python
import sys, os
sys.path.insert(0, os.path.dirname(os.path.abspath(__file__)))
from asmlib import Asm

KN = "concat_heads__sliding_block_cached__mha_block_cached__decode_kernel"
HEADER = open(os.path.join(os.path.dirname(os.path.abspath(__file__)), "header.txt")).read()

WG_STRIDE = 4096
W_QB, W_QA, W_BP, W_O2B, W_O2A, W_CNT = 0, 512, 1024, 2048, 2560, 3072
W_AP = 1 << 20
WS_SIZE = (1 << 20) + 32 * 8192
STAMP0 = 0x20000000
STAMP1 = 0x20100000
PS = 544
RS = 4 * PS
L_QBP, L_QAP, L_BPART, L_O2A, L_O2B, L_APART = 0, RS, 2 * RS, 3 * RS, 4 * RS, 5 * RS
L_Q = 13 * RS
L_OA = L_Q + 256
L_OB = L_OA + 256
L_QA = L_OB + 256
LDS_BYTES = 32768
SPIN = 1 << 20


def gen(NS=4, naa=4, stamps=0, pol="nt", womode="D", prio=3, mimic=0):
    A = Asm()
    nst = [0]

    sH, sS, sW = "s84", "s85", "s3"
    sIdx, sOff, sTk, sIt = "s86", "s87", "s88", "s89"
    sT0, sT1, sT2, sC = "s90", "s91", "s93", "s92"
    sSpin, sAA = "s94", "s95"
    KB, VB, WQB, WQA, WOB, WOA, KA, VA, WS, XB, XA, OUT = ["s[%d:%d]" % (i, i + 3) for i in range(32, 80, 4)]
    DBGP, CNTP = "s[80:81]", "s[82:83]"
    vL16, vWq, vWo = 1, 2, 3
    vQ, vAcc, vM, vLs = 4, 8, 16, 17
    vS0, vR0, vR1, vT, vMx, vAl, vPl, vPh, vMn = 18, 22, 23, 24, 25, 26, 28, 29, 30
    vLo, vLm, vCo = 240, 241, 242
    vX = 244
    slot = lambda b: 32 + 32 * b
    vWQB, vWQA = 160, 192
    vQA, vAccA, vMA, vLA = 128, 160, 224, 232
    vTA, vPlA, vPhA = 96, 104, 112

    def stamp(k):
        if stamps:
            A(f"  s_memrealtime s[96:97]")
            A(f"  s_waitcnt lgkmcnt(0)")
            A(f"  v_writelane_b32 v252, s96, {k}")

    def dpp(op, d, a, b, ctrl, bank=0xf):
        A(f"  {op}_dpp v{d}, v{a}, v{b} {ctrl} row_mask:0xf bank_mask:{bank:#x}")

    def kvload(srd, r, so):
        for j in range(4):
            A(f"  buffer_load_dwordx4 v[{r+4*j}:{r+4*j+3}], v{vL16}, {srd}, {so} offen offset:{j*1024} {pol}")

    def wload(srd, r, voff, sbase, step, j0=0, n=8):
        for j in range(j0, j0 + n):
            if j:
                A(f"  s_add_u32 {sT2}, {sbase}, {j*step}")
            so = sT2 if j else sbase
            A(f"  buffer_load_dwordx4 v[{r+4*j}:{r+4*j+3}], v{voff}, {srd}, {so} offen {pol}")

    def qk(k, q):
        for m in range(4):
            for j in range(4):
                if m == 0:
                    A(f"  v_dot2_f32_bf16 v{vS0+j}, v{k+4*j}, v{q}, 0")
                else:
                    A(f"  v_dot2c_f32_bf16 v{vS0+j}, v{k+4*j+m}, v{q+m}")

    def red16(t):
        dpp("v_add_f32", vR0, vS0, vS0, "row_ror:8", 0x3)
        dpp("v_add_f32", vR1, vS0 + 2, vS0 + 2, "row_ror:8", 0x3)
        dpp("v_add_f32", vR0, vS0 + 1, vS0 + 1, "row_ror:8", 0xc)
        dpp("v_add_f32", vR1, vS0 + 3, vS0 + 3, "row_ror:8", 0xc)
        dpp("v_add_f32", t, vR0, vR0, "row_half_mirror", 0x5)
        dpp("v_add_f32", t, vR1, vR1, "row_half_mirror", 0xa)
        dpp("v_add_f32", t, t, t, "quad_perm:[1,0,3,2]")
        dpp("v_add_f32", t, t, t, "quad_perm:[2,3,0,1]")

    def softmax(t, m, l, acc, pl, ph):
        dpp("v_max_f32", vMx, t, t, "row_ror:4")
        dpp("v_max_f32", vMx, vMx, vMx, "row_ror:8")
        A(f"  v_mul_f32 v{vMx}, {sC}, v{vMx}")
        A(f"  v_max_f32 v{vMn}, v{m}, v{vMx}")
        A(f"  v_fma_f32 v{t}, v{t}, {sC}, -v{vMn}")
        A(f"  v_sub_f32 v{vAl}, v{m}, v{vMn}")
        A(f"  v_exp_f32 v{t}, v{t}")
        A(f"  v_exp_f32 v{vAl}, v{vAl}")
        A(f"  v_mov_b32 v{m}, v{vMn}")
        A(f"  v_cvt_pk_bf16_f32 v{pl}, v{t}, 0")
        A(f"  v_fma_f32 v{l}, v{l}, v{vAl}, v{t}")
        A(f"  v_lshlrev_b32 v{ph}, 16, v{pl}")
        for i in range(4):
            A(f"  v_pk_mul_f32 v[{acc+2*i}:{acc+2*i+1}], v[{acc+2*i}:{acc+2*i+1}], v[{vAl}:{vAl+1}] op_sel_hi:[1,0]")

    def pv(acc, v, pl, ph, lanes):
        for j, ln in enumerate(lanes):
            for m in range(4):
                dpp("v_dot2c_f32_bf16", acc + 2 * m, pl, v + 4 * j + m, f"row_newbcast:{ln}")
                dpp("v_dot2c_f32_bf16", acc + 2 * m + 1, ph, v + 4 * j + m, f"row_newbcast:{ln}")

    KVL = [0, 8, 4, 12]

    def zero(acc, n=8):
        for i in range(n):
            A(f"  v_mov_b32 v{acc+i}, 0")

    def redrows(acc, ldsoff):
        for a, b in ((0, 4), (2, 6), (1, 5), (3, 7)):
            A(f"  v_permlane32_swap_b32 v{acc+a}, v{acc+b}")
        for a, b in ((0, 4), (2, 6), (1, 5), (3, 7)):
            A(f"  v_add_f32 v{acc+a}, v{acc+a}, v{acc+b}")
        A(f"  v_permlane16_swap_b32 v{acc}, v{acc+2}")
        A(f"  v_permlane16_swap_b32 v{acc+1}, v{acc+3}")
        A(f"  v_add_f32 v{acc}, v{acc}, v{acc+2}")
        A(f"  v_add_f32 v{acc+1}, v{acc+1}, v{acc+3}")
        A(f"  ds_write_b64 v{vLo}, v[{acc}:{acc+1}] offset:{ldsoff}")

    def allrows(op, d, x):
        t1, t2 = vX + 2, vX + 3
        A(f"  v_mov_b32 v{t1}, v{x}")
        A(f"  v_mov_b32 v{t2}, v{x}")
        A(f"  v_permlane32_swap_b32 v{t1}, v{t2}")
        A(f"  {op} v{t1}, v{t1}, v{t2}")
        A(f"  v_mov_b32 v{t2}, v{t1}")
        A(f"  v_permlane16_swap_b32 v{t1}, v{t2}")
        A(f"  {op} v{d}, v{t1}, v{t2}")

    def fin(acc, m, l, ldsoff):
        M, Ls = vX, vX + 1
        allrows("v_max_f32", M, m)
        A(f"  v_sub_f32 v{vAl}, v{m}, v{M}")
        A(f"  v_exp_f32 v{vAl}, v{vAl}")
        dpp("v_add_f32", vR0, l, l, "row_ror:4")
        for i in range(4):
            A(f"  v_pk_mul_f32 v[{acc+2*i}:{acc+2*i+1}], v[{acc+2*i}:{acc+2*i+1}], v[{vAl}:{vAl+1}] op_sel_hi:[1,0]")
        dpp("v_add_f32", vR0, vR0, vR0, "row_ror:8")
        A(f"  v_mul_f32 v{vR0}, v{vR0}, v{vAl}")
        allrows("v_add_f32", Ls, vR0)
        A(f"  ds_write_b64 v{vLm}, v[{M}:{M+1}] offset:{ldsoff}")
        redrows(acc, ldsoff)

    def tile(b, refill=None):
        k, v = slot(b), slot(b) + 16
        qk(k, vQ)
        if refill:
            kvload(KB, k, refill)
        red16(vT)
        softmax(vT, vM, vLs, vAcc, vPl, vPh)

    A(HEADER.rstrip().replace("@LAUNCH@", f"; @launch grid=(256,1,1) block=(320,1,1) lds={LDS_BYTES}"))
    A('.amdgcn_target "amdgcn-amd-amdhsa--gfx950"')
    A(".text")
    A(f".globl {KN}")
    A(".p2align 8")
    A(f".type {KN},@function")
    A(f"{KN}:")
    A("  s_cmp_ge_u32 s2, 256")
    A("  s_cbranch_scc1 L_end")
    if stamps:
        A("  s_memrealtime s[98:99]")
    A("  s_load_dwordx16 s[4:19], s[0:1], 0")
    A("  s_load_dwordx8 s[20:27], s[0:1], 64")
    A("  s_load_dwordx2 s[28:29], s[0:1], 96")
    A("  v_lshrrev_b32 v1, 6, v0")
    A("  v_and_b32 v0, 63, v0")
    A(f"  v_readfirstlane_b32 {sW}, v1")
    A(f"  s_lshr_b32 {sH}, s2, 3")
    A(f"  s_and_b32 {sS}, s2, 7")
    A(f"  s_mov_b32 {sC}, 0x3e0293ee")
    A(f"  s_and_b32 {sT0}, {sH}, 7")
    A(f"  s_cmp_eq_u32 {sT0}, {sS}")
    A(f"  s_cselect_b32 {sAA}, 1, 0")
    A(f"  v_lshlrev_b32 v{vL16}, 4, v0")
    A("  v_lshrrev_b32 v4, 4, v0")
    A("  v_and_b32 v5, 15, v0")
    for i in range(32, 80, 4):
        A(f"  s_mov_b32 s{i+3}, 0x20000")
    if stamps:
        A("  v_mov_b32 v252, 0")
    A("  s_mov_b32 s34, 0x800000\n  s_mov_b32 s38, 0x800000")
    A("  s_mov_b32 s42, 0x800000\n  s_mov_b32 s46, 0x800000\n  s_mov_b32 s50, 0x800000\n  s_mov_b32 s54, 0x800000")
    A("  s_mov_b32 s58, 0x20000\n  s_mov_b32 s62, 0x20000")
    A(f"  s_mov_b32 s66, {WS_SIZE}\n  s_mov_b32 s70, 2048\n  s_mov_b32 s74, 2048\n  s_mov_b32 s78, 4096")
    A(f"  s_lshl_b32 {sT0}, {sH}, 23")
    A(f"  s_lshr_b32 {sT1}, {sH}, 3")
    A(f"  s_lshl_b32 {sT1}, {sT1}, 23")
    A(f"  s_and_b32 {sT2}, {sH}, 7")
    A(f"  s_lshl_b32 {sT2}, {sT2}, 17")
    A(f"  s_add_u32 {sT1}, {sT1}, {sT2}")
    A(f"  s_add_u32 {sT1}, {sT1}, {28672*256}")
    A("  s_waitcnt lgkmcnt(0)")
    A("  s_mov_b32 s40, s20\n  s_mov_b32 s41, s21\n  s_mov_b32 s44, s10\n  s_mov_b32 s45, s11")
    A("  s_mov_b32 s68, s14\n  s_mov_b32 s69, s15\n  s_mov_b32 s72, s4\n  s_mov_b32 s73, s5")
    A("  s_mov_b32 s64, s28\n  s_mov_b32 s65, s29")
    A(f"  s_add_u32 s32, s16, {sT0}\n  s_addc_u32 s33, s17, 0\n  s_add_u32 s36, s18, {sT0}\n  s_addc_u32 s37, s19, 0")
    A("  s_mov_b32 s48, s22\n  s_mov_b32 s49, s23\n  s_mov_b32 s52, s12\n  s_mov_b32 s53, s13")
    A(f"  s_add_u32 s56, s6, {sT1}\n  s_addc_u32 s57, s7, 0\n  s_add_u32 s60, s8, {sT1}\n  s_addc_u32 s61, s9, 0")
    A("  s_mov_b32 s76, s24\n  s_mov_b32 s77, s25")
    A(f"  s_lshl_b32 {sT0}, {sH}, 3")
    A(f"  s_add_u32 s80, s26, {sT0}\n  s_addc_u32 s81, s27, 0")
    A(f"  s_lshl_b32 {sT0}, {sH}, 15")
    A(f"  s_add_u32 {sT0}, {sT0}, {W_CNT}")
    A(f"  s_add_u32 s82, s28, {sT0}\n  s_addc_u32 s83, s29, 0")
    A(f"  s_cmp_eq_u32 {sW}, 4")
    A("  s_cbranch_scc1 L_helper")

    A(f"  v_lshlrev_b32 v{vWq}, 13, v4")
    A(f"  v_lshl_add_u32 v{vWq}, v5, 4, v{vWq}")
    A(f"  v_and_b32 v6, 7, v5")
    A(f"  v_lshl_add_u32 v6, v6, 2, v4")
    A(f"  s_lshl_b32 {sT0}, {sW}, 5")
    A(f"  v_add_u32 v6, {sT0}, v6")
    A(f"  v_lshlrev_b32 v{vCo}, 1, v6")
    A(f"  s_lshl_b32 {sT1}, {sS}, 8")
    A(f"  buffer_load_ushort v{vPl}, v{vCo}, {XB}, {sT1} offen")
    A(f"  buffer_load_ushort v{vX+4}, v{vCo}, {XA}, {sT1} offen")
    A(f"  s_lshl_b32 {sT1}, {sS}, 7")
    A(f"  s_add_u32 {sT0}, {sT0}, {sT1}")
    A(f"  s_lshl_b32 {sT0}, {sT0}, 13")
    A(f"  s_lshl_b32 {sT1}, {sH}, 8")
    A(f"  s_add_u32 {sT0}, {sT0}, {sT1}")
    wload(WQB, vWQB, vWq, sT0, 32768)
    wload(WQA, vWQA, vWq, sT0, 32768, 0, 4)
    A(f"  v_lshlrev_b32 v{vWo}, 11, v4")
    A(f"  v_lshl_add_u32 v{vWo}, v5, 4, v{vWo}")
    A(f"  v_lshlrev_b32 v{vLo}, 5, v5")
    A(f"  v_lshl_add_u32 v{vLo}, v4, 3, v{vLo}")
    A(f"  s_mul_i32 {sT1}, {sW}, {PS}")
    A(f"  v_add_u32 v{vLo}, {sT1}, v{vLo}")
    A(f"  s_add_u32 {sT1}, {sT1}, 512")
    A(f"  v_mov_b32 v{vLm}, {sT1}")
    A(f"  v_lshlrev_b32 v{vX+5}, 4, v5")
    A(f"  s_lshl_b32 {sIdx}, {sS}, 2")
    A(f"  s_add_u32 {sIdx}, {sIdx}, {sW}")
    A(f"  s_lshl_b32 {sOff}, {sIdx}, 12")
    zero(vAcc)
    A(f"  s_waitcnt vmcnt(8)")
    wload(WQA, vWQA, vWq, sT0, 32768, 4, 4)
    A(f"  v_lshlrev_b32 v{vPh}, 16, v{vPl}")
    pv(vAcc, vWQB, vPl, vPh, [0, 1, 2, 3])
    A(f"  s_waitcnt vmcnt(8)")
    kvload(KB, slot(0), sOff)
    pv(vAcc, vWQB + 16, vPl, vPh, [4, 5, 6, 7])
    redrows(vAcc, L_QBP)
    stamp(1)
    A("  s_waitcnt lgkmcnt(0)")
    A("  s_barrier")
    zero(vAcc)
    A(f"  v_mov_b32 v{vPl}, v{vX+4}")
    A(f"  v_lshlrev_b32 v{vPh}, 16, v{vX+4}")
    A(f"  s_waitcnt vmcnt(8)")
    kvload(VB, slot(0) + 16, sOff)
    pv(vAcc, vWQA, vPl, vPh, [0, 1, 2, 3])
    A(f"  s_waitcnt vmcnt(8)")
    units = []
    for b in range(1, NS):
        units += [(KB, slot(b), b), (VB, slot(b) + 16, b)]
    first = True
    for srd, r, b in units:
        if srd == KB:
            A(f"  s_add_u32 {sOff}, {sOff}, {32*4096}")
        if not first:
            A(f"  s_waitcnt vmcnt(8)")
        kvload(srd, r, sOff)
        if first:
            pv(vAcc, vWQA + 16, vPl, vPh, [4, 5, 6, 7])
            redrows(vAcc, L_QAP)
            first = False
    if not units:
        pv(vAcc, vWQA + 16, vPl, vPh, [4, 5, 6, 7])
        redrows(vAcc, L_QAP)
    stamp(2)
    zero(vAcc)
    A(f"  v_mov_b32 v{vM}, 0xff7fffff")
    A(f"  v_mov_b32 v{vLs}, 0")
    A(f"  s_add_u32 {sOff}, {sOff}, {32*4096}")
    A(f"  s_cmp_eq_u32 {sAA}, 1")
    A(f"  s_cselect_b32 {sIt}, {naa}, -1")
    A("  s_waitcnt lgkmcnt(0)")
    A("  s_barrier")
    A(f"  ds_read_b128 v[{vQ}:{vQ+3}], v{vX+5} offset:{L_Q}")
    A("  s_waitcnt lgkmcnt(0)")
    stamp(3)
    A(f"  s_mov_b32 {sTk}, 1")
    A(f"  s_atomic_add {sTk}, {CNTP}, 0 glc")
    out = min(12, 8 * NS)
    A(f"  s_waitcnt vmcnt({(NS-1)*8+4})")
    tile(0, sOff)
    A(f"  s_waitcnt vmcnt({(NS-1)*8+4})")
    pv(vAcc, slot(0) + 16, vPl, vPh, KVL)
    kvload(VB, slot(0) + 16, sOff)
    for b in range(1, NS):
        A(f"  s_waitcnt vmcnt({(NS-1-b)*8+4+8})")
        tile(b)
        A(f"  s_waitcnt vmcnt({(NS-1-b)*8+8})")
        pv(vAcc, slot(b) + 16, vPl, vPh, KVL)
    stamp(4)
    A(".p2align 6")
    A("L_loop:")
    A(f"  s_sub_u32 {sIt}, {sIt}, 1")
    A(f"  s_cmp_eq_u32 {sIt}, 0")
    A("  s_cbranch_scc1 L_aa")
    A("L_resume:")
    A("  s_waitcnt vmcnt(4)")
    qk(slot(0), vQ)
    A("  s_waitcnt lgkmcnt(0)")
    A(f"  s_add_u32 {sOff}, {sTk}, {1 + (NS+1)*32}")
    A(f"  s_cmp_ge_u32 {sOff}, 2048")
    A("  s_cbranch_scc1 L_drain")
    A(f"  s_lshl_b32 {sOff}, {sOff}, 12")
    A(f"  s_mov_b32 {sTk}, 1")
    kvload(KB, slot(0), sOff)
    A(f"  s_atomic_add {sTk}, {CNTP}, 0 glc")
    red16(vT)
    softmax(vT, vM, vLs, vAcc, vPl, vPh)
    A("  s_waitcnt vmcnt(4)")
    pv(vAcc, slot(0) + 16, vPl, vPh, KVL)
    kvload(VB, slot(0) + 16, sOff)
    A("  s_branch L_loop")

    A("L_drain:")
    stamp(6)
    A(f"  s_lshl_b32 {sT0}, {sH}, 7")
    A(f"  s_lshl_b32 {sT1}, {sW}, 5")
    A(f"  s_add_u32 {sT0}, {sT0}, {sT1}")
    A(f"  s_lshl_b32 {sT0}, {sT0}, 11")
    A(f"  s_lshl_b32 {sT1}, {sS}, 8")
    A(f"  s_add_u32 {sT0}, {sT0}, {sT1}")
    wload(WOA, slot(2), vWo, sT0, 8192)
    n = 8
    if womode == "C":
        wload(WOB, slot(1), vWo, sT0, 8192)
        n = 16
    red16(vT)
    softmax(vT, vM, vLs, vAcc, vPl, vPh)
    A(f"  s_waitcnt vmcnt({n})")
    pv(vAcc, slot(0) + 16, vPl, vPh, KVL)
    A(f"  s_cmp_lt_i32 {sIt}, 1")
    A("  s_cbranch_scc1 L_noaa")
    A(f"  s_mov_b32 {sIt}, 0x40000000")
    A("  s_waitcnt vmcnt(0)")
    A("  s_branch L_aa")
    A("L_aaback:")
    wload(WOA, slot(2), vWo, sT0, 8192)
    if womode == "C":
        wload(WOB, slot(1), vWo, sT0, 8192)
    A("L_noaa:")
    fin(vAcc, vM, vLs, L_BPART)
    stamp(7)
    A("  s_waitcnt lgkmcnt(0)")
    A("  s_barrier")
    A(f"  ds_read_u16 v{vPl}, v{vCo} offset:{L_OA}")
    if womode == "D":
        A("  s_barrier")
        wload(WOB, slot(1), vWo, sT0, 8192)
    zero(vAcc)
    A(f"  s_waitcnt vmcnt(8) lgkmcnt(0)" if womode == "D" else "  s_waitcnt vmcnt(8) lgkmcnt(0)")
    A(f"  v_lshlrev_b32 v{vPh}, 16, v{vPl}")
    pv(vAcc, slot(2), vPl, vPh, range(8))
    redrows(vAcc, L_O2A)
    zero(vAcc + 2, 6)
    A("  s_waitcnt lgkmcnt(0)")
    A("  s_barrier")
    A(f"  ds_read_u16 v{vPl}, v{vCo} offset:{L_OB}")
    zero(vAcc, 2)
    A("  s_waitcnt vmcnt(0) lgkmcnt(0)")
    A(f"  v_lshlrev_b32 v{vPh}, 16, v{vPl}")
    pv(vAcc, slot(1), vPl, vPh, range(8))
    redrows(vAcc, L_O2B)
    stamp(8)
    if stamps:
        A(f"  s_cmp_lg_u32 {sW}, 0")
        A("  s_cbranch_scc1 L_nost0")
        A(f"  s_lshl_b32 {sT0}, s2, 8")
        A(f"  s_add_u32 {sT0}, {sT0}, {STAMP1}")
        A(f"  v_lshl_add_u32 v253, v0, 2, {sT0}")
        A("  s_mov_b64 exec, 0xffff")
        A("  global_store_dword v253, v252, s[28:29]")
        A("  s_mov_b64 exec, -1")
        A("L_nost0:")
    A("  s_waitcnt lgkmcnt(0)")
    A("  s_barrier")
    A("  s_endpgm")

    A("L_aa:")
    A(f"  s_lshl_b32 s30, {sW}, 12")
    kvload(KA, slot(1), "s30")
    kvload(VA, slot(1) + 16, "s30")
    zero(vAccA, 64)
    for i in range(8):
        A(f"  v_mov_b32 v{vMA+i}, 0xff7fffff")
        A(f"  v_mov_b32 v{vLA+i}, 0")
    A("  s_mov_b32 s31, 8")
    A("  s_barrier")
    for i in range(8):
        A(f"  ds_read_b128 v[{vQA+4*i}:{vQA+4*i+3}], v{vX+5} offset:{L_QA+256*i}")
    A("  s_waitcnt lgkmcnt(0)")
    A("L_aaloop:")
    A(f"  s_add_u32 s30, s30, {4*4096}")
    A("  s_sub_u32 s31, s31, 1")
    A("  s_cmp_eq_u32 s31, 0")
    A("  s_waitcnt vmcnt(4)")
    for i in range(8):
        qk(slot(1), vQA + 4 * i)
        red16(vTA + i)
    A("  s_cbranch_scc1 L_aa_nk")
    kvload(KA, slot(1), "s30")
    A("L_aa_nk:")
    for i in range(8):
        softmax(vTA + i, vMA + i, vLA + i, vAccA + 8 * i, vPlA + i, vPhA + i)
    A("  s_waitcnt vmcnt(4)")
    A("  s_cbranch_scc0 L_aa_w")
    A("  s_waitcnt vmcnt(0)")
    A("L_aa_w:")
    for i in range(8):
        pv(vAccA + 8 * i, slot(1) + 16, vPlA + i, vPhA + i, KVL)
    A("  s_cbranch_scc1 L_aa_done")
    kvload(VA, slot(1) + 16, "s30")
    A("  s_branch L_aaloop")
    A("L_aa_done:")
    for i in range(8):
        fin(vAccA + 8 * i, vMA + i, vLA + i, L_APART + RS * i)
    A("  s_waitcnt vmcnt(0) lgkmcnt(0)")
    A("  s_barrier")
    stamp(5)
    A(f"  s_cmp_eq_u32 {sIt}, 0")
    A(f"  s_mov_b32 {sIt}, -1")
    A("  s_cbranch_scc1 L_resume")
    A("  s_branch L_aaback")

    hL8, hZ, hA = 1, 2, 3
    hD = 8
    hE = 40
    hM, hW, hL, hO = 56, 58, 66, 68
    sWG = "s30"

    def guard(r, n):
        for i in range(n):
            A(f"  v_min_u32 v{r+i}, -2, v{r+i}")

    def anysent(r, n, lab):
        A(f"  v_max3_u32 v{hW}, v{r}, v{r+1}, v{r+2}")
        i = 3
        while i < n:
            if i + 1 < n:
                A(f"  v_max3_u32 v{hW}, v{hW}, v{r+i}, v{r+i+1}")
                i += 2
            else:
                A(f"  v_max_u32 v{hW}, v{hW}, v{r+i}")
                i += 1
        A(f"  v_cmp_eq_u32 vcc, -1, v{hW}")
        A(f"  s_sub_u32 {sSpin}, {sSpin}, 1")
        A(f"  s_cbranch_scc1 {lab}_ok")
        A(f"  s_cbranch_vccnz {lab}")
        A(f"{lab}_ok:")

    def sum4(ldsoff, wsoff):
        for v in range(4):
            A(f"  ds_read_b64 v[{hD+2*v}:{hD+2*v+1}], v{hL8} offset:{ldsoff+v*PS}")
        A("  s_waitcnt lgkmcnt(0)")
        A(f"  v_pk_add_f32 v[{hD}:{hD+1}], v[{hD}:{hD+1}], v[{hD+2}:{hD+3}]")
        A(f"  v_pk_add_f32 v[{hD+4}:{hD+5}], v[{hD+4}:{hD+5}], v[{hD+6}:{hD+7}]")
        A(f"  v_pk_add_f32 v[{hD}:{hD+1}], v[{hD}:{hD+1}], v[{hD+4}:{hD+5}]")
        guard(hD, 2)
        A(f"  buffer_store_dwordx2 v[{hD}:{hD+1}], v{hL8}, {WS}, {sWG} offen offset:{wsoff} sc1")

    def qgather(lab, sbase, ldsaddr, ldsoff):
        A(f"  s_mov_b32 {sSpin}, {SPIN}")
        A(f"{lab}:")
        for p in range(8):
            if p:
                A(f"  s_add_u32 {sT2}, {sbase}, {p*WG_STRIDE}")
            A(f"  buffer_load_dwordx2 v[{hD+2*p}:{hD+2*p+1}], v{hL8}, {WS}, {sT2 if p else sbase} offen sc1")
        A("  s_waitcnt vmcnt(0)")
        anysent(hD, 16, lab)
        for st in (1, 2, 4):
            for p in range(0, 8, 2 * st):
                A(f"  v_pk_add_f32 v[{hD+2*p}:{hD+2*p+1}], v[{hD+2*p}:{hD+2*p+1}], v[{hD+2*(p+st)}:{hD+2*(p+st)+1}]")
        A(f"  v_cvt_pk_bf16_f32 v{hD}, v{hD}, v{hD+1}")
        A(f"  ds_write_b32 v{ldsaddr}, v{hD} offset:{ldsoff}")

    def merge(n, norm):
        A(f"  v_max3_f32 v{hM}, v{hE}, v{hE+2}, v{hE+4}")
        i = 3
        while i < n:
            if i + 1 < n:
                A(f"  v_max3_f32 v{hM}, v{hM}, v{hE+2*i}, v{hE+2*i+2}")
                i += 2
            else:
                A(f"  v_max_f32 v{hM}, v{hM}, v{hE+2*i}")
                i += 1
        for p in range(n):
            A(f"  v_sub_f32 v{hW+p}, v{hE+2*p}, v{hM}")
        for p in range(n):
            A(f"  v_exp_f32 v{hW+p}, v{hW+p}")
        A(f"  v_mul_f32 v{hM+1}, v{hW}, v{hE+1}")
        A(f"  v_mul_f32 v{hO}, v{hW}, v{hD}")
        A(f"  v_mul_f32 v{hO+1}, v{hW}, v{hD+1}")
        for p in range(1, n):
            A(f"  v_fmac_f32 v{hM+1}, v{hW+p}, v{hE+2*p+1}")
            A(f"  v_fmac_f32 v{hO}, v{hW+p}, v{hD+2*p}")
            A(f"  v_fmac_f32 v{hO+1}, v{hW+p}, v{hD+2*p+1}")
        if norm:
            A(f"  v_rcp_f32 v{hL}, v{hM+1}")
            A(f"  v_mul_f32 v{hO}, v{hO}, v{hL}")
            A(f"  v_mul_f32 v{hO+1}, v{hO+1}, v{hL}")
            A(f"  v_cvt_pk_bf16_f32 v{hO}, v{hO}, v{hO+1}")

    def combine4(a8, az, ldsoff, so, wsoff):
        for v in range(4):
            A(f"  ds_read_b64 v[{hE+2*v}:{hE+2*v+1}], v{az} offset:{ldsoff+v*PS+512}")
        for v in range(4):
            A(f"  ds_read_b64 v[{hD+2*v}:{hD+2*v+1}], v{a8} offset:{ldsoff+v*PS}")
        A("  s_waitcnt lgkmcnt(0)")
        merge(4, False)
        guard(hO, 2)
        guard(hM, 2)
        A(f"  buffer_store_dwordx2 v[{hO}:{hO+1}], v{hL8}, {WS}, {so} offen offset:{wsoff} sc1")
        A("  s_mov_b64 exec, 1")
        A(f"  buffer_store_dwordx2 v[{hM}:{hM+1}], v{hZ}, {WS}, {so} offen offset:{wsoff+512} sc1")
        A("  s_mov_b64 exec, -1")

    def combine8(lab, sbase, stride, ldsoff):
        A(f"  s_mov_b32 {sSpin}, {SPIN}")
        A(f"{lab}:")
        for p in range(8):
            if p:
                A(f"  s_add_u32 {sT2}, {sbase}, {p*stride}")
            so = sT2 if p else sbase
            A(f"  buffer_load_dwordx2 v[{hD+2*p}:{hD+2*p+1}], v{hL8}, {WS}, {so} offen sc1")
            A(f"  buffer_load_dwordx2 v[{hE+2*p}:{hE+2*p+1}], v{hZ}, {WS}, {so} offen offset:512 sc1")
        A("  s_waitcnt vmcnt(0)")
        A(f"  v_max3_u32 v{hD+16}, v{hE}, v{hE+1}, v{hE+2}")
        for i in range(3, 15, 2):
            A(f"  v_max3_u32 v{hD+16}, v{hD+16}, v{hE+i}, v{hE+i+1}")
        A(f"  v_max_u32 v{hD+16}, v{hD+16}, v{hE+15}")
        anysent(hD, 17, lab)
        merge(8, True)
        A(f"  ds_write_b32 v{hA}, v{hO} offset:{ldsoff}")

    A("L_helper:")
    if prio:
        A(f"  s_setprio {prio}")
    A(f"  s_lshl_b32 {sWG}, s2, 12")
    for i in range(4):
        A(f"  v_mov_b32 v{hD+i}, -1")
    for j in range(4):
        A(f"  buffer_store_dwordx4 v[{hD}:{hD+3}], v{vL16}, {WS}, {sWG} offen offset:{j*1024} sc1")
    A(f"  s_lshl_b32 s31, {sH}, 13")
    A(f"  s_add_u32 s31, s31, {W_AP}")
    A(f"  s_cmp_eq_u32 {sAA}, 0")
    A("  s_cbranch_scc1 L_h_noclr")
    A(f"  s_add_u32 {sT2}, s31, 4096")
    for j in range(8):
        A(f"  buffer_store_dwordx4 v[{hD}:{hD+3}], v{vL16}, {WS}, {'s31' if j < 4 else sT2} offen offset:{(j%4)*1024} sc1")
    A("L_h_noclr:")
    A(f"  v_lshlrev_b32 v4, 2, v0")
    A(f"  v_lshlrev_b32 v5, 3, v0")
    A("  s_waitcnt vmcnt(0)")
    A(f"  v_mov_b32 v{hA}, v4")
    A(f"  v_mov_b32 v{hL8}, v5")
    A(f"  v_mov_b32 v{hZ}, 0")
    A(f"  s_mov_b32 {sTk}, 1")
    A(f"  s_atomic_add {sTk}, {DBGP}, 0 glc")
    A("  s_waitcnt lgkmcnt(0)")
    stamp(1)
    A("  s_barrier")
    sum4(L_QBP, W_QB)
    A(f"  s_add_u32 {sTk}, {sTk}, 1")
    A(f"  s_mov_b32 {sSpin}, {SPIN}")
    A("L_h_flag:")
    A(f"  s_cmp_ge_u32 {sTk}, 8")
    A("  s_cbranch_scc1 L_h_flag_ok")
    A(f"  s_mov_b32 {sTk}, 0")
    A(f"  s_atomic_add {sTk}, {DBGP}, 0 glc")
    A(f"  s_sub_u32 {sSpin}, {sSpin}, 1")
    A("  s_waitcnt lgkmcnt(0)")
    A("  s_cbranch_scc0 L_h_flag")
    A("L_h_flag_ok:")
    stamp(2)
    A(f"  s_lshl_b32 {sT0}, {sH}, 15")
    qgather("L_h_qb", sT0, hA, L_Q)
    stamp(3)
    A("  s_waitcnt lgkmcnt(0)")
    A("  s_barrier")
    sum4(L_QAP, W_QA)
    A(f"  s_mov_b32 {sSpin}, {SPIN}")
    A("L_h_all:")
    A(f"  global_load_dword v{hD+4}, v{hA}, s[26:27] sc1")
    A("  s_waitcnt vmcnt(0)")
    A(f"  v_cmp_ne_u32 vcc, 8, v{hD+4}")
    A("  s_nop 1")
    A("  s_and_b32 vcc_lo, vcc_lo, 0x55555555")
    A("  s_and_b32 vcc_hi, vcc_hi, 0x55555555")
    A(f"  s_sub_u32 {sSpin}, {sSpin}, 1")
    A("  s_cbranch_scc1 L_h_all_ok")
    A("  s_cmp_eq_u64 vcc, 0")
    A("  s_cbranch_scc0 L_h_all")
    A("L_h_all_ok:")
    stamp(4)
    A(f"  s_cmp_eq_u32 {sAA}, 0")
    A("  s_cbranch_scc1 L_h_noaa")
    A(f"  s_lshr_b32 {sT0}, {sH}, 3")
    A(f"  s_lshl_b32 {sT0}, {sT0}, 18")
    A(f"  s_add_u32 {sT0}, {sT0}, {W_QA}")
    A(f"  v_mov_b32 v6, v{hA}")
    A(f"  s_mov_b32 {sT1}, 8")
    A("L_h_qa_next:")
    qgather("L_h_qa", sT0, 6, L_QA)
    A(f"  s_add_u32 {sT0}, {sT0}, {8*WG_STRIDE}")
    A("  v_add_u32 v6, 256, v6")
    A(f"  s_sub_u32 {sT1}, {sT1}, 1")
    A(f"  s_cmp_lg_u32 {sT1}, 0")
    A("  s_cbranch_scc1 L_h_qa_next")
    A("  s_waitcnt lgkmcnt(0)")
    A("  s_barrier")
    A("  s_barrier")
    A(f"  v_mov_b32 v6, v{hL8}")
    A(f"  v_mov_b32 v7, 0")
    A(f"  s_mov_b32 {sT1}, 8")
    A("L_h_ap_next:")
    combine4(6, 7, L_APART, "s31", 0)
    A(f"  s_add_u32 s31, s31, 1024")
    A(f"  v_add_u32 v6, {RS}, v6")
    A(f"  v_add_u32 v7, {RS}, v7")
    A(f"  s_sub_u32 {sT1}, {sT1}, 1")
    A(f"  s_cmp_lg_u32 {sT1}, 0")
    A("  s_cbranch_scc1 L_h_ap_next")
    A("L_h_noaa:")
    A(f"  s_lshr_b32 {sT0}, {sH}, 3")
    A(f"  s_lshl_b32 {sT0}, {sT0}, 16")
    A(f"  s_and_b32 {sT1}, {sH}, 7")
    A(f"  s_lshl_b32 {sT1}, {sT1}, 10")
    A(f"  s_add_u32 {sT0}, {sT0}, {sT1}")
    A(f"  s_add_u32 {sT0}, {sT0}, {W_AP}")
    A(f"  v_lshlrev_b32 v6, 13, v0")
    A(f"  s_mov_b32 {sSpin}, {SPIN}")
    A("  s_mov_b64 exec, 0xff")
    A("L_h_apw:")
    A(f"  buffer_load_dword v{hD}, v6, {WS}, {sT0} offen offset:516 sc1")
    A("  s_waitcnt vmcnt(0)")
    A(f"  v_cmp_eq_u32 vcc, -1, v{hD}")
    A(f"  s_sub_u32 {sSpin}, {sSpin}, 1")
    A("  s_cbranch_scc1 L_h_apw_ok")
    A("  s_cbranch_vccnz L_h_apw")
    A("L_h_apw_ok:")
    A("  s_mov_b64 exec, -1")
    combine8("L_h_ap8", sT0, 8192, L_OA)
    stamp(5)
    A(f"  s_lshl_b32 {sT0}, {sH}, 15")
    A(f"  s_add_u32 {sT0}, {sT0}, {W_BP}")
    A("  v_and_b32 v6, 31, v0")
    A("  v_lshlrev_b32 v6, 15, v6")
    A("  v_lshrrev_b32 v7, 5, v0")
    A("  v_lshl_add_u32 v6, v7, 9, v6")
    A(f"  s_lshl_b32 {sT1}, {sS}, 12")
    A(f"  s_lshl_b32 s31, {sH}, 4")
    A(f"  s_add_u32 {sT1}, {sT1}, s31")
    A(f"  s_add_u32 {sT1}, {sT1}, {W_O2B}")
    A("  v_xor_b32 v7, 1, v7")
    A("  v_lshlrev_b32 v7, 11, v7")
    A(f"  s_lshl_b32 s31, {sS}, 8")
    A(f"  s_lshl_b32 {sTk}, {sH}, 3")
    A(f"  s_add_u32 s31, s31, {sTk}")
    A("  s_waitcnt lgkmcnt(0)")
    A("  s_barrier")
    stamp(6)
    combine4(hL8, hZ, L_BPART, sWG, W_BP)
    if womode == "D":
        A("  s_barrier")
    combine8("L_h_bp8", sT0, WG_STRIDE, L_OB)
    stamp(7)
    A("  s_waitcnt lgkmcnt(0)")
    A("  s_barrier")
    sum4(L_O2A, W_O2A)
    A("  s_barrier")
    sum4(L_O2B, W_O2B)
    stamp(8)
    A(f"  s_mov_b32 {sSpin}, {SPIN}")
    A("L_h_fin:")
    A(f"  buffer_load_dwordx4 v[{hE}:{hE+3}], v6, {WS}, {sT1} offen sc1")
    A("  s_waitcnt vmcnt(0)")
    anysent(hE, 4, "L_h_fin")
    for ctrl in ("row_ror:8", "row_ror:4", "quad_perm:[2,3,0,1]", "quad_perm:[1,0,3,2]"):
        for i in range(4):
            dpp("v_add_f32", hE + i, hE + i, hE + i, ctrl)
    for i in range(4):
        A(f"  v_mov_b32 v{hE+4+i}, v{hE+i}")
    for i in range(4):
        A(f"  v_permlane16_swap_b32 v{hE+i}, v{hE+4+i}")
    for i in range(4):
        A(f"  v_add_f32 v{hE+i}, v{hE+i}, v{hE+4+i}")
    A(f"  v_cvt_pk_bf16_f32 v{hE}, v{hE}, v{hE+1}")
    A(f"  v_cvt_pk_bf16_f32 v{hE+1}, v{hE+2}, v{hE+3}")
    A("  s_mov_b32 exec_lo, 1")
    A("  s_mov_b32 exec_hi, 1")
    A(f"  buffer_store_dwordx2 v[{hE}:{hE+1}], v7, {OUT}, s31 offen")
    if stamps:
        A("  s_mov_b64 exec, -1")
        stamp(9)
        A(f"  s_lshl_b32 {sT0}, s2, 8")
        A(f"  s_add_u32 {sT0}, {sT0}, {STAMP1+64}")
        A(f"  v_lshl_add_u32 v253, v0, 2, {sT0}")
        A("  s_mov_b64 exec, 0xffff")
        A("  global_store_dword v253, v252, s[28:29]")
        A("  v_mov_b32 v8, s98\n  v_mov_b32 v9, s99\n  v_mov_b32 v10, s96\n  v_mov_b32 v11, s97")
        A(f"  s_lshl_b32 {sT0}, s2, 4")
        A(f"  s_add_u32 {sT0}, {sT0}, {STAMP0}")
        A(f"  v_mov_b32 v253, {sT0}")
        A("  s_mov_b64 exec, 1")
        A("  global_store_dwordx4 v253, v[8:11], s[28:29]")
    A("L_end:")
    A("  s_endpgm")
    A('.section .rodata,"a"')
    A(".p2align 6")
    A(f".amdhsa_kernel {KN}")
    A("  .amdhsa_next_free_vgpr 256")
    A("  .amdhsa_next_free_sgpr 102")
    A("  .amdhsa_accum_offset 256")
    A("  .amdhsa_group_segment_fixed_size 0")
    A("  .amdhsa_kernarg_size 104")
    A("  .amdhsa_user_sgpr_count 2")
    A("  .amdhsa_user_sgpr_kernarg_segment_ptr 1")
    A("  .amdhsa_system_sgpr_workgroup_id_x 1")
    A(".end_amdhsa_kernel")
    A.pad()
    return A.text()


if __name__ == "__main__":
    names = []
    for spec in sys.argv[1:]:
        out = None
        if "@" in spec:
            spec, out = spec.split("@")
        kv = dict(x.split("=") for x in spec.split(",") if x)
        p = {k: (v.replace("+", " ") if k in ("pol", "womode") else int(v)) for k, v in kv.items()}
        name = out or "k_" + spec.replace("=", "").replace(",", "_").replace("+", "") + ".s"
        open(name, "w").write(gen(**p))
        names.append(name)
    print(" ".join(os.path.relpath(n, "code") for n in names))
```

```python
import sys, os
sys.path.insert(0, os.path.dirname(os.path.abspath(__file__)))
from asmlib import Asm

KN = "concat_heads__sliding_block_cached__mha_block_cached__decode_kernel"
HEADER = open(os.path.join(os.path.dirname(os.path.abspath(__file__)), "header.txt")).read()

WG_STRIDE = 4096
W_QB, W_QA, W_BP, W_O2B, W_O2A, W_CNT = 0, 512, 1024, 2048, 2560, 3072
W_AP = 1 << 20
WS_SIZE = (1 << 20) + 32 * 8192
STAMP0 = 0x20000000
STAMP1 = 0x20100000
PS = 544
RS = 4 * PS
L_QBP, L_QAP, L_BPART, L_O2A, L_O2B, L_APART = 0, RS, 2 * RS, 3 * RS, 4 * RS, 5 * RS
L_Q = 13 * RS
L_OA = L_Q + 256
L_OB = L_OA + 256
L_QA = L_OB + 256
L_SC = 32768
LDS_BYTES = 65536
SPIN = 1 << 20
DOC = '''
; Fused single-launch decode step, 256 workgroups (one per CU) x 5 waves; written by gen/gen.py (own generator).
;   workgroup w: head h = w>>3, slice s = w&7.  waves 0-3 stream HBM with a fixed number of 1-KiB loads in flight,
;   wave 4 (helper) does the hand-offs between workgroups.
;   1. q = x@wq: 128-row slices per workgroup, 8 partials per head exchanged through d_ws (K loads are prefetched meanwhile)
;      dealt dynamically as fused K+V tiles (online softmax).  Branch A (GQA window) is done by one workgroup per head group
;      between its two phases.
;   3. partial (o, max, sum) boxes are merged per head, o@wo is done in 128x128 blocks, 32 partial rows are summed per column.
;   write-through stores; readers poll with sc1 loads until no word holds the sentinel.  All spins are bounded.
'''
PATS = [
    "j0:10 j1:11 j2:12 v0:13 v1:14 s0:15 s1:16 s2:17 i0:18 i1:19 i2:20 i3:21 i4:22 h0: h1: h2: h3: h4:",
    "j0:10+12 j1:14+19 j2:22 v0:21 v1:13 s0:14 s1:15+18 s2:11 i0:10 i1:15 i2:16+17 i3:17 i4:20 h0: h1: h2:10+17 h3:20 h4:13",
    "j0:20 j1:11 j2:18+22 v0:13 v1:21 s0:14 s1:10 s2:17 i0:16+19 i1:15 i2:12 i3:18 i4:16 h0:10 h1:17 h2:10 h3:15+21 h4:10",
    "j0:12 j1:11 j2:13 v0:16 v1:21 s0:14+22 s1:10 s2:17 i0:18 i1:15 i2:21+22 i3:20+22 i4:19 h0: h1:16 h2:21 h3:15+18 h4:22",
    "j0:10+19 j1:16+22 j2:22 v0:21 v1:13 s0:20 s1:12 s2:11+14 i0:14 i1:15 i2:19 i3:17 i4:11+18 h0:13 h1: h2:13 h3: h4:13+16",
    "j0:13 j1:17+21 j2:11+12 v0:20 v1:21 s0:13+14 s1:16 s2:18+22 i0:15 i1:18 i2:12 i3:13+19 i4:10+21 h0:18 h1: h2: h3: h4:15",
    "j0:12+22 j1:11+19 j2:21 v0:14 v1:13 s0:15 s1:16 s2:17 i0:11+22 i1:10 i2:12+13 i3:18 i4:20 h0:20 h1:12 h2:19 h3: h4:21",
    "j0:9 j1:19+20 j2:13 v0:21 v1:11 s0:9+10 s1:14 s2:17 i0:15 i1:12 i2:20+21 i3:18 i4:22 h0:10 h1:13+17 h2:10 h3:22 h4:10+15 k0:16 k1:8",
    "j0:16 j1:12 j2:13 v0:21 v1:11 s0:14 s1:10 s2:17+19+21 i0:8 i1:22 i2:19 i3:11+18+21 i4:20 h0:13 h1:19 h2:8 h3: h4:22 k0:8+9+15 k1:15",
    "j0:21 j1:9+11+19 j2:9 v0:12+22 v1:13 s0:12+14+15+19 s1:16 s2:17 i0:11+22 i1:18 i2:10 i3:20 i4:12 h0:13 h1:10+18 h2: h3: h4: k0:8 k1:14",
    "j0:8 j1:14 j2:20 v0:9+13 v1:10+12 s0:13+18 s1:11+12 s2:17 i0:15 i1:19 i2:21 i3:22 i4:13 h0: h1:17 h2:8 h3: h4:10+14 k0:12+16 k1:10+13",
    "j0:8 j1:21 j2:22 v0:9 v1:11 s0:10 s1:11+14 s2:17 i0:19 i1:15 i2:13+21 i3:12+19 i4:8+18 h0:10 h1:9+15+17 h2: h3: h4: k0:16 k1:13+15+20",
    "j0:12+18 j1:8+11 j2:9 v0:16 v1:15 s0:10 s1:14 s2:17+18 i0:13+21 i1:16+19 i2:12+16+21 i3:20 i4:22 h0:21 h1: h2:16 h3: h4:15 k0:13 k1:8",
    "j0:9+21 j1:8+21 j2:15 v0:10+12 v1:13 s0:18 s1:10 s2:11 i0:16 i1:19 i2:9+22 i3:20 i4:12+14+15 h0: h1:12 h2: h3:10 h4:16 k0:8 k1:17+22",
    "j0:13 j1:12+13 j2:8 v0:21 v1:11+22 s0:8+15 s1:14 s2:17 i0:16 i1:22 i2:20 i3:18 i4:10 h0: h1:8+9 h2:20+21+22 h3: h4: k0:19+22 k1:9",
    "j0:12 j1:9 j2:21 v0:11 v1:13 s0:14+16 s1:9+10 s2:17 i0:16 i1:20 i2:18 i3:22 i4:19+22 h0:12 h1:21 h2: h3:15 h4:8+21 k0:8+12 k1:15",
    "j0:8+9 j1:18 j2:10+21 v0:13 v1:19+20 s0:21 s1:14 s2:8+17 i0:9 i1:22 i2:11 i3:20 i4:12 h0:10 h1:11+17+20 h2:9 h3:20+22 h4:8 k0:15 k1:16",
    "j0:9 j1:21 j2:8+11+13 v0:15 v1:12+16+19 s0:14+21 s1:10 s2:15+17 i0:16 i1:18 i2:22 i3:19 i4:20 h0:10 h1:17+22 h2: h3:13 h4: k0:11 k1:8+9+15",
    "j0:16+21 j1:12 j2:19 v0:15 v1:9+21 s0:10+18 s1:21 s2:11+17 i0:13 i1:10 i2:14+19+22 i3:9+21+22 i4:12+20 h0: h1:12 h2: h3:10 h4: k0:17+22 k1:8",
]


def parse_pat(t):
    c = {}
    for w in t.split():
        k, b = w.split(":")
        c[k] = sum(1 << int(x) for x in b.split("+") if x)
    c.setdefault("k0", 256)
    c.setdefault("k1", 512)
    rows = [c[k] for k in c if k[0] != "h"]
    for bit in range(8, 23):
        p = next(x for x in rows if x >> bit & 1)
        rows.remove(p)
        rows = [x ^ p if x >> bit & 1 else x for x in rows]
    return c


def gen(NS=3, stamps=0, pol="nt", wo="CD", prio=3, cap=52, cap0=5, ust=1, n=31, na=25, nC=8, tke=0, capA=7, early=0, poll1=1, nF=8, touch=0, osc="", pipe=0, fx=24, pat=16, tab=0, D=0, uB=27, capP=0, pt=0, capV=66555555, pk=0, thr=56, capF=7, hoist=0):
    A = Asm()
    lo, frac = divmod(cap, 10)
    caps = [lo + (1 if (j + 1) * frac // 10 > j * frac // 10 else 0) for j in range(8)]
    if frac == 5:
        caps = [lo + 1 - (j & 1) for j in range(8)]
    if cap > 1000:
        caps = [int(ch) for ch in str(cap)]
    cap = caps[7]
    nst = [0]

    sH, sS, sW = "s84", "s85", "s3"
    sIdx, sOff, sTk, sIt = "s86", "s87", "s88", "s89"
    sT0, sT1, sT2, sC = "s90", "s91", "s93", "s92"
    sSpin, sAA = "s94", "s95"
    KB, VB, WQB, WQA, WOB, WOA, KA, VA, WS, XB, XA, OUT = ["s[%d:%d]" % (i, i + 3) for i in range(32, 80, 4)]
    DBGP, CNTP = "s[80:81]", "s[82:83]"
    vL16, vWq, vWo = 1, 2, 3
    vQ, vAcc, vM, vLs = 4, 8, 16, 17
    vS0, vR0, vR1, vT, vMx, vAl, vPl, vPh, vMn = 18, 22, 23, 24, 25, 26, 28, 29, 30
    vLo, vLm, vCo = 240, 241, 242
    vX = 244
    vList, vMr, vSc, vL16b = 243, 250, 251, 31
    vP1l, vP1h = 20, 21
    sI, sThr, sPend = "s100", "s24", "s25"
    E1 = 4 * (32 - na)
    E = E1 + 28 * (32 - n)
    P3 = 2 * (E - D)
    assert E <= 128 and 32 - n <= 3
    COL = parse_pat(PATS[pat])
    TJ = [(COL["j0"] if j & 1 else 0) ^ (COL["j1"] if j & 2 else 0) ^ (COL["j2"] if j & 4 else 0) for j in range(8)]
    vP3a, vP3b = 254, 255
    NMAX = 48
    assert n > na and 28 * (NMAX - n) >= D
    NT, NTA = n, na
    assert P3 >= 0
    slot = lambda b: 32 + 32 * b
    vWQB, vWQA = 160, 192
    vQA, vAccA, vMA, vLA = 128, 160, 224, 232
    vSA, vRA, vMrA, vTA, vCfA = 64, 96, 112, 120, 80
    NXT = "s[12:15]"

    def stamp(k, force=False):
        if stamps == 1 or (stamps and force):
            A(f"  s_memrealtime s[96:97]")
            A(f"  s_waitcnt lgkmcnt(0)")
            A(f"  v_writelane_b32 v252, s96, {k}")

    def dpp(op, d, a, b, ctrl, bank=0xf):
        A(f"  {op}_dpp v{d}, v{a}, v{b} {ctrl} row_mask:0xf bank_mask:{bank:#x}")

    def kvload(srd, r, so, va=vL16):
        for j in range(4):
            A(f"  buffer_load_dwordx4 v[{r+4*j}:{r+4*j+3}], v{va}, {srd}, {so} offen offset:{j*1024} {pol}")

    def wload(srd, r, voff, sbase, step, j0=0, n=8):
        for j in range(j0, j0 + n):
            if j:
                A(f"  s_add_u32 {sT2}, {sbase}, {j*step}")
            so = sT2 if j else sbase
            A(f"  buffer_load_dwordx4 v[{r+4*j}:{r+4*j+3}], v{voff}, {srd}, {so} offen {pol}")

    def qk(k, q):
        for m in range(4):
            for j in range(4):
                if m == 0:
                    A(f"  v_dot2_f32_bf16 v{vS0+j}, v{k+4*j}, v{q}, 0")
                else:
                    A(f"  v_dot2c_f32_bf16 v{vS0+j}, v{k+4*j+m}, v{q+m}")

    def dots(k, q, j):
        d = vS0 + (j & 3)
        A(f"  v_dot2_f32_bf16 v{d}, v{k}, v{q}, 0")
        for m in range(1, 4):
            A(f"  v_dot2_f32_bf16 v{d}, v{k+m}, v{q+m}, v{d}")

    def ld(srd, r, va, so, off=0):
        A(f"  buffer_load_dwordx4 v[{r}:{r+3}], v{va}, {srd}, {so} offen offset:{off} {pol}")

    vKV, vAd, vNx = 253, 27, 30
    kmask = COL["k0"] | COL["k1"]
    plain = not any(v & kmask for k, v in COL.items() if k[0] != "k")
    TABN = ["j0", "j1", "j2", "v0", "v1", "s0", "s1", "s2", "i0", "i1", "i2", "i3", "i4", "h0", "h1", "h2", "h3", "h4", "k0", "k1"]
    vTab = 7
    if tab:
        plain = False
        TJ = [0] + ["s%d" % (3 + j) for j in range(1, 8)]
    hx = lambda x: x if isinstance(x, str) else hex(x)

    def col(nm):
        if not tab:
            return hex(COL[nm])
        A(f"  v_readlane_b32 s64, v{vTab}, {TABN.index(nm)}")
        return "s64"

    def ldx(srd, r, so, x):
        if x:
            A(f"  s_xor_b32 {sT2}, {so}, {hx(x)}")
        if plain:
            ld(srd, r, vKV, sT2 if x else so)
        else:
            A(f"  v_xor_b32 v{vAd}, {sT2 if x else so}, v{vKV}")
            ld(srd, r, vAd, "0")

    def tk(srd, b, so):
        return lambda j: ldx(srd, slot(b) + 4 * j, so, TJ[j])

    def tka(srd, so):
        return lambda j: ld(srd, slot(0) + 4 * j, vL16 if j < 4 else vL16b, so, (j & 3) * 1024)

    def tkn(j):
        A(f"  v_xor_b32 v{vAd}, s{16+j}, v{vNx}")
        ld(NXT, slot(0) + 4 * j, vAd, "0")

    def prep_next(sa, sb, a_if_scc):
        A("  s_cselect_b32 s23, 1, 0")
        for j in range(cap):
            A(f"  s_add_u32 s{16+j}, {sa}, {j*1024}")
            A(f"  s_xor_b32 {sT2}, {sb}, {hx(TJ[j])}")
            A(f"  s_cmp_eq_u32 s23, {1 if a_if_scc else 0}")
            A(f"  s_cselect_b32 s{16+j}, s{16+j}, {sT2}")
        A(f"  s_mov_b32 {sPend}, s16")
        A("  s_cselect_b64 vcc, -1, 0")
        A(f"  v_cndmask_b32 v{vNx}, v{vKV}, v{vL16}, vcc")

    def advance():
        A(f"  s_mov_b32 {sOff}, {sPend}")

    def ft(so):
        return lambda j: ldx(KB if j < 4 else VB, slot(0) + 4 * j, so, TJ[j & 3])

    def xormap(d, x):
        bits = [("i%d" % k, k) for k in range(5)] + [("v%d" % k, 5 + k) for k in range(2)] + \
               [("s%d" % k, 7 + k) for k in range(3)] + [("h%d" % k, 10 + k) for k in range(5)]
        first = True
        for nm, b in bits:
            if not COL[nm] and not tab:
                continue
            A(f"  v_bfe_i32 v{vX+3}, v{x}, {b}, 1")
            if first:
                A(f"  v_and_b32 v{d}, {col(nm)}, v{vX+3}")
                first = False
            else:
                A(f"  v_and_b32 v{vX+3}, {col(nm)}, v{vX+3}")
                A(f"  v_xor_b32 v{d}, v{d}, v{vX+3}")

    def wl(srd, r, voff, sbase, step):
        def f(j):
            if j:
                A(f"  s_add_u32 {sT2}, {sbase}, {j*step}")
            ld(srd, r + 4 * j, voff, sT2 if j else sbase)
        return f

    def wait_issue(wait, loads):
        mark = len(A.L)
        parts = []
        for k, f in enumerate(loads):
            m = len(A.L)
            f()
            seg = A.L[m:]
            if k & 1:
                seg = [x.replace(sT2, "s101").replace(f"v{vAd},", "v25,") for x in seg]
            parts.append(seg)
        del A.L[mark:]
        if hoist and wait and len(loads) <= 2:
            pre = [x for seg in parts for x in seg if "buffer_load" not in x]
            post = [x for seg in parts for x in seg if "buffer_load" in x]
            A.L += pre + [wait] + post
        else:
            A.L += ([wait] if wait else []) + [x for seg in parts for x in seg]

    def steps(j0, j1, lead, cur, nxt, proc, nmax=8, first_wait=True, caps=caps):
        for j in range(j0, j1):
            w = f"  s_waitcnt vmcnt({lead-j-1})" if first_wait or j > j0 else None
            loads = []
            while lead < min(j + 1 + caps[j], 8 + nmax):
                loads.append(lambda f=(cur if lead < 8 else nxt), k=lead & 7: f(k))
                lead += 1
            wait_issue(w, loads)
            proc(j)
        return lead

    def stream_iter(cur, nxt, proc, caps=caps):
        assert steps(0, 8, cap, cur, nxt, proc, caps=caps) == 8 + cap

    def red16(t):
        dpp("v_add_f32", vR0, vS0, vS0, "row_ror:8", 0x3)
        dpp("v_add_f32", vR1, vS0 + 2, vS0 + 2, "row_ror:8", 0x3)
        dpp("v_add_f32", vR0, vS0 + 1, vS0 + 1, "row_ror:8", 0xc)
        dpp("v_add_f32", vR1, vS0 + 3, vS0 + 3, "row_ror:8", 0xc)
        dpp("v_add_f32", t, vR0, vR0, "row_half_mirror", 0x5)
        dpp("v_add_f32", t, vR1, vR1, "row_half_mirror", 0xa)
        dpp("v_add_f32", t, t, t, "quad_perm:[1,0,3,2]")
        dpp("v_add_f32", t, t, t, "quad_perm:[2,3,0,1]")

    def softmax(t, m, l, acc, pl, ph):
        dpp("v_max_f32", vMx, t, t, "row_ror:4")
        dpp("v_max_f32", vMx, vMx, vMx, "row_ror:8")
        A(f"  v_mul_f32 v{vMx}, {sC}, v{vMx}")
        A(f"  v_max_f32 v{vMn}, v{m}, v{vMx}")
        A(f"  v_fma_f32 v{t}, v{t}, {sC}, -v{vMn}")
        A(f"  v_sub_f32 v{vAl}, v{m}, v{vMn}")
        A(f"  v_exp_f32 v{t}, v{t}")
        A(f"  v_exp_f32 v{vAl}, v{vAl}")
        A(f"  v_mov_b32 v{m}, v{vMn}")
        A(f"  v_cvt_pk_bf16_f32 v{pl}, v{t}, 0")
        A(f"  v_fma_f32 v{l}, v{l}, v{vAl}, v{t}")
        A(f"  v_lshlrev_b32 v{ph}, 16, v{pl}")
        for i in range(4):
            A(f"  v_pk_mul_f32 v[{acc+2*i}:{acc+2*i+1}], v[{acc+2*i}:{acc+2*i+1}], v[{vAl}:{vAl+1}] op_sel_hi:[1,0]")

    def pv(acc, v, pl, ph, lanes):
        for j, ln in enumerate(lanes):
            for m in range(4):
                dpp("v_dot2c_f32_bf16", acc + 2 * m, pl, v + 4 * j + m, f"row_newbcast:{ln}")
                dpp("v_dot2c_f32_bf16", acc + 2 * m + 1, ph, v + 4 * j + m, f"row_newbcast:{ln}")

    KVL = [0, 8, 4, 12]

    def zero(acc, n=8):
        for i in range(n):
            A(f"  v_mov_b32 v{acc+i}, 0")

    def redrows(acc, ldsoff):
        for a, b in ((0, 4), (2, 6), (1, 5), (3, 7)):
            A(f"  v_permlane32_swap_b32 v{acc+a}, v{acc+b}")
        for a, b in ((0, 4), (2, 6), (1, 5), (3, 7)):
            A(f"  v_add_f32 v{acc+a}, v{acc+a}, v{acc+b}")
        A(f"  v_permlane16_swap_b32 v{acc}, v{acc+2}")
        A(f"  v_permlane16_swap_b32 v{acc+1}, v{acc+3}")
        A(f"  v_add_f32 v{acc}, v{acc}, v{acc+2}")
        A(f"  v_add_f32 v{acc+1}, v{acc+1}, v{acc+3}")
        A(f"  ds_write_b64 v{vLo}, v[{acc}:{acc+1}] offset:{ldsoff}")

    def allrows(op, d, x):
        t1, t2 = vX + 2, vX + 3
        A(f"  v_mov_b32 v{t1}, v{x}")
        A(f"  v_mov_b32 v{t2}, v{x}")
        A(f"  v_permlane32_swap_b32 v{t1}, v{t2}")
        A(f"  {op} v{t1}, v{t1}, v{t2}")
        A(f"  v_mov_b32 v{t2}, v{t1}")
        A(f"  v_permlane16_swap_b32 v{t1}, v{t2}")
        A(f"  {op} v{d}, v{t1}, v{t2}")

    def fin(acc, m, l, ldsoff):
        M, Ls = vX, vX + 1
        allrows("v_max_f32", M, m)
        A(f"  v_sub_f32 v{vAl}, v{m}, v{M}")
        A(f"  v_exp_f32 v{vAl}, v{vAl}")
        dpp("v_add_f32", vR0, l, l, "row_ror:4")
        for i in range(4):
            A(f"  v_pk_mul_f32 v[{acc+2*i}:{acc+2*i+1}], v[{acc+2*i}:{acc+2*i+1}], v[{vAl}:{vAl+1}] op_sel_hi:[1,0]")
        dpp("v_add_f32", vR0, vR0, vR0, "row_ror:8")
        A(f"  v_mul_f32 v{vR0}, v{vR0}, v{vAl}")
        allrows("v_add_f32", Ls, vR0)
        A(f"  ds_write_b64 v{vLm}, v[{M}:{M+1}] offset:{ldsoff}")
        redrows(acc, ldsoff)

    def score(u):
        red16(vT)
        A(f"  v_max_f32 v{vMr}, v{vMr}, v{vT}")
        A(f"  ds_write_b32 v{vSc}, v{vT} offset:{4*u}")
        if u:
            A(f"  v_add_u32 v{vSc}, 128, v{vSc}")

    def scbase():
        A(f"  s_lshl_b32 {sT1}, {sW}, 13")
        A(f"  s_add_u32 {sT1}, {sT1}, {L_SC}")
        A(f"  v_lshrrev_b32 v{vSc}, 2, v0")
        A(f"  v_lshl_add_u32 v{vSc}, v{vSc}, 3, {sT1}")

    def probs():
        A(f"  v_fma_f32 v{vS0}, v{vS0}, {sC}, -v{vM}")
        A(f"  v_fma_f32 v{vS0+1}, v{vS0+1}, {sC}, -v{vM}")
        A(f"  v_exp_f32 v{vS0}, v{vS0}")
        A(f"  v_exp_f32 v{vS0+1}, v{vS0+1}")
        A(f"  v_cvt_pk_bf16_f32 v{vPl}, v{vS0}, 0")
        A(f"  v_add_f32 v{vLs}, v{vLs}, v{vS0}")
        A(f"  v_cvt_pk_bf16_f32 v{vP1l}, v{vS0+1}, 0")
        A(f"  v_lshlrev_b32 v{vPh}, 16, v{vPl}")
        A(f"  v_add_f32 v{vLs}, v{vLs}, v{vS0+1}")
        A(f"  v_lshlrev_b32 v{vP1h}, 16, v{vP1l}")

    A(HEADER.rstrip().replace("@LAUNCH@", f"; @launch grid=(256,1,1) block=(320,1,1) lds={LDS_BYTES}"))
    A(DOC.strip("\n"))
    A('.amdgcn_target "amdgcn-amd-amdhsa--gfx950"')
    A(".text")
    A(f".globl {KN}")
    A(".p2align 8")
    A(f".type {KN},@function")
    A(f"{KN}:")
    A("  s_cmp_ge_u32 s2, 256")
    A("  s_cbranch_scc1 L_end")
    if stamps:
        A("  s_memrealtime s[98:99]")
    A("  s_load_dwordx16 s[4:19], s[0:1], 0")
    A("  s_load_dwordx8 s[20:27], s[0:1], 64")
    A("  s_load_dwordx2 s[28:29], s[0:1], 96")
    A("  v_lshrrev_b32 v1, 6, v0")
    A("  v_and_b32 v0, 63, v0")
    A(f"  v_readfirstlane_b32 {sW}, v1")
    A(f"  s_lshr_b32 {sH}, s2, 3")
    A(f"  s_and_b32 {sS}, s2, 7")
    A(f"  s_and_b32 {sT0}, {sH}, 7")
    A(f"  s_cmp_eq_u32 {sT0}, {sS}")
    A(f"  s_cselect_b32 {sAA}, 1, 0")
    A(f"  v_lshlrev_b32 v{vL16}, 4, v0")
    if stamps:
        A("  v_mov_b32 v252, 0")
    A(f"  s_cmp_eq_u32 {sW}, 4")
    A("  s_cbranch_scc1 L_helper")
    A(f"  s_mov_b32 {sC}, 0x3e0293ee")
    A("  v_lshrrev_b32 v4, 4, v0")
    A("  v_and_b32 v5, 15, v0")
    for i in list(range(32, 64, 4)) + [68, 72]:
        A(f"  s_mov_b32 s{i+3}, 0x20000")
    A("  s_mov_b32 s34, 0x800000\n  s_mov_b32 s38, 0x800000")
    A("  s_mov_b32 s42, 0x800000\n  s_mov_b32 s46, 0x800000\n  s_mov_b32 s50, 0x800000\n  s_mov_b32 s54, 0x800000")
    A("  s_mov_b32 s58, 0x20000\n  s_mov_b32 s62, 0x20000")
    A(f"  s_mov_b32 s70, 2048\n  s_mov_b32 s74, 2048")
    A(f"  v_lshlrev_b32 v{vWq}, 13, v4")
    A(f"  v_lshl_add_u32 v{vWq}, v5, 4, v{vWq}")
    A(f"  v_and_b32 v6, 7, v5")
    A(f"  v_lshl_add_u32 v6, v6, 2, v4")
    A(f"  s_lshl_b32 {sT0}, {sW}, 5")
    A(f"  v_add_u32 v6, {sT0}, v6")
    A(f"  v_lshlrev_b32 v{vCo}, 1, v6")
    A(f"  s_lshl_b32 {sT1}, {sS}, 7")
    A(f"  s_add_u32 {sT0}, {sT0}, {sT1}")
    A(f"  s_lshl_b32 {sT0}, {sT0}, 13")
    A(f"  s_lshl_b32 {sT1}, {sH}, 8")
    A(f"  s_add_u32 {sT0}, {sT0}, {sT1}")
    A(f"  s_lshl_b32 {sT1}, {sS}, 8")
    A("  s_waitcnt lgkmcnt(0)")
    A("  s_mov_b32 s40, s20\n  s_mov_b32 s41, s21\n  s_mov_b32 s68, s14\n  s_mov_b32 s69, s15")
    A("  s_mov_b32 s72, s4\n  s_mov_b32 s73, s5\n  s_mov_b32 s44, s10\n  s_mov_b32 s45, s11")
    stamp(12)
    if tab:
        A(f"  v_lshlrev_b32 v{vTab}, 2, v0")
        A(f"  v_add_u32 v{vTab}, 0x30000000, v{vTab}")
        A(f"  global_load_dword v{vTab}, v{vTab}, s[28:29]")
    A(f"  buffer_load_ushort v{vPl}, v{vCo}, {XB}, {sT1} offen {pol}")
    A(f"  buffer_load_ushort v{vX+4}, v{vCo}, {XA}, {sT1} offen {pol}")
    SST = 32 * 4096 * (1 if ust > 1 else 2)
    items = [(wl(WQB, vWQB, vWq, sT0, 32768), j) for j in range(8)] + [(wl(WQA, vWQA, vWq, sT0, 32768), j) for j in range(8)]
    for b in range(NS):
        items += [(tk(KB, b, sOff), j) for j in range(8)]

    def issue(u):
        f, j = items[u]
        if u >= 16 and j == 0:
            A(f"  v_readlane_b32 {sOff}, v{vList}, {(u-16)//8}")
        f(j)

    for u in range(cap0):
        issue(u)
    A(f"  s_lshl_b32 s30, {sH}, 23")
    A(f"  s_add_u32 s32, s16, s30\n  s_addc_u32 s33, s17, 0\n  s_add_u32 s36, s18, s30\n  s_addc_u32 s37, s19, 0")
    A(f"  s_lshl_b32 {sIdx}, {sS}, 2")
    A(f"  s_add_u32 {sIdx}, {sIdx}, {sW}")
    A(f"  v_add_u32 v{vL16b}, 4096, v{vL16}")
    if tab:
        A(f"  s_waitcnt vmcnt({cap0+2})")
    A(f"  v_bfe_i32 v{vX}, v0, 4, 1")
    A(f"  v_and_b32 v{vX}, {col('k0')}, v{vX}")
    A(f"  v_bfe_i32 v{vX+1}, v0, 5, 1")
    A(f"  v_and_b32 v{vX+1}, {col('k1')}, v{vX+1}")
    A(f"  v_xor_b32 v{vX}, v{vX}, v{vX+1}")
    A(f"  v_lshl_add_u32 v{vKV}, v5, 4, v{vX}")
    A(f"  s_lshl_b32 s30, s2, 7")
    A(f"  s_lshl_b32 s31, {sW}, 5")
    A(f"  s_or_b32 s30, s30, s31")
    A(f"  v_and_b32 v{vX}, 31, v0")
    A(f"  v_or_b32 v{vX}, s30, v{vX}")
    xormap(vList, vX)
    E2 = E - E1
    for t, e0 in ((vP3a, 0), (vP3b, 64)):
        if e0 >= E:
            break
        A(f"  s_and_b32 s31, {sH}, 7")
        A(f"  s_lshl_b32 s31, s31, 2")
        A(f"  v_add_u32 v{vX}, {e0}, v0")
        A(f"  v_mul_u32_u24 v{vX+2}, 2341, v{vX}")
        A(f"  v_lshrrev_b32 v{vX+2}, 16, v{vX+2}")
        A(f"  v_mul_u32_u24 v{vX+1}, 28, v{vX+2}")
        A(f"  v_sub_u32 v{vX+1}, v{vX}, v{vX+1}")
        A(f"  v_add_u32 v{vX+2}, {NT}, v{vX+2}")
        A(f"  v_cmp_le_u32 vcc, s31, v{vX+1}")
        A(f"  v_cndmask_b32 v{vX+3}, 0, 4, vcc")
        A(f"  v_add_u32 v{vX+1}, v{vX+1}, v{vX+3}")
        A(f"  v_lshl_add_u32 v{vX+1}, v{vX+1}, 5, v{vX+2}")
        A(f"  v_cmp_gt_u32 vcc, {E2}, v{vX}")
        A(f"  v_subrev_u32 v{vX}, {E2}, v{vX}")
        A(f"  v_and_b32 v{vX+2}, 3, v{vX}")
        A(f"  v_add_u32 v{vX+2}, s31, v{vX+2}")
        A(f"  v_lshrrev_b32 v{vX+3}, 2, v{vX}")
        A(f"  v_add_u32 v{vX+3}, {NTA}, v{vX+3}")
        A(f"  v_lshl_add_u32 v{vX+2}, v{vX+2}, 5, v{vX+3}")
        A(f"  v_cndmask_b32 v{vX}, v{vX+2}, v{vX+1}, vcc")
        A(f"  s_lshl_b32 s31, {sH}, 10")
        A(f"  v_and_b32 v{vX}, 0x3ff, v{vX}")
        A(f"  v_or_b32 v{vX}, s31, v{vX}")
        xormap(t, vX)
    A(f"  s_lshr_b32 {sT1}, {sH}, 3")
    A(f"  s_lshl_b32 {sT1}, {sT1}, 23")
    A(f"  s_and_b32 s30, {sH}, 7")
    A(f"  s_lshl_b32 s30, s30, 17")
    A(f"  s_add_u32 {sT1}, {sT1}, s30")
    A(f"  s_add_u32 {sT1}, {sT1}, {28672*256}")
    A("  s_mov_b32 s48, s22\n  s_mov_b32 s49, s23\n  s_mov_b32 s52, s12\n  s_mov_b32 s53, s13")
    A(f"  s_add_u32 s56, s6, {sT1}\n  s_addc_u32 s57, s7, 0\n  s_add_u32 s60, s8, {sT1}\n  s_addc_u32 s61, s9, 0")
    A(f"  s_lshl_b32 s30, {sH}, 15")
    A(f"  s_add_u32 s30, s30, {W_CNT}")
    A(f"  s_add_u32 s82, s28, s30\n  s_addc_u32 s83, s29, 0")
    A(f"  v_lshlrev_b32 v{vWo}, 11, v4")
    A(f"  v_lshl_add_u32 v{vWo}, v5, 4, v{vWo}")
    A(f"  v_lshlrev_b32 v{vLo}, 5, v5")
    A(f"  v_lshl_add_u32 v{vLo}, v4, 3, v{vLo}")
    A(f"  s_mul_i32 {sT1}, {sW}, {PS}")
    A(f"  v_add_u32 v{vLo}, {sT1}, v{vLo}")
    A(f"  s_add_u32 {sT1}, {sT1}, 512")
    A(f"  v_mov_b32 v{vLm}, {sT1}")
    A(f"  v_lshlrev_b32 v{vX+5}, 4, v5")
    if tab:
        for j in range(1, 8):
            A(f"  v_readlane_b32 s{3+j}, v{vTab}, {20+j}")
    zero(vAcc)
    U0, U1 = slot(0), slot(0) + 16
    sNx = sPend

    def kproc(b):
        def f(j):
            dots(slot(b) + 4 * j, vQ, j)
            if j & 3 == 3:
                score(j >> 2)
        return f

    def pre_b2():
        A(f"  s_lshl_b32 {sT0}, {sH}, 7")
        A(f"  s_lshl_b32 {sT1}, {sW}, 5")
        A(f"  s_add_u32 {sT0}, {sT0}, {sT1}")
        A(f"  s_lshl_b32 {sT0}, {sT0}, 11")
        A(f"  s_lshl_b32 {sT1}, {sS}, 8")
        A(f"  s_add_u32 {sT0}, {sT0}, {sT1}")
        zero(vAcc)
        A(f"  v_mov_b32 v{vMr}, 0xff7fffff")
        A(f"  v_mov_b32 v{vM}, 0xff7fffff")
        A(f"  v_mov_b32 v{vLs}, 0")
        scbase()
        A(f"  s_mov_b32 {sI}, {NS+1}")
        A(f"  s_cmp_eq_u32 {sAA}, 1")
        A(f"  s_cselect_b32 {sIt}, {NTA}, {NT}")

    def b2():
        stamp(2)
        A("  s_waitcnt lgkmcnt(0)")
        A("  s_barrier")
        A(f"  ds_read_b128 v[{vQ}:{vQ+3}], v{vX+5} offset:{L_Q}")

    NB = len(items)
    if uB:
        items += [(tk(KB, 0, sOff), j) for j in range(cap)]
    nxt = cap0
    done = 16
    for u in range(NB):
        if not uB and u >= 16 and nxt >= len(items):
            break
        w = f"  s_waitcnt vmcnt({nxt-u-1})"
        loads = []
        while nxt < min(len(items), u + 1 + cap0) and (nxt < NB or done > 16 + nxt - NB):
            loads.append(lambda k=nxt: issue(k))
            nxt += 1
        wait_issue(w, loads)
        if u == 0:
            stamp(13)
            A(f"  v_lshlrev_b32 v{vPh}, 16, v{vPl}")
        if u < 8:
            pv(vAcc, vWQB + 4 * u, vPl, vPh, [u])
        elif u < 16:
            pv(vAcc, vWQA + 4 * (u - 8), vPl, vPh, [u - 8])
        if u == 7:
            redrows(vAcc, L_QBP)
            stamp(1)
            A("  s_waitcnt lgkmcnt(0)")
            A("  s_barrier")
            stamp(14)
            zero(vAcc)
            A(f"  v_mov_b32 v{vPl}, v{vX+4}")
            A(f"  v_lshlrev_b32 v{vPh}, 16, v{vX+4}")
        if u == 15:
            redrows(vAcc, L_QAP)
            stamp(15)
        if u == 16:
            pre_b2()
        if uB and u == uB:
            b2()
        if uB and u > uB:
            if u == uB + 1:
                A("  s_waitcnt lgkmcnt(0)")
                stamp(3)
            left = NB - 1 - u
            k = u + 1 - done if left == 0 else min(u + 1 - done, 3)
            for _ in range(k):
                kproc((done - 16) // 8)((done - 16) % 8)
                done += 1
    if uB:
        assert done == NB
        while nxt < len(items):
            issue(nxt)
            nxt += 1
    else:
        A(f"  v_readlane_b32 {sOff}, v{vList}, {NS}")
        b2()
        A("  s_waitcnt lgkmcnt(0)")
        stamp(3)
        A(f"  s_waitcnt vmcnt({(NS-1)*8})")
        for j in range(8):
            kproc(0)(j)
            if j < cap:
                tk(KB, 0, sOff)(j)
        for b in range(1, NS):
            A(f"  s_waitcnt vmcnt({(NS-1-b)*8+cap})")
            for j in range(8):
                kproc(b)(j)
    stamp(4)
    def pool():
        A(f"  v_readlane_b32 {sNx}, v{vP3a}, s31")
        if E > 64:
            A(f"  v_readlane_b32 s30, v{vP3b}, s31")
            A(f"  s_cmp_ge_u32 s31, 64")
            A(f"  s_cselect_b32 {sNx}, s30, {sNx}")

    A(".p2align 6")
    A("L_loop:")
    A(f"  s_cmp_ge_u32 {sI}, {sIt}")
    A(f"  s_cbranch_scc1 {'L_dyn0' if D else 'L_p1d'}")
    A(f"  v_readlane_b32 {sNx}, v{vList}, {sI}")
    A(f"  s_add_u32 {sI}, {sI}, 1")
    if D:
        A(f"  s_cmp_lg_u32 {sI}, {NT}")
        A("  s_cbranch_scc1 L_iter")
        A("L_take:")
        A(f"  s_mov_b32 {sTk}, 1")
        A(f"  s_atomic_add {sTk}, {CNTP}, 0 glc")
        A("L_iter:")
    stream_iter(tk(KB, 0, sOff), tk(KB, 0, sNx), kproc(0))
    advance()
    A("  s_branch L_loop")
    if D:
        A("L_dyn0:")
        A(f"  s_cmp_eq_u32 {sAA}, 1")
        A("  s_cbranch_scc1 L_p1d")
        A("  s_waitcnt lgkmcnt(0)")
        A(f"  s_add_u32 s31, {sTk}, 1")
        A(f"  s_cmp_ge_u32 s31, {D}")
        A("  s_cbranch_scc1 L_p1d")
        pool()
        A(f"  s_mov_b32 m0, {sI}")
        A(f"  s_add_u32 {sI}, {sI}, 1")
        A(f"  s_mov_b32 {sIt}, {sI}")
        A(f"  v_writelane_b32 v{vList}, {sNx}, m0")
        A(f"  s_mov_b32 {sTk}, 0x10000")
        A(f"  s_cmp_ge_u32 {sI}, {NMAX}")
        A("  s_cbranch_scc1 L_iter")
        A("  s_branch L_take")
    A("L_p1d:")
    stamp(9)
    A(f"  v_readlane_b32 {sNx}, v{vList}, 0")
    A(f"  s_mov_b32 {sI}, 1")
    A(f"  s_lshl_b32 s30, {sW}, 13")
    A(f"  s_mov_b32 s15, 0x20000")
    A(f"  s_cmp_eq_u32 {sAA}, 1")
    A("  s_cselect_b32 s12, s56, s36")
    A("  s_cselect_b32 s13, s57, s37")
    A("  s_cselect_b32 s14, s58, s38")
    prep_next("s30", sNx, True)
    stream_iter(tk(KB, 0, sOff), tkn, kproc(0))
    advance()
    dpp("v_max_f32", vMr, vMr, vMr, "row_ror:4")
    scbase()
    dpp("v_max_f32", vMr, vMr, vMr, "row_ror:8")
    A(f"  v_mul_f32 v{vM}, {sC}, v{vMr}")
    A(f"  s_cmp_eq_u32 {sAA}, 1")
    A("  s_cbranch_scc1 L_event")

    def vproc(j):
        if j == 0:
            A("  s_waitcnt lgkmcnt(0)")
            probs()
        pv(vAcc, U0 + 4 * j, vPl if j < 4 else vP1l, vPh if j < 4 else vP1h, [KVL[j & 3]])

    capsV = [int(ch) for ch in str(capV)] if capV else caps
    capsF = [min(capF, cap + 1 + j, cap + 7 - j) for j in range(8)]

    def p2top(lab):
        A(f"{lab}:")
        A(f"  ds_read_b64 v[{vS0}:{vS0+1}], v{vSc}")
        A(f"  v_add_u32 v{vSc}, 128, v{vSc}")
        A(f"  s_cmp_ge_u32 {sI}, {sIt}")
        A("  s_cbranch_scc1 L_p2last")
        A(f"  v_readlane_b32 {sNx}, v{vList}, {sI}")
        A(f"  s_add_u32 {sI}, {sI}, 1")

    def vproc_peek(j):
        vproc(j)
        if j == 0:
            A(f"  s_cmp_ge_i32 {sTk}, {P3 - thr}")
            A(f"  s_cselect_b32 s23, 1, 0")
            A(f"  s_add_u32 s31, {sI}, {pk}")
            A(f"  s_cmp_lt_u32 s31, {sIt}")
            A("  s_cbranch_scc1 L_nopeek")
            A(f"  s_mov_b32 {sTk}, 0")
            A(f"  s_atomic_add {sTk}, {CNTP}, 0x100 glc")
            A("L_nopeek:")

    if pk:
        A("L_p2:")
        A(f"  s_mov_b32 {sTk}, -1")
    A(".p2align 6")
    p2top("L_p2s" if pk else "L_p2")
    stream_iter(tk(VB, 0, sOff), tk(VB, 0, sNx), vproc_peek if pk else vproc, capsV)
    advance()
    if pk:
        A("  s_cmp_eq_u32 s23, 0")
        A("  s_cbranch_scc1 L_p2s")
        p2top("L_p2f")
        stream_iter(tk(VB, 0, sOff), tk(VB, 0, sNx), vproc, capsF)
        advance()
        A("  s_branch L_p2f")
    else:
        A("  s_branch L_p2")

    def p3tile(lab):
        A("  s_waitcnt lgkmcnt(0)")
        A(f"  s_add_u32 {sT1}, {sTk}, 1")
        A(f"  s_cmp_ge_u32 {sT1}, {P3}")
        A(f"  s_cbranch_scc1 {lab}")
        A(f"  s_lshr_b32 s31, {sT1}, 1")
        if D:
            A(f"  s_add_u32 s31, s31, {D}")
        pool()
        A(f"  s_bitcmp1_b32 {sT1}, 0")
        A(f"  s_cselect_b32 s31, {hx(TJ[4])}, 0")
        A(f"  s_xor_b32 {sNx}, {sNx}, s31")
        if fx:
            A(f"  s_cmp_ge_u32 {sT1}, {P3 - fx}")
            A(f"  s_cbranch_scc1 {lab}_f")

    def take():
        A(f"  s_mov_b32 {sTk}, 1")
        A(f"  s_atomic_add {sTk}, {CNTP}, 0x100 glc")

    def fproc(j, r=U0):
        if j < 4:
            dots(r + 4 * j, vQ, j)
            if j == 3:
                red16(vT)
                softmax(vT, vM, vLs, vAcc, vPl, vPh)
        else:
            pv(vAcc, r + 4 * j, vPl, vPh, [KVL[j & 3]])

    def final_head(cur, proc):
        for k in range(LT, 8):
            cur(k)
        for k in range(8):
            ldx(KB if k < 4 else VB, slot(3) + 4 * k, sNx, TJ[k & 3])
        for j in range(JT, 8):
            if j > JT:
                A(f"  s_waitcnt vmcnt({16-j-1})")
            proc(j)

    def final_tile():
        issued = 8
        for k in range(8):
            w = f"  s_waitcnt vmcnt({issued-k-1})"
            loads = []
            while issued - k - 1 < cap and issued - 8 < min(nC, cap):
                loads.append(lambda q=issued - 8: wostream(q))
                issued += 1
            wait_issue(w, loads)
            fproc(k, slot(3))

    NWO = 16 - 8 * early
    nC = min(nC, NWO)
    wostream = lambda j: (wl(WOA, slot(2), vWo, sT0, 8192)(j) if j + 8 * early < 8 else wl(WOB, slot(1), vWo, sT0, 8192)(j + 8 * early - 8))
    capsP = [min(capP, cap + 1 + j, cap + 7 - j) for j in range(8)] if capP else caps
    JT = min(j for j in range(8) if j + 1 + capsP[j] > 8)
    LT = max([cap] + [j + 1 + capsP[j] for j in range(JT)])

    def split_iter(cur, proc, lab):
        assert steps(0, JT, cap, cur, None, proc, caps=capsP) == LT
        A(f"  s_waitcnt vmcnt({LT-JT-1})")
        p3tile(lab)
        if tke:
            take()
        steps(JT, 8, LT, cur, ft(sNx), proc, first_wait=False, caps=capsP)
        A(f"  s_mov_b32 {sOff}, {sNx}")

    def tail_iter(cur, proc):
        steps(JT, 8, LT, cur, wostream, proc, nmax=nC, first_wait=False, caps=capsP)

    A("L_p2last:")
    A("  s_waitcnt lgkmcnt(0)")
    stamp(10)
    vproc2 = lambda j: pv(vAcc, U0 + 4 * j, vPl if j < 4 else vP1l, vPh if j < 4 else vP1h, [KVL[j & 3]])
    woa = wl(WOA, slot(2), vWo, sT0, 8192)
    wob = wl(WOB, slot(1), vWo, sT0, 8192)
    if early:
        probs()
        stream_iter(tk(VB, 0, sOff), woa, vproc2)
        last_cur, last_proc = woa, (lambda j: None)
        if early == 2:
            stream_iter(woa, wob, last_proc)
            last_cur = wob
        take()
    else:
        take()
        probs()
        last_cur, last_proc = tk(VB, 0, sOff), vproc2
    split_iter(last_cur, last_proc, "L_tail0")
    A("L_loop3:")
    if not tke:
        take()
    split_iter(ft(sOff), fproc, "L_drain")
    A("  s_branch L_loop3")

    A("L_tail0:")
    stamp(6)
    tail_iter(last_cur, last_proc)
    A("  s_branch L_fin")
    A("L_drain:")
    stamp(6)
    tail_iter(ft(sOff), fproc)
    if fx:
        A("  s_branch L_fin")
        A("L_tail0_f:")
        stamp(6)
        final_head(last_cur, last_proc)
        A("  s_branch L_final")
        A("L_drain_f:")
        stamp(6)
        final_head(ft(sOff), fproc)
        A("L_final:")
        final_tile()
    A("L_fin:")
    nc = min(nC, cap)
    if wo == "C":
        for j in range(nc, NWO):
            wostream(j)
    elif wo == "CD":
        for j in range(nc, min(nF, NWO)):
            wostream(j)
        nc = max(nc, min(nF, NWO))
    fin(vAcc, vM, vLs, L_BPART)
    stamp(7)
    A("  s_waitcnt lgkmcnt(0)")
    A("  s_barrier")
    A(f"  ds_read_u16 v{vPl}, v{vCo} offset:{L_OA}")
    if "D" in wo:
        A("  s_barrier")
        for j in range(nc, NWO):
            wostream(j)
    zero(vAcc)
    A(f"  s_waitcnt vmcnt(8) lgkmcnt(0)")
    A(f"  v_lshlrev_b32 v{vPh}, 16, v{vPl}")
    pv(vAcc, slot(2), vPl, vPh, range(8))
    redrows(vAcc, L_O2A)
    zero(vAcc + 2, 6)
    A("  s_waitcnt lgkmcnt(0)")
    A("  s_barrier")
    A(f"  ds_read_u16 v{vPl}, v{vCo} offset:{L_OB}")
    zero(vAcc, 2)
    A("  s_waitcnt vmcnt(0) lgkmcnt(0)")
    A(f"  v_lshlrev_b32 v{vPh}, 16, v{vPl}")
    pv(vAcc, slot(1), vPl, vPh, range(8))
    redrows(vAcc, L_O2B)
    stamp(8)
    if stamps:
        A(f"  s_cmp_lg_u32 {sW}, 0")
        A("  s_cbranch_scc1 L_nost0")
        A(f"  s_lshl_b32 {sT0}, s2, 8")
        A(f"  s_add_u32 {sT0}, {sT0}, {STAMP1}")
        A(f"  v_lshl_add_u32 v4, v0, 2, {sT0}")
        A("  s_mov_b64 exec, 0xffff")
        A("  global_store_dword v4, v252, s[28:29]")
        A("  s_mov_b64 exec, -1")
        A("L_nost0:")
    A("  s_waitcnt lgkmcnt(0)")
    A("  s_barrier")
    A("  s_endpgm")

    capsA = [min(capA, cap + 1 + j, cap + 7 - j) for j in range(8)]

    def akproc(j):
        for m in range(4):
            for i in range(8):
                d = vSA + 4 * i + (j & 3)
                A(f"  v_dot2_f32_bf16 v{d}, v{U0+4*j+m}, v{vQA+4*i+m}, {'0' if m == 0 else 'v%d' % d}")
        if j & 3 == 3:
            for a, b, bank in ((0, 0, 0x3), (1, 2, 0x3), (0, 1, 0xc), (1, 3, 0xc)):
                for i in range(8):
                    dpp("v_add_f32", vRA + 2 * i + a, vSA + 4 * i + b, vSA + 4 * i + b, "row_ror:8", bank)
            for a, bank in ((0, 0x5), (1, 0xa)):
                for i in range(8):
                    dpp("v_add_f32", vTA + i, vRA + 2 * i + a, vRA + 2 * i + a, "row_half_mirror", bank)
            for ctrl in ("quad_perm:[1,0,3,2]", "quad_perm:[2,3,0,1]"):
                for i in range(8):
                    dpp("v_add_f32", vTA + i, vTA + i, vTA + i, ctrl)
            for i in range(8):
                A(f"  v_max_f32 v{vMrA+i}, v{vMrA+i}, v{vTA+i}")
                A(f"  ds_write_b32 v{vX+4}, v{vTA+i} offset:{4096+128*i+4*(j>>2)}")

    def avproc(j):
        if j == 0:
            A("  s_waitcnt lgkmcnt(0)")
            for i in range(16):
                A(f"  v_fma_f32 v{vSA+i}, v{vSA+i}, {sC}, -v{vMA+i//2}")
            for i in range(16):
                A(f"  v_exp_f32 v{vSA+i}, v{vSA+i}")
            for i in range(16):
                A(f"  v_cvt_pk_bf16_f32 v{vCfA+2*i}, v{vSA+i}, 0")
                A(f"  v_add_f32 v{vLA+i//2}, v{vLA+i//2}, v{vSA+i}")
            for i in range(16):
                A(f"  v_lshlrev_b32 v{vCfA+2*i+1}, 16, v{vCfA+2*i}")
        for i in range(8):
            c = vCfA + 4 * i + 2 * (j >> 2)
            pv(vAccA + 8 * i, U0 + 4 * j, c, c + 1, [KVL[j & 3]])

    A("L_event:")
    A("  s_barrier")
    for i in range(8):
        A(f"  ds_read_b128 v[{vQA+4*i}:{vQA+4*i+3}], v{vX+5} offset:{L_QA+256*i}")
    for i in range(8):
        A(f"  v_mov_b32 v{vMrA+i}, 0xff7fffff")
        A(f"  v_mov_b32 v{vLA+i}, 0")
    A(f"  v_mov_b32 v{vX+4}, v{vSc}")
    A("  s_mov_b32 s31, 4")
    A("  s_waitcnt lgkmcnt(0)")
    A("L_ak:")
    A("  s_sub_u32 s31, s31, 1")
    A(f"  s_add_u32 {sNx}, {sOff}, 32768")
    A("  s_cmp_eq_u32 s31, 0")
    A("  s_cselect_b32 s12, s60, s56")
    A("  s_cselect_b32 s13, s61, s57")
    A(f"  s_cselect_b32 {sNx}, s30, {sNx}")
    stream_iter(tka(KA, sOff), tka(NXT, sNx), akproc, capsA)
    A(f"  s_mov_b32 {sOff}, {sNx}")
    A(f"  v_add_u32 v{vX+4}, 1024, v{vX+4}")
    A("  s_cbranch_scc0 L_ak")
    for i in range(8):
        dpp("v_max_f32", vMrA + i, vMrA + i, vMrA + i, "row_ror:4")
    for i in range(8):
        dpp("v_max_f32", vMrA + i, vMrA + i, vMrA + i, "row_ror:8")
    for i in range(8):
        A(f"  v_mul_f32 v{vMA+i}, {sC}, v{vMrA+i}")
    zero(vAccA, 64)
    A(f"  v_mov_b32 v{vX+4}, v{vSc}")
    A(f"  v_readlane_b32 s30, v{vList}, 0")
    A("  s_mov_b32 s31, 4")
    A("L_av:")
    for i in range(8):
        A(f"  ds_read_b64 v[{vSA+2*i}:{vSA+2*i+1}], v{vX+4} offset:{4096+128*i}")
    A("  s_sub_u32 s31, s31, 1")
    A(f"  s_add_u32 {sNx}, {sOff}, 32768")
    A("  s_cmp_eq_u32 s31, 0")
    A("  s_cselect_b32 s12, s36, s60")
    A("  s_cselect_b32 s13, s37, s61")
    A("  s_cselect_b32 s14, s38, s62")
    prep_next(sNx, "s30", False)
    stream_iter(tka(VA, sOff), tkn, avproc, capsA)
    advance()
    A(f"  v_add_u32 v{vX+4}, 1024, v{vX+4}")
    A("  s_cmp_eq_u32 s31, 0")
    A("  s_cbranch_scc0 L_av")
    for i in range(8):
        fin(vAccA + 8 * i, vMA + i, vLA + i, L_APART + RS * i)
    A("  s_waitcnt lgkmcnt(0)")
    A("  s_barrier")
    stamp(5)
    A("  s_branch L_p2")

    hL8, hZ, hA = 1, 2, 3
    hD = 8
    hE = 40
    hW, hL, hO, h16 = 58, 66, 68, 72
    sWG = "s30"

    def guard(r, n):
        for i in range(n):
            A(f"  v_min_u32 v{r+i}, -2, v{r+i}")

    def anysent(r, n, lab):
        A(f"  v_max3_u32 v{hW}, v{r}, v{r+1}, v{r+2}")
        i = 3
        while i < n:
            if i + 1 < n:
                A(f"  v_max3_u32 v{hW}, v{hW}, v{r+i}, v{r+i+1}")
                i += 2
            else:
                A(f"  v_max_u32 v{hW}, v{hW}, v{r+i}")
                i += 1
        A(f"  v_cmp_eq_u32 vcc, -1, v{hW}")
        A(f"  s_sub_u32 {sSpin}, {sSpin}, 1")
        A(f"  s_cbranch_scc1 {lab}_ok")
        A(f"  s_cbranch_vccnz {lab}")
        A(f"{lab}_ok:")

    def sum4(ldsoff, wsoff):
        for v in range(4):
            A(f"  ds_read_b64 v[{hD+2*v}:{hD+2*v+1}], v{hL8} offset:{ldsoff+v*PS}")
        A("  s_waitcnt lgkmcnt(0)")
        A(f"  v_pk_add_f32 v[{hD}:{hD+1}], v[{hD}:{hD+1}], v[{hD+2}:{hD+3}]")
        A(f"  v_pk_add_f32 v[{hD+4}:{hD+5}], v[{hD+4}:{hD+5}], v[{hD+6}:{hD+7}]")
        A(f"  v_pk_add_f32 v[{hD}:{hD+1}], v[{hD}:{hD+1}], v[{hD+4}:{hD+5}]")
        guard(hD, 2)
        A(f"  buffer_store_dwordx2 v[{hD}:{hD+1}], v{hL8}, {WS}, {sWG} offen offset:{wsoff} sc1")

    def qgather(lab, sbase, ldsaddr, ldsoff):
        A(f"  s_mov_b32 {sSpin}, {SPIN}")
        A(f"{lab}:")
        for p in range(8):
            if p:
                A(f"  s_add_u32 {sT2}, {sbase}, {p*WG_STRIDE}")
            A(f"  buffer_load_dwordx2 v[{hD+2*p}:{hD+2*p+1}], v{hL8}, {WS}, {sT2 if p else sbase} offen sc1")
        A("  s_waitcnt vmcnt(0)")
        anysent(hD, 16, lab)
        for st in (1, 2, 4):
            for p in range(0, 8, 2 * st):
                A(f"  v_pk_add_f32 v[{hD+2*p}:{hD+2*p+1}], v[{hD+2*p}:{hD+2*p+1}], v[{hD+2*(p+st)}:{hD+2*(p+st)+1}]")
        A(f"  v_cvt_pk_bf16_f32 v{hD}, v{hD}, v{hD+1}")
        A(f"  ds_write_b32 v{ldsaddr}, v{hD} offset:{ldsoff}")

    def merge(n, norm, o, e, st):
        M = hO + 2
        A(f"  v_max3_f32 v{M}, v{e}, v{e+st}, v{e+2*st}")
        i = 3
        while i < n:
            if i + 1 < n:
                A(f"  v_max3_f32 v{M}, v{M}, v{e+st*i}, v{e+st*(i+1)}")
                i += 2
            else:
                A(f"  v_max_f32 v{M}, v{M}, v{e+st*i}")
                i += 1
        for p in range(n):
            A(f"  v_sub_f32 v{hW+p}, v{e+st*p}, v{M}")
        for p in range(n):
            A(f"  v_exp_f32 v{hW+p}, v{hW+p}")
        A(f"  v_mul_f32 v{M+1}, v{hW}, v{e+1}")
        A(f"  v_mul_f32 v{hO}, v{hW}, v{o}")
        A(f"  v_mul_f32 v{hO+1}, v{hW}, v{o+1}")
        for p in range(1, n):
            A(f"  v_fmac_f32 v{M+1}, v{hW+p}, v{e+st*p+1}")
            A(f"  v_fmac_f32 v{hO}, v{hW+p}, v{o+st*p}")
            A(f"  v_fmac_f32 v{hO+1}, v{hW+p}, v{o+st*p+1}")
        if norm:
            A(f"  v_rcp_f32 v{hL}, v{M+1}")
            A(f"  v_mul_f32 v{hO}, v{hO}, v{hL}")
            A(f"  v_mul_f32 v{hO+1}, v{hO+1}, v{hL}")
            A(f"  v_cvt_pk_bf16_f32 v{hO}, v{hO}, v{hO+1}")

    def combine4(a8, az, ldsoff, so, wsoff):
        for v in range(4):
            A(f"  ds_read_b64 v[{hE+2*v}:{hE+2*v+1}], v{az} offset:{ldsoff+v*PS+512}")
        for v in range(4):
            A(f"  ds_read_b64 v[{hD+2*v}:{hD+2*v+1}], v{a8} offset:{ldsoff+v*PS}")
        A("  s_waitcnt lgkmcnt(0)")
        merge(4, False, hD, hE, 2)
        guard(hO, 4)
        A(f"  buffer_store_dwordx4 v[{hO}:{hO+3}], v{h16}, {WS}, {so} offen offset:{wsoff} sc1")

    def combine8(lab, sbase, stride, ldsoff, bar=False):
        def polls():
            for p in range(8):
                if p:
                    A(f"  s_add_u32 {sT2}, {sbase}, {p*stride}")
                so = sT2 if p else sbase
                A(f"  buffer_load_dwordx4 v[{hD+4*p}:{hD+4*p+3}], v{h16}, {WS}, {so} offen sc1")
        A(f"  s_mov_b32 {sSpin}, {SPIN}")
        if bar:
            polls()
            A("  s_barrier")
            A(f"  s_branch {lab}_w")
        A(f"{lab}:")
        polls()
        A(f"{lab}_w:")
        A("  s_waitcnt vmcnt(0)")
        anysent(hD, 32, lab)
        merge(8, True, hD, hD + 2, 4)
        A(f"  ds_write_b32 v{hA}, v{hO} offset:{ldsoff}")

    A("L_helper:")
    if prio:
        A(f"  s_setprio {prio}")
    A(f"  s_lshl_b32 {sWG}, s2, 12")
    for i in range(4):
        A(f"  v_mov_b32 v{hD+i}, -1")
    A(f"  s_mov_b32 s66, {WS_SIZE}\n  s_mov_b32 s67, 0x20000\n  s_mov_b32 s78, 4096\n  s_mov_b32 s79, 0x20000")
    A("  s_waitcnt lgkmcnt(0)")
    A("  s_mov_b32 s64, s28\n  s_mov_b32 s65, s29")
    for j in range(4):
        A(f"  buffer_store_dwordx4 v[{hD}:{hD+3}], v{vL16}, {WS}, {sWG} offen offset:{j*1024} sc1")
    A("  s_mov_b32 s76, s24\n  s_mov_b32 s77, s25")
    A(f"  s_lshl_b32 {sT0}, {sH}, 3")
    A(f"  s_add_u32 s80, s26, {sT0}\n  s_addc_u32 s81, s27, 0")
    A(f"  s_lshl_b32 s31, {sH}, 13")
    A(f"  s_add_u32 s31, s31, {W_AP}")
    A(f"  s_cmp_eq_u32 {sAA}, 0")
    A("  s_cbranch_scc1 L_h_noclr")
    A(f"  s_add_u32 {sT2}, s31, 4096")
    for j in range(8):
        A(f"  buffer_store_dwordx4 v[{hD}:{hD+3}], v{vL16}, {WS}, {'s31' if j < 4 else sT2} offen offset:{(j%4)*1024} sc1")
    A("L_h_noclr:")
    if pt & 1:
        A(f"  s_lshl_b32 {sT0}, {sH}, 23")
        A(f"  v_lshlrev_b32 v6, 21, v0")
        A(f"  v_add_u32 v7, {sT0}, v6")
        A("  s_mov_b64 exec, 15")
        A(f"  global_load_dword v{hE}, v7, s[16:17] nt")
        A(f"  global_load_dword v{hE+1}, v6, s[10:11] nt")
        A("  s_mov_b64 exec, -1")
    A(f"  v_lshlrev_b32 v4, 2, v0")
    A(f"  v_lshlrev_b32 v5, 3, v0")
    A("  s_waitcnt vmcnt(0)")
    A(f"  v_mov_b32 v{h16}, v{vL16}")
    A(f"  v_mov_b32 v{hA}, v4")
    A(f"  v_mov_b32 v{hL8}, v5")
    A(f"  v_mov_b32 v{hZ}, 0")
    A(f"  s_mov_b32 {sTk}, 1")
    A(f"  s_atomic_add {sTk}, {DBGP}, 0 glc")
    A("  s_waitcnt lgkmcnt(0)")
    stamp(1)
    A("  s_barrier")
    sum4(L_QBP, W_QB)
    A(f"  s_add_u32 {sTk}, {sTk}, 1")
    A(f"  s_mov_b32 {sSpin}, {SPIN}")
    A("L_h_flag:")
    A(f"  s_cmp_ge_u32 {sTk}, 8")
    A("  s_cbranch_scc1 L_h_flag_ok")
    A(f"  s_mov_b32 {sTk}, 0")
    A(f"  s_atomic_add {sTk}, {DBGP}, 0 glc")
    A(f"  s_sub_u32 {sSpin}, {sSpin}, 1")
    A("  s_waitcnt lgkmcnt(0)")
    A("  s_cbranch_scc0 L_h_flag")
    A("L_h_flag_ok:")
    stamp(2)
    A(f"  s_lshl_b32 {sT0}, {sH}, 15")
    qgather("L_h_qb", sT0, hA, L_Q)
    stamp(3)
    A("  s_waitcnt lgkmcnt(0)")
    A("  s_barrier")
    sum4(L_QAP, W_QA)
    if pt & 2:
        A(f"  s_lshl_b32 {sT0}, {sH}, 23")
        A(f"  v_lshlrev_b32 v6, 21, v0")
        A(f"  v_add_u32 v7, {sT0}, v6")
        A("  s_mov_b64 exec, 15")
        A(f"  global_load_dword v{hE}, v7, s[18:19] nt")
        A(f"  global_load_dword v{hE+1}, v6, s[12:13] nt")
        A(f"  global_load_dword v{hE+2}, v6, s[22:23] nt")
        A("  s_mov_b64 exec, -1")
    A(f"  s_mov_b32 {sSpin}, {SPIN}")
    A("L_h_all:")
    A(f"  global_load_dword v{hD+4}, v{hA}, s[26:27] sc1")
    A("  s_waitcnt vmcnt(0)")
    A(f"  v_cmp_gt_u32 vcc, 8, v{hD+4}")
    A("  s_nop 1")
    A("  s_and_b32 vcc_lo, vcc_lo, 0x55555555")
    A("  s_and_b32 vcc_hi, vcc_hi, 0x55555555")
    A(f"  s_sub_u32 {sSpin}, {sSpin}, 1")
    A("  s_cbranch_scc1 L_h_all_ok")
    A("  s_cmp_eq_u64 vcc, 0")
    A("  s_cbranch_scc0 L_h_all")
    A("L_h_all_ok:")
    stamp(4)
    A(f"  s_cmp_eq_u32 {sAA}, 0")
    A("  s_cbranch_scc1 L_h_noaa")
    A(f"  s_lshr_b32 {sT0}, {sH}, 3")
    A(f"  s_lshl_b32 {sT0}, {sT0}, 18")
    A(f"  s_add_u32 {sT0}, {sT0}, {W_QA}")
    A(f"  v_mov_b32 v6, v{hA}")
    A(f"  s_mov_b32 {sT1}, 8")
    A("L_h_qa_next:")
    qgather("L_h_qa", sT0, 6, L_QA)
    A(f"  s_add_u32 {sT0}, {sT0}, {8*WG_STRIDE}")
    A("  v_add_u32 v6, 256, v6")
    A(f"  s_sub_u32 {sT1}, {sT1}, 1")
    A(f"  s_cmp_lg_u32 {sT1}, 0")
    A("  s_cbranch_scc1 L_h_qa_next")
    A("  s_waitcnt lgkmcnt(0)")
    A("  s_barrier")
    A("  s_barrier")
    A(f"  v_mov_b32 v6, v{hL8}")
    A(f"  v_mov_b32 v7, 0")
    A(f"  s_mov_b32 {sT1}, 8")
    A("L_h_ap_next:")
    combine4(6, 7, L_APART, "s31", 0)
    A(f"  s_add_u32 s31, s31, 1024")
    A(f"  v_add_u32 v6, {RS}, v6")
    A(f"  v_add_u32 v7, {RS}, v7")
    A(f"  s_sub_u32 {sT1}, {sT1}, 1")
    A(f"  s_cmp_lg_u32 {sT1}, 0")
    A("  s_cbranch_scc1 L_h_ap_next")
    A("L_h_noaa:")
    A(f"  s_lshr_b32 {sT0}, {sH}, 3")
    A(f"  s_lshl_b32 {sT0}, {sT0}, 16")
    A(f"  s_and_b32 {sT1}, {sH}, 7")
    A(f"  s_lshl_b32 {sT1}, {sT1}, 10")
    A(f"  s_add_u32 {sT0}, {sT0}, {sT1}")
    A(f"  s_add_u32 {sT0}, {sT0}, {W_AP}")
    A(f"  v_lshlrev_b32 v6, 13, v0")
    A(f"  s_mov_b32 {sSpin}, {SPIN}")
    A("  s_mov_b64 exec, 0xff")
    A("L_h_apw:")
    A(f"  buffer_load_dword v{hD}, v6, {WS}, {sT0} offen offset:12 sc1")
    A("  s_waitcnt vmcnt(0)")
    A(f"  v_cmp_eq_u32 vcc, -1, v{hD}")
    A(f"  s_sub_u32 {sSpin}, {sSpin}, 1")
    A("  s_cbranch_scc1 L_h_apw_ok")
    A("  s_cbranch_vccnz L_h_apw")
    A("L_h_apw_ok:")
    A("  s_mov_b64 exec, -1")
    combine8("L_h_ap8", sT0, 8192, L_OA)
    stamp(5)
    if touch:
        A(f"  s_lshl_b32 {sT0}, {sH}, 18")
        A(f"  v_mov_b32 v6, {sT0}")
        A("  s_mov_b64 exec, 1")
        A(f"  global_load_dword v{hD}, v6, s[12:13] nt")
        A(f"  global_load_dword v{hD+1}, v6, s[22:23] nt")
        if touch > 1:
            A(f"  global_load_dword v{hD+2}, v{hZ}, s[24:25] nt")
        A("  s_waitcnt vmcnt(0)")
        A("  s_mov_b64 exec, -1")
    A(f"  s_lshl_b32 {sT0}, {sH}, 15")
    A(f"  s_add_u32 {sT0}, {sT0}, {W_BP}")
    A("  v_and_b32 v6, 31, v0")
    A("  v_lshlrev_b32 v6, 15, v6")
    A("  v_lshrrev_b32 v7, 5, v0")
    A("  v_lshl_add_u32 v6, v7, 9, v6")
    A(f"  s_lshl_b32 {sT1}, {sS}, 12")
    A(f"  s_lshl_b32 s31, {sH}, 4")
    A(f"  s_add_u32 {sT1}, {sT1}, s31")
    A(f"  s_add_u32 {sT1}, {sT1}, {W_O2B}")
    A("  v_xor_b32 v7, 1, v7")
    A("  v_lshlrev_b32 v7, 11, v7")
    A(f"  s_lshl_b32 s31, {sS}, 8")
    A(f"  s_lshl_b32 {sTk}, {sH}, 3")
    A(f"  s_add_u32 s31, s31, {sTk}")
    A("  s_waitcnt lgkmcnt(0)")
    A("  s_barrier")
    stamp(6)
    combine4(hL8, hZ, L_BPART, sWG, W_BP)
    if "D" in wo and not poll1:
        A("  s_barrier")
    combine8("L_h_bp8", sT0, WG_STRIDE, L_OB, "D" in wo and poll1)
    stamp(7)
    A("  s_waitcnt lgkmcnt(0)")
    A("  s_barrier")
    sum4(L_O2A, W_O2A)
    A("  s_barrier")
    sum4(L_O2B, W_O2B)
    stamp(8)
    A(f"  s_mov_b32 {sSpin}, {SPIN}")
    if not pipe:
        A("L_h_fin:")
        A(f"  buffer_load_dwordx4 v[{hE}:{hE+3}], v6, {WS}, {sT1} offen sc1")
        A("  s_waitcnt vmcnt(0)")
        anysent(hE, 4, "L_h_fin")
    else:
        for r in range(2):
            A(f"  buffer_load_dwordx4 v[{hD+4*r}:{hD+4*r+3}], v6, {WS}, {sT1} offen sc1")
        A("L_h_fin:")
        for r in range(3):
            q = (r + 2) % 3
            A(f"  buffer_load_dwordx4 v[{hD+4*q}:{hD+4*q+3}], v6, {WS}, {sT1} offen sc1")
            A("  s_waitcnt vmcnt(2)")
            A(f"  v_max3_u32 v{hW}, v{hD+4*r}, v{hD+4*r+1}, v{hD+4*r+2}")
            A(f"  v_max_u32 v{hW}, v{hW}, v{hD+4*r+3}")
            A(f"  v_cmp_eq_u32 vcc, -1, v{hW}")
            for i in range(4):
                A(f"  v_mov_b32 v{hE+i}, v{hD+4*r+i}")
            A("  s_cbranch_vccz L_h_fin_ok")
        A(f"  s_sub_u32 {sSpin}, {sSpin}, 1")
        A("  s_cbranch_scc0 L_h_fin")
        A("L_h_fin_ok:")
    for ctrl in ("row_ror:8", "row_ror:4", "quad_perm:[2,3,0,1]", "quad_perm:[1,0,3,2]"):
        for i in range(4):
            dpp("v_add_f32", hE + i, hE + i, hE + i, ctrl)
    for i in range(4):
        A(f"  v_mov_b32 v{hE+4+i}, v{hE+i}")
    for i in range(4):
        A(f"  v_permlane16_swap_b32 v{hE+i}, v{hE+4+i}")
    for i in range(4):
        A(f"  v_add_f32 v{hE+i}, v{hE+i}, v{hE+4+i}")
    A(f"  v_cvt_pk_bf16_f32 v{hE}, v{hE}, v{hE+1}")
    A(f"  v_cvt_pk_bf16_f32 v{hE+1}, v{hE+2}, v{hE+3}")
    A("  s_mov_b32 exec_lo, 1")
    A("  s_mov_b32 exec_hi, 1")
    A(f"  buffer_store_dwordx2 v[{hE}:{hE+1}], v7, {OUT}, s31 offen {osc}")
    if stamps:
        A("  s_mov_b64 exec, -1")
        stamp(9, True)
        A(f"  s_lshl_b32 {sT0}, s2, 8")
        A(f"  s_add_u32 {sT0}, {sT0}, {STAMP1+64}")
        A(f"  v_lshl_add_u32 v253, v0, 2, {sT0}")
        A("  s_mov_b64 exec, 0xffff")
        A("  global_store_dword v253, v252, s[28:29]")
        A("  v_mov_b32 v8, s98\n  v_mov_b32 v9, s99\n  v_mov_b32 v10, s96\n  v_mov_b32 v11, s97")
        A(f"  s_lshl_b32 {sT0}, s2, 4")
        A(f"  s_add_u32 {sT0}, {sT0}, {STAMP0}")
        A(f"  v_mov_b32 v253, {sT0}")
        A("  s_mov_b64 exec, 1")
        A("  global_store_dwordx4 v253, v[8:11], s[28:29]")
    A("L_end:")
    A("  s_endpgm")
    A('.section .rodata,"a"')
    A(".p2align 6")
    A(f".amdhsa_kernel {KN}")
    A("  .amdhsa_next_free_vgpr 256")
    A("  .amdhsa_next_free_sgpr 102")
    A("  .amdhsa_accum_offset 256")
    A("  .amdhsa_group_segment_fixed_size 0")
    A("  .amdhsa_kernarg_size 104")
    A("  .amdhsa_user_sgpr_count 2")
    A("  .amdhsa_user_sgpr_kernarg_segment_ptr 1")
    A("  .amdhsa_system_sgpr_workgroup_id_x 1")
    A(".end_amdhsa_kernel")
    A.pad()
    return A.text()


if __name__ == "__main__":
    names = []
    for spec in sys.argv[1:]:
        out = None
        if "@" in spec:
            spec, out = spec.split("@")
        kv = dict(x.split("=") for x in spec.split(",") if x)
        p = {k: (v.replace("+", " ") if k in ("pol", "wo", "osc") else int(v)) for k, v in kv.items()}
        name = out or "k_" + spec.replace("=", "").replace(",", "_").replace("+", "") + ".s"
        open(name, "w").write(gen(**p))
        names.append(name)
    print(" ".join(os.path.relpath(n, "code") for n in names))
```

```python
import sys, os
sys.path.insert(0, os.path.dirname(os.path.abspath(__file__)))
from asmlib import Asm

KN = "concat_heads__sliding_block_cached__mha_block_cached__decode_kernel"
HEADER = open(os.path.join(os.path.dirname(os.path.abspath(__file__)), "header.txt")).read()

WG_STRIDE = 4096
W_QB, W_QA, W_BP, W_O2B, W_O2A, W_CNT = 0, 512, 1024, 2048, 2560, 3072
W_AP = 1 << 20
WS_SIZE = (1 << 20) + 32 * 8192
STAMP0 = 0x20000000
STAMP1 = 0x20100000
PS = 544
RS = 4 * PS
L_QBP, L_QAP, L_BPART, L_O2A, L_O2B, L_APART = 0, RS, 2 * RS, 3 * RS, 4 * RS, 5 * RS
L_Q = 13 * RS
L_OA = L_Q + 256
L_OB = L_OA + 256
L_QA = L_OB + 256
L_SC = 32768
LDS_BYTES = 65536
SPIN = 1 << 20
DOC = '''
; Fused single-launch decode step, 256 workgroups (one per CU) x 5 waves; written by gen/gen.py (own generator).
;   workgroup w: head h = w>>3, slice s = w&7.  waves 0-3 stream HBM with a fixed number of 1-KiB loads in flight,
;   wave 4 (helper) does the hand-offs between workgroups.
;   1. q = x@wq: 128-row slices per workgroup, 8 partials per head exchanged through d_ws (K loads are prefetched meanwhile)
;      dealt dynamically as fused K+V tiles (online softmax).  Branch A (GQA window) is done by one workgroup per head group
;      between its two phases.
;   3. partial (o, max, sum) boxes are merged per head, o@wo is done in 128x128 blocks, 32 partial rows are summed per column.
;   write-through stores; readers poll with sc1 loads until no word holds the sentinel.  All spins are bounded.
'''
PATS = [
    "j0:10 j1:11 j2:12 v0:13 v1:14 s0:15 s1:16 s2:17 i0:18 i1:19 i2:20 i3:21 i4:22 h0: h1: h2: h3: h4:",
    "j0:10+12 j1:14+19 j2:22 v0:21 v1:13 s0:14 s1:15+18 s2:11 i0:10 i1:15 i2:16+17 i3:17 i4:20 h0: h1: h2:10+17 h3:20 h4:13",
    "j0:20 j1:11 j2:18+22 v0:13 v1:21 s0:14 s1:10 s2:17 i0:16+19 i1:15 i2:12 i3:18 i4:16 h0:10 h1:17 h2:10 h3:15+21 h4:10",
    "j0:12 j1:11 j2:13 v0:16 v1:21 s0:14+22 s1:10 s2:17 i0:18 i1:15 i2:21+22 i3:20+22 i4:19 h0: h1:16 h2:21 h3:15+18 h4:22",
    "j0:10+19 j1:16+22 j2:22 v0:21 v1:13 s0:20 s1:12 s2:11+14 i0:14 i1:15 i2:19 i3:17 i4:11+18 h0:13 h1: h2:13 h3: h4:13+16",
    "j0:13 j1:17+21 j2:11+12 v0:20 v1:21 s0:13+14 s1:16 s2:18+22 i0:15 i1:18 i2:12 i3:13+19 i4:10+21 h0:18 h1: h2: h3: h4:15",
    "j0:12+22 j1:11+19 j2:21 v0:14 v1:13 s0:15 s1:16 s2:17 i0:11+22 i1:10 i2:12+13 i3:18 i4:20 h0:20 h1:12 h2:19 h3: h4:21",
    "j0:9 j1:19+20 j2:13 v0:21 v1:11 s0:9+10 s1:14 s2:17 i0:15 i1:12 i2:20+21 i3:18 i4:22 h0:10 h1:13+17 h2:10 h3:22 h4:10+15 k0:16 k1:8",
    "j0:16 j1:12 j2:13 v0:21 v1:11 s0:14 s1:10 s2:17+19+21 i0:8 i1:22 i2:19 i3:11+18+21 i4:20 h0:13 h1:19 h2:8 h3: h4:22 k0:8+9+15 k1:15",
    "j0:21 j1:9+11+19 j2:9 v0:12+22 v1:13 s0:12+14+15+19 s1:16 s2:17 i0:11+22 i1:18 i2:10 i3:20 i4:12 h0:13 h1:10+18 h2: h3: h4: k0:8 k1:14",
    "j0:8 j1:14 j2:20 v0:9+13 v1:10+12 s0:13+18 s1:11+12 s2:17 i0:15 i1:19 i2:21 i3:22 i4:13 h0: h1:17 h2:8 h3: h4:10+14 k0:12+16 k1:10+13",
    "j0:8 j1:21 j2:22 v0:9 v1:11 s0:10 s1:11+14 s2:17 i0:19 i1:15 i2:13+21 i3:12+19 i4:8+18 h0:10 h1:9+15+17 h2: h3: h4: k0:16 k1:13+15+20",
    "j0:12+18 j1:8+11 j2:9 v0:16 v1:15 s0:10 s1:14 s2:17+18 i0:13+21 i1:16+19 i2:12+16+21 i3:20 i4:22 h0:21 h1: h2:16 h3: h4:15 k0:13 k1:8",
    "j0:9+21 j1:8+21 j2:15 v0:10+12 v1:13 s0:18 s1:10 s2:11 i0:16 i1:19 i2:9+22 i3:20 i4:12+14+15 h0: h1:12 h2: h3:10 h4:16 k0:8 k1:17+22",
    "j0:13 j1:12+13 j2:8 v0:21 v1:11+22 s0:8+15 s1:14 s2:17 i0:16 i1:22 i2:20 i3:18 i4:10 h0: h1:8+9 h2:20+21+22 h3: h4: k0:19+22 k1:9",
    "j0:12 j1:9 j2:21 v0:11 v1:13 s0:14+16 s1:9+10 s2:17 i0:16 i1:20 i2:18 i3:22 i4:19+22 h0:12 h1:21 h2: h3:15 h4:8+21 k0:8+12 k1:15",
    "j0:8+9 j1:18 j2:10+21 v0:13 v1:19+20 s0:21 s1:14 s2:8+17 i0:9 i1:22 i2:11 i3:20 i4:12 h0:10 h1:11+17+20 h2:9 h3:20+22 h4:8 k0:15 k1:16",
    "j0:9 j1:21 j2:8+11+13 v0:15 v1:12+16+19 s0:14+21 s1:10 s2:15+17 i0:16 i1:18 i2:22 i3:19 i4:20 h0:10 h1:17+22 h2: h3:13 h4: k0:11 k1:8+9+15",
    "j0:16+21 j1:12 j2:19 v0:15 v1:9+21 s0:10+18 s1:21 s2:11+17 i0:13 i1:10 i2:14+19+22 i3:9+21+22 i4:12+20 h0: h1:12 h2: h3:10 h4: k0:17+22 k1:8",
]


def parse_pat(t):
    c = {}
    for w in t.split():
        k, b = w.split(":")
        c[k] = sum(1 << int(x) for x in b.split("+") if x)
    c.setdefault("k0", 256)
    c.setdefault("k1", 512)
    rows = [c[k] for k in c if k[0] != "h"]
    for bit in range(8, 23):
        p = next(x for x in rows if x >> bit & 1)
        rows.remove(p)
        rows = [x ^ p if x >> bit & 1 else x for x in rows]
    return c


def gen(NS=3, stamps=0, pol="nt", wo="CD", prio=3, cap=52, cap0=5, ust=1, n=31, na=25, nC=8, tke=0, capA=7, early=0, poll1=1, nF=8, touch=0, osc="", pipe=0, fx=24, pat=16, tab=0, D=0, uB=27, capP=0, pt=0, capV=66555555, pk=0, thr=56, capF=7, hoist=0, fb=0, fS=44444445, fF=66666665, csp=1, noclr=0, fbm=0, slp=0, sub=0, dp=1, xa=0, fl=0):
    A = Asm()
    lo, frac = divmod(cap, 10)
    caps = [lo + (1 if (j + 1) * frac // 10 > j * frac // 10 else 0) for j in range(8)]
    if frac == 5:
        caps = [lo + 1 - (j & 1) for j in range(8)]
    if cap > 1000:
        caps = [int(ch) for ch in str(cap)]
    cap = caps[7]
    nst = [0]

    sH, sS, sW = "s84", "s85", "s3"
    sIdx, sOff, sTk, sIt = "s86", "s87", "s88", "s89"
    sT0, sT1, sT2, sC = "s90", "s91", "s93", "s92"
    sSpin, sAA = "s94", "s95"
    KB, VB, WQB, WQA, WOB, WOA, KA, VA, WS, XB, XA, OUT = ["s[%d:%d]" % (i, i + 3) for i in range(32, 80, 4)]
    DBGP, CNTP = "s[80:81]", "s[82:83]"
    vL16, vWq, vWo = 1, 2, 3
    vQ, vAcc, vM, vLs = 4, 8, 16, 17
    vS0, vR0, vR1, vT, vMx, vAl, vPl, vPh, vMn = 18, 22, 23, 24, 25, 26, 28, 29, 30
    vLo, vLm, vCo = 240, 241, 242
    vX = 244
    vList, vMr, vSc, vL16b = 243, 250, 251, 31
    vP1l, vP1h = 20, 21
    sI, sThr, sPend = "s100", "s24", "s25"
    E1 = 4 * (32 - na)
    E = E1 + 28 * (32 - n)
    P3 = 2 * (E - D)
    if sub:
        E, E1, P3, fx = E // 4, E1 // 4, P3 // 4, fx // 4
    assert E <= 128 and 32 - n <= 3
    COL = parse_pat(PATS[pat])
    TJ = [(COL["j0"] if j & 1 else 0) ^ (COL["j1"] if j & 2 else 0) ^ (COL["j2"] if j & 4 else 0) for j in range(8)]
    vP3a, vP3b = 254, 255
    NMAX = 48
    CO2 = 0x80 if csp else 0x100
    assert n > na and 28 * (NMAX - n) >= D
    NT, NTA = n, na
    assert P3 >= 0
    slot = lambda b: 32 + 32 * b
    vWQB, vWQA = 160, 192
    vQA, vAccA, vMA, vLA = 128, 160, 224, 232
    vSA, vRA, vMrA, vTA, vCfA = 64, 96, 112, 120, 80
    NXT = "s[12:15]"

    def stamp(k, force=False):
        if stamps == 1 or (stamps and force):
            A(f"  s_memrealtime s[96:97]")
            A(f"  s_waitcnt lgkmcnt(0)")
            A(f"  v_writelane_b32 v252, s96, {k}")

    def dpp(op, d, a, b, ctrl, bank=0xf):
        A(f"  {op}_dpp v{d}, v{a}, v{b} {ctrl} row_mask:0xf bank_mask:{bank:#x}")

    def kvload(srd, r, so, va=vL16):
        for j in range(4):
            A(f"  buffer_load_dwordx4 v[{r+4*j}:{r+4*j+3}], v{va}, {srd}, {so} offen offset:{j*1024} {pol}")

    def wload(srd, r, voff, sbase, step, j0=0, n=8):
        for j in range(j0, j0 + n):
            if j:
                A(f"  s_add_u32 {sT2}, {sbase}, {j*step}")
            so = sT2 if j else sbase
            A(f"  buffer_load_dwordx4 v[{r+4*j}:{r+4*j+3}], v{voff}, {srd}, {so} offen {pol}")

    def qk(k, q):
        for m in range(4):
            for j in range(4):
                if m == 0:
                    A(f"  v_dot2_f32_bf16 v{vS0+j}, v{k+4*j}, v{q}, 0")
                else:
                    A(f"  v_dot2c_f32_bf16 v{vS0+j}, v{k+4*j+m}, v{q+m}")

    def dots(k, q, j):
        d = vS0 + (j & 3)
        A(f"  v_dot2_f32_bf16 v{d}, v{k}, v{q}, 0")
        for m in range(1, 4):
            A(f"  v_dot2_f32_bf16 v{d}, v{k+m}, v{q+m}, v{d}")

    def ld(srd, r, va, so, off=0):
        A(f"  buffer_load_dwordx4 v[{r}:{r+3}], v{va}, {srd}, {so} offen offset:{off} {pol}")

    vKV, vAd, vNx = 253, 27, 30
    kmask = COL["k0"] | COL["k1"]
    plain = not any(v & kmask for k, v in COL.items() if k[0] != "k")
    TABN = ["j0", "j1", "j2", "v0", "v1", "s0", "s1", "s2", "i0", "i1", "i2", "i3", "i4", "h0", "h1", "h2", "h3", "h4", "k0", "k1"]
    vTab = 7
    if tab:
        plain = False
        TJ = [0] + ["s%d" % (3 + j) for j in range(1, 8)]
    hx = lambda x: x if isinstance(x, str) else hex(x)

    def col(nm):
        if not tab:
            return hex(COL[nm])
        A(f"  v_readlane_b32 s64, v{vTab}, {TABN.index(nm)}")
        return "s64"

    def ldx(srd, r, so, x):
        if x:
            A(f"  s_xor_b32 {sT2}, {so}, {hx(x)}")
        if plain:
            ld(srd, r, vKV, sT2 if x else so)
        else:
            A(f"  v_xor_b32 v{vAd}, {sT2 if x else so}, v{vKV}")
            ld(srd, r, vAd, "0")

    def tk(srd, b, so):
        return lambda j: ldx(srd, slot(b) + 4 * j, so, TJ[j])

    def tka(srd, so):
        return lambda j: ld(srd, slot(0) + 4 * j, vL16 if j < 4 else vL16b, so, (j & 3) * 1024)

    def tkn(j):
        A(f"  v_xor_b32 v{vAd}, s{16+j}, v{vNx}")
        ld(NXT, slot(0) + 4 * j, vAd, "0")

    def prep_next(sa, sb, a_if_scc):
        A("  s_cselect_b32 s23, 1, 0")
        for j in range(cap):
            A(f"  s_add_u32 s{16+j}, {sa}, {j*1024}")
            A(f"  s_xor_b32 {sT2}, {sb}, {hx(TJ[j])}")
            A(f"  s_cmp_eq_u32 s23, {1 if a_if_scc else 0}")
            A(f"  s_cselect_b32 s{16+j}, s{16+j}, {sT2}")
        A(f"  s_mov_b32 {sPend}, s16")
        A("  s_cselect_b64 vcc, -1, 0")
        A(f"  v_cndmask_b32 v{vNx}, v{vKV}, v{vL16}, vcc")

    def advance():
        A(f"  s_mov_b32 {sOff}, {sPend}")

    def ft(so):
        return lambda j: ldx(KB if j < 4 else VB, slot(0) + 4 * j, so, TJ[j & 3])

    def xormap(d, x):
        bits = [("i%d" % k, k) for k in range(5)] + [("v%d" % k, 5 + k) for k in range(2)] + \
               [("s%d" % k, 7 + k) for k in range(3)] + [("h%d" % k, 10 + k) for k in range(5)]
        first = True
        for nm, b in bits:
            if not COL[nm] and not tab:
                continue
            A(f"  v_bfe_i32 v{vX+3}, v{x}, {b}, 1")
            if first:
                A(f"  v_and_b32 v{d}, {col(nm)}, v{vX+3}")
                first = False
            else:
                A(f"  v_and_b32 v{vX+3}, {col(nm)}, v{vX+3}")
                A(f"  v_xor_b32 v{d}, v{d}, v{vX+3}")

    def wl(srd, r, voff, sbase, step):
        def f(j):
            if j:
                A(f"  s_add_u32 {sT2}, {sbase}, {j*step}")
            ld(srd, r + 4 * j, voff, sT2 if j else sbase)
        return f

    def wait_issue(wait, loads):
        mark = len(A.L)
        parts = []
        for k, f in enumerate(loads):
            m = len(A.L)
            f()
            seg = A.L[m:]
            if k & 1:
                seg = [x.replace(sT2, "s101").replace(f"v{vAd},", "v25,") for x in seg]
            parts.append(seg)
        del A.L[mark:]
        if hoist and wait and len(loads) <= 2:
            pre = [x for seg in parts for x in seg if "buffer_load" not in x]
            post = [x for seg in parts for x in seg if "buffer_load" in x]
            A.L += pre + [wait] + post
        else:
            A.L += ([wait] if wait else []) + [x for seg in parts for x in seg]

    def steps(j0, j1, lead, cur, nxt, proc, nmax=8, first_wait=True, caps=caps):
        for j in range(j0, j1):
            w = f"  s_waitcnt vmcnt({lead-j-1})" if first_wait or j > j0 else None
            loads = []
            while lead < min(j + 1 + caps[j], 8 + nmax):
                loads.append(lambda f=(cur if lead < 8 else nxt), k=lead & 7: f(k))
                lead += 1
            wait_issue(w, loads)
            proc(j)
        return lead

    def stream_iter(cur, nxt, proc, caps=caps):
        assert steps(0, 8, cap, cur, nxt, proc, caps=caps) == 8 + cap

    def red16(t):
        dpp("v_add_f32", vR0, vS0, vS0, "row_ror:8", 0x3)
        dpp("v_add_f32", vR1, vS0 + 2, vS0 + 2, "row_ror:8", 0x3)
        dpp("v_add_f32", vR0, vS0 + 1, vS0 + 1, "row_ror:8", 0xc)
        dpp("v_add_f32", vR1, vS0 + 3, vS0 + 3, "row_ror:8", 0xc)
        dpp("v_add_f32", t, vR0, vR0, "row_half_mirror", 0x5)
        dpp("v_add_f32", t, vR1, vR1, "row_half_mirror", 0xa)
        dpp("v_add_f32", t, t, t, "quad_perm:[1,0,3,2]")
        dpp("v_add_f32", t, t, t, "quad_perm:[2,3,0,1]")

    def softmax(t, m, l, acc, pl, ph):
        dpp("v_max_f32", vMx, t, t, "row_ror:4")
        dpp("v_max_f32", vMx, vMx, vMx, "row_ror:8")
        A(f"  v_mul_f32 v{vMx}, {sC}, v{vMx}")
        A(f"  v_max_f32 v{vMn}, v{m}, v{vMx}")
        A(f"  v_fma_f32 v{t}, v{t}, {sC}, -v{vMn}")
        A(f"  v_sub_f32 v{vAl}, v{m}, v{vMn}")
        A(f"  v_exp_f32 v{t}, v{t}")
        A(f"  v_exp_f32 v{vAl}, v{vAl}")
        A(f"  v_mov_b32 v{m}, v{vMn}")
        A(f"  v_cvt_pk_bf16_f32 v{pl}, v{t}, 0")
        A(f"  v_fma_f32 v{l}, v{l}, v{vAl}, v{t}")
        A(f"  v_lshlrev_b32 v{ph}, 16, v{pl}")
        for i in range(4):
            A(f"  v_pk_mul_f32 v[{acc+2*i}:{acc+2*i+1}], v[{acc+2*i}:{acc+2*i+1}], v[{vAl}:{vAl+1}] op_sel_hi:[1,0]")

    def pv(acc, v, pl, ph, lanes):
        for j, ln in enumerate(lanes):
            for m in range(4):
                dpp("v_dot2c_f32_bf16", acc + 2 * m, pl, v + 4 * j + m, f"row_newbcast:{ln}")
                dpp("v_dot2c_f32_bf16", acc + 2 * m + 1, ph, v + 4 * j + m, f"row_newbcast:{ln}")

    KVL = [0, 8, 4, 12]

    def zero(acc, n=8):
        for i in range(n):
            A(f"  v_mov_b32 v{acc+i}, 0")

    def redrows(acc, ldsoff):
        for a, b in ((0, 4), (2, 6), (1, 5), (3, 7)):
            A(f"  v_permlane32_swap_b32 v{acc+a}, v{acc+b}")
        for a, b in ((0, 4), (2, 6), (1, 5), (3, 7)):
            A(f"  v_add_f32 v{acc+a}, v{acc+a}, v{acc+b}")
        A(f"  v_permlane16_swap_b32 v{acc}, v{acc+2}")
        A(f"  v_permlane16_swap_b32 v{acc+1}, v{acc+3}")
        A(f"  v_add_f32 v{acc}, v{acc}, v{acc+2}")
        A(f"  v_add_f32 v{acc+1}, v{acc+1}, v{acc+3}")
        A(f"  ds_write_b64 v{vLo}, v[{acc}:{acc+1}] offset:{ldsoff}")

    def allrows(op, d, x):
        t1, t2 = vX + 2, vX + 3
        A(f"  v_mov_b32 v{t1}, v{x}")
        A(f"  v_mov_b32 v{t2}, v{x}")
        A(f"  v_permlane32_swap_b32 v{t1}, v{t2}")
        A(f"  {op} v{t1}, v{t1}, v{t2}")
        A(f"  v_mov_b32 v{t2}, v{t1}")
        A(f"  v_permlane16_swap_b32 v{t1}, v{t2}")
        A(f"  {op} v{d}, v{t1}, v{t2}")

    def fin(acc, m, l, ldsoff):
        M, Ls = vX, vX + 1
        allrows("v_max_f32", M, m)
        A(f"  v_sub_f32 v{vAl}, v{m}, v{M}")
        A(f"  v_exp_f32 v{vAl}, v{vAl}")
        dpp("v_add_f32", vR0, l, l, "row_ror:4")
        for i in range(4):
            A(f"  v_pk_mul_f32 v[{acc+2*i}:{acc+2*i+1}], v[{acc+2*i}:{acc+2*i+1}], v[{vAl}:{vAl+1}] op_sel_hi:[1,0]")
        dpp("v_add_f32", vR0, vR0, vR0, "row_ror:8")
        A(f"  v_mul_f32 v{vR0}, v{vR0}, v{vAl}")
        allrows("v_add_f32", Ls, vR0)
        A(f"  ds_write_b64 v{vLm}, v[{M}:{M+1}] offset:{ldsoff}")
        redrows(acc, ldsoff)

    def score(u):
        red16(vT)
        A(f"  v_max_f32 v{vMr}, v{vMr}, v{vT}")
        A(f"  ds_write_b32 v{vSc}, v{vT} offset:{4*u}")
        if u:
            A(f"  v_add_u32 v{vSc}, 128, v{vSc}")

    def scbase():
        A(f"  s_lshl_b32 {sT1}, {sW}, 13")
        A(f"  s_add_u32 {sT1}, {sT1}, {L_SC}")
        A(f"  v_lshrrev_b32 v{vSc}, 2, v0")
        A(f"  v_lshl_add_u32 v{vSc}, v{vSc}, 3, {sT1}")

    def probs():
        A(f"  v_fma_f32 v{vS0}, v{vS0}, {sC}, -v{vM}")
        A(f"  v_fma_f32 v{vS0+1}, v{vS0+1}, {sC}, -v{vM}")
        A(f"  v_exp_f32 v{vS0}, v{vS0}")
        A(f"  v_exp_f32 v{vS0+1}, v{vS0+1}")
        A(f"  v_cvt_pk_bf16_f32 v{vPl}, v{vS0}, 0")
        A(f"  v_add_f32 v{vLs}, v{vLs}, v{vS0}")
        A(f"  v_cvt_pk_bf16_f32 v{vP1l}, v{vS0+1}, 0")
        A(f"  v_lshlrev_b32 v{vPh}, 16, v{vPl}")
        A(f"  v_add_f32 v{vLs}, v{vLs}, v{vS0+1}")
        A(f"  v_lshlrev_b32 v{vP1h}, 16, v{vP1l}")

    A(HEADER.rstrip().replace("@LAUNCH@", f"; @launch grid=(256,1,1) block=(320,1,1) lds={LDS_BYTES}"))
    A(DOC.strip("\n"))
    A('.amdgcn_target "amdgcn-amd-amdhsa--gfx950"')
    A(".text")
    A(f".globl {KN}")
    A(".p2align 8")
    A(f".type {KN},@function")
    A(f"{KN}:")
    A("  s_cmp_ge_u32 s2, 256")
    A("  s_cbranch_scc1 L_end")
    if stamps:
        A("  s_memrealtime s[98:99]")
    A("  s_load_dwordx16 s[4:19], s[0:1], 0")
    A("  s_load_dwordx8 s[20:27], s[0:1], 64")
    A("  s_load_dwordx2 s[28:29], s[0:1], 96")
    A("  v_lshrrev_b32 v1, 6, v0")
    A("  v_and_b32 v0, 63, v0")
    A(f"  v_readfirstlane_b32 {sW}, v1")
    A(f"  s_lshr_b32 {sH}, s2, 3")
    A(f"  s_and_b32 {sS}, s2, 7")
    A(f"  s_and_b32 {sT0}, {sH}, 7")
    A(f"  s_cmp_eq_u32 {sT0}, {sS}")
    A(f"  s_cselect_b32 {sAA}, 1, 0")
    A(f"  v_lshlrev_b32 v{vL16}, 4, v0")
    if stamps:
        A("  v_mov_b32 v252, 0")
    A(f"  s_cmp_eq_u32 {sW}, 4")
    A("  s_cbranch_scc1 L_helper")
    A(f"  s_mov_b32 {sC}, 0x3e0293ee")
    A("  v_lshrrev_b32 v4, 4, v0")
    A("  v_and_b32 v5, 15, v0")
    for i in list(range(32, 64, 4)) + [68, 72]:
        A(f"  s_mov_b32 s{i+3}, 0x20000")
    A("  s_mov_b32 s34, 0x800000\n  s_mov_b32 s38, 0x800000")
    A("  s_mov_b32 s42, 0x800000\n  s_mov_b32 s46, 0x800000\n  s_mov_b32 s50, 0x800000\n  s_mov_b32 s54, 0x800000")
    A("  s_mov_b32 s58, 0x20000\n  s_mov_b32 s62, 0x20000")
    A(f"  s_mov_b32 s70, 2048\n  s_mov_b32 s74, 2048")
    A(f"  v_lshlrev_b32 v{vWq}, 13, v4")
    A(f"  v_lshl_add_u32 v{vWq}, v5, 4, v{vWq}")
    A(f"  v_and_b32 v6, 7, v5")
    A(f"  v_lshl_add_u32 v6, v6, 2, v4")
    A(f"  s_lshl_b32 {sT0}, {sW}, 5")
    A(f"  v_add_u32 v6, {sT0}, v6")
    A(f"  v_lshlrev_b32 v{vCo}, 1, v6")
    A(f"  s_lshl_b32 {sT1}, {sS}, 7")
    A(f"  s_add_u32 {sT0}, {sT0}, {sT1}")
    A(f"  s_lshl_b32 {sT0}, {sT0}, 13")
    A(f"  s_lshl_b32 {sT1}, {sH}, 8")
    A(f"  s_add_u32 {sT0}, {sT0}, {sT1}")
    A(f"  s_lshl_b32 {sT1}, {sS}, 8")
    A("  s_waitcnt lgkmcnt(0)")
    A("  s_mov_b32 s40, s20\n  s_mov_b32 s41, s21\n  s_mov_b32 s68, s14\n  s_mov_b32 s69, s15")
    A("  s_mov_b32 s72, s4\n  s_mov_b32 s73, s5\n  s_mov_b32 s44, s10\n  s_mov_b32 s45, s11")
    stamp(12)
    if tab:
        A(f"  v_lshlrev_b32 v{vTab}, 2, v0")
        A(f"  v_add_u32 v{vTab}, 0x30000000, v{vTab}")
        A(f"  global_load_dword v{vTab}, v{vTab}, s[28:29]")
    A(f"  buffer_load_ushort v{vPl}, v{vCo}, {XB}, {sT1} offen {pol}")
    A(f"  buffer_load_ushort v{vX+4}, v{vCo}, {XA}, {sT1} offen {pol}")
    SST = 32 * 4096 * (1 if ust > 1 else 2)
    items = [(wl(WQB, vWQB, vWq, sT0, 32768), j) for j in range(8)] + [(wl(WQA, vWQA, vWq, sT0, 32768), j) for j in range(8)]
    for b in range(NS):
        items += [(tk(KB, b, sOff), j) for j in range(8)]

    def issue(u):
        f, j = items[u]
        if u >= 16 and j == 0:
            A(f"  v_readlane_b32 {sOff}, v{vList}, {(u-16)//8}")
        f(j)

    for u in range(cap0):
        issue(u)
    A(f"  s_lshl_b32 s30, {sH}, 23")
    A(f"  s_add_u32 s32, s16, s30\n  s_addc_u32 s33, s17, 0\n  s_add_u32 s36, s18, s30\n  s_addc_u32 s37, s19, 0")
    A(f"  s_lshl_b32 {sIdx}, {sS}, 2")
    A(f"  s_add_u32 {sIdx}, {sIdx}, {sW}")
    A(f"  v_add_u32 v{vL16b}, 4096, v{vL16}")
    if tab:
        A(f"  s_waitcnt vmcnt({cap0+2})")
    A(f"  v_bfe_i32 v{vX}, v0, 4, 1")
    A(f"  v_and_b32 v{vX}, {col('k0')}, v{vX}")
    A(f"  v_bfe_i32 v{vX+1}, v0, 5, 1")
    A(f"  v_and_b32 v{vX+1}, {col('k1')}, v{vX+1}")
    A(f"  v_xor_b32 v{vX}, v{vX}, v{vX+1}")
    A(f"  v_lshl_add_u32 v{vKV}, v5, 4, v{vX}")
    A(f"  s_lshl_b32 s30, s2, 7")
    A(f"  s_lshl_b32 s31, {sW}, 5")
    A(f"  s_or_b32 s30, s30, s31")
    A(f"  v_and_b32 v{vX}, 31, v0")
    A(f"  v_or_b32 v{vX}, s30, v{vX}")
    xormap(vList, vX)
    E2 = E - E1
    for t, e0 in ((vP3a, 0), (vP3b, 64)):
        if e0 >= E:
            break
        A(f"  s_and_b32 s31, {sH}, 7")
        A(f"  s_lshl_b32 s31, s31, 2")
        if sub:
            A(f"  s_lshr_b32 s31, s31, 2")
            A(f"  v_mul_u32_u24 v{vX+2}, 9363, v0")
            A(f"  v_lshrrev_b32 v{vX+2}, 16, v{vX+2}")
            A(f"  v_mul_u32_u24 v{vX+1}, 7, v{vX+2}")
            A(f"  v_sub_u32 v{vX+1}, v0, v{vX+1}")
            A(f"  v_add_u32 v{vX+2}, {NT}, v{vX+2}")
            A(f"  v_cmp_le_u32 vcc, s31, v{vX+1}")
            A(f"  v_cndmask_b32 v{vX+3}, 0, 1, vcc")
            A(f"  v_add_u32 v{vX+1}, v{vX+1}, v{vX+3}")
            A(f"  v_lshl_add_u32 v{vX+1}, v{vX+1}, 7, v{vX+2}")
            A(f"  s_lshl_b32 s31, s31, 7")
            A(f"  s_add_u32 s31, s31, {NTA - E2}")
            A(f"  v_add_u32 v{vX+2}, s31, v0")
            A(f"  v_cmp_gt_u32 vcc, {E2}, v0")
            A(f"  v_cndmask_b32 v{vX}, v{vX+2}, v{vX+1}, vcc")
            A(f"  s_lshl_b32 s31, {sW}, 5")
            A(f"  v_or_b32 v{vX}, s31, v{vX}")
        else:
            A(f"  v_add_u32 v{vX}, {e0}, v0")
            A(f"  v_mul_u32_u24 v{vX+2}, 2341, v{vX}")
            A(f"  v_lshrrev_b32 v{vX+2}, 16, v{vX+2}")
            A(f"  v_mul_u32_u24 v{vX+1}, 28, v{vX+2}")
            A(f"  v_sub_u32 v{vX+1}, v{vX}, v{vX+1}")
            A(f"  v_add_u32 v{vX+2}, {NT}, v{vX+2}")
            A(f"  v_cmp_le_u32 vcc, s31, v{vX+1}")
            A(f"  v_cndmask_b32 v{vX+3}, 0, 4, vcc")
            A(f"  v_add_u32 v{vX+1}, v{vX+1}, v{vX+3}")
            A(f"  v_lshl_add_u32 v{vX+1}, v{vX+1}, 5, v{vX+2}")
            A(f"  v_cmp_gt_u32 vcc, {E2}, v{vX}")
            A(f"  v_subrev_u32 v{vX}, {E2}, v{vX}")
            A(f"  v_and_b32 v{vX+2}, 3, v{vX}")
            A(f"  v_add_u32 v{vX+2}, s31, v{vX+2}")
            A(f"  v_lshrrev_b32 v{vX+3}, 2, v{vX}")
            A(f"  v_add_u32 v{vX+3}, {NTA}, v{vX+3}")
            A(f"  v_lshl_add_u32 v{vX+2}, v{vX+2}, 5, v{vX+3}")
            A(f"  v_cndmask_b32 v{vX}, v{vX+2}, v{vX+1}, vcc")
        A(f"  s_lshl_b32 s31, {sH}, 10")
        A(f"  v_and_b32 v{vX}, 0x3ff, v{vX}")
        A(f"  v_or_b32 v{vX}, s31, v{vX}")
        xormap(t, vX)
    A(f"  s_lshr_b32 {sT1}, {sH}, 3")
    A(f"  s_lshl_b32 {sT1}, {sT1}, 23")
    A(f"  s_and_b32 s30, {sH}, 7")
    A(f"  s_lshl_b32 s30, s30, 17")
    A(f"  s_add_u32 {sT1}, {sT1}, s30")
    A(f"  s_add_u32 {sT1}, {sT1}, {28672*256}")
    A("  s_mov_b32 s48, s22\n  s_mov_b32 s49, s23\n  s_mov_b32 s52, s12\n  s_mov_b32 s53, s13")
    A(f"  s_add_u32 s56, s6, {sT1}\n  s_addc_u32 s57, s7, 0\n  s_add_u32 s60, s8, {sT1}\n  s_addc_u32 s61, s9, 0")
    def cntoff(d, g, t):
        A(f"  s_lshl_b32 {d}, {g}, 15")
        A(f"  s_add_u32 {d}, {d}, {W_CNT}")
        if csp:
            A(f"  s_and_b32 {t}, {g}, 7")
            A(f"  s_lshl_b32 {t}, {t}, 12")
            A(f"  s_add_u32 {d}, {d}, {t}")
            A(f"  s_lshr_b32 {t}, {g}, 3")
            A(f"  s_lshl_b32 {t}, {t}, 8")
            A(f"  s_add_u32 {d}, {d}, {t}")

    if sub:
        A(f"  s_lshl_b32 s31, {sW}, 1")
        A(f"  s_add_u32 s31, s31, {sH}")
        A(f"  s_and_b32 s31, s31, 7")
        A(f"  s_lshl_b32 s30, {sH}, 3")
        A(f"  s_add_u32 s30, s30, s31")
        A(f"  s_lshl_b32 s30, s30, 12")
        A(f"  s_lshr_b32 s31, {sH}, 3")
        A(f"  s_add_u32 s31, s31, {sW}")
        A(f"  s_and_b32 s31, s31, 3")
        A(f"  s_lshl_b32 s31, s31, 8")
        A(f"  s_add_u32 s30, s30, s31")
        A(f"  s_add_u32 s30, s30, {W_CNT}")
    else:
        cntoff("s30", sH, "s31")
    A(f"  s_add_u32 s82, s28, s30\n  s_addc_u32 s83, s29, 0")
    A(f"  v_lshlrev_b32 v{vWo}, 11, v4")
    A(f"  v_lshl_add_u32 v{vWo}, v5, 4, v{vWo}")
    A(f"  v_lshlrev_b32 v{vLo}, 5, v5")
    A(f"  v_lshl_add_u32 v{vLo}, v4, 3, v{vLo}")
    A(f"  s_mul_i32 {sT1}, {sW}, {PS}")
    A(f"  v_add_u32 v{vLo}, {sT1}, v{vLo}")
    A(f"  s_add_u32 {sT1}, {sT1}, 512")
    A(f"  v_mov_b32 v{vLm}, {sT1}")
    A(f"  v_lshlrev_b32 v{vX+5}, 4, v5")
    if tab:
        for j in range(1, 8):
            A(f"  v_readlane_b32 s{3+j}, v{vTab}, {20+j}")
    zero(vAcc)
    U0, U1 = slot(0), slot(0) + 16
    sNx = sPend

    def kproc(b):
        def f(j):
            dots(slot(b) + 4 * j, vQ, j)
            if j & 3 == 3:
                score(j >> 2)
        return f

    def pre_b2():
        A(f"  s_lshl_b32 {sT0}, {sH}, 7")
        A(f"  s_lshl_b32 {sT1}, {sW}, 5")
        A(f"  s_add_u32 {sT0}, {sT0}, {sT1}")
        A(f"  s_lshl_b32 {sT0}, {sT0}, 11")
        A(f"  s_lshl_b32 {sT1}, {sS}, 8")
        A(f"  s_add_u32 {sT0}, {sT0}, {sT1}")
        zero(vAcc)
        A(f"  v_mov_b32 v{vMr}, 0xff7fffff")
        A(f"  v_mov_b32 v{vM}, 0xff7fffff")
        A(f"  v_mov_b32 v{vLs}, 0")
        scbase()
        A(f"  s_mov_b32 {sI}, {NS+1}")
        A(f"  s_cmp_eq_u32 {sAA}, 1")
        A(f"  s_cselect_b32 {sIt}, {NTA}, {NT}")

    def b2():
        stamp(2)
        A("  s_waitcnt lgkmcnt(0)")
        A("  s_barrier")
        A(f"  ds_read_b128 v[{vQ}:{vQ+3}], v{vX+5} offset:{L_Q}")

    NB = len(items)
    if uB:
        items += [(tk(KB, 0, sOff), j) for j in range(cap)]
    nxt = cap0
    done = 16
    for u in range(NB):
        if not uB and u >= 16 and nxt >= len(items):
            break
        w = f"  s_waitcnt vmcnt({nxt-u-1})"
        loads = []
        while nxt < min(len(items), u + 1 + cap0) and (nxt < NB or done > 16 + nxt - NB):
            loads.append(lambda k=nxt: issue(k))
            nxt += 1
        wait_issue(w, loads)
        if u == 0:
            stamp(13)
            A(f"  v_lshlrev_b32 v{vPh}, 16, v{vPl}")
        if u < 8:
            pv(vAcc, vWQB + 4 * u, vPl, vPh, [u])
        elif u < 16:
            pv(vAcc, vWQA + 4 * (u - 8), vPl, vPh, [u - 8])
        if u == 7:
            redrows(vAcc, L_QBP)
            stamp(1)
            A("  s_waitcnt lgkmcnt(0)")
            A("  s_barrier")
            stamp(14)
            zero(vAcc)
            A(f"  v_mov_b32 v{vPl}, v{vX+4}")
            A(f"  v_lshlrev_b32 v{vPh}, 16, v{vX+4}")
        if u == 15:
            redrows(vAcc, L_QAP)
            stamp(15)
        if u == 16:
            pre_b2()
        if uB and u == uB:
            b2()
        if uB and u > uB:
            if u == uB + 1:
                A("  s_waitcnt lgkmcnt(0)")
                stamp(3)
            left = NB - 1 - u
            k = u + 1 - done if left == 0 else min(u + 1 - done, 3)
            for _ in range(k):
                kproc((done - 16) // 8)((done - 16) % 8)
                done += 1
    if uB:
        assert done == NB
        while nxt < len(items):
            issue(nxt)
            nxt += 1
    else:
        A(f"  v_readlane_b32 {sOff}, v{vList}, {NS}")
        b2()
        A("  s_waitcnt lgkmcnt(0)")
        stamp(3)
        A(f"  s_waitcnt vmcnt({(NS-1)*8})")
        for j in range(8):
            kproc(0)(j)
            if j < cap:
                tk(KB, 0, sOff)(j)
        for b in range(1, NS):
            A(f"  s_waitcnt vmcnt({(NS-1-b)*8+cap})")
            for j in range(8):
                kproc(b)(j)
    stamp(4)
    def pool():
        A(f"  v_readlane_b32 {sNx}, v{vP3a}, s31")
        if E > 64:
            A(f"  v_readlane_b32 s30, v{vP3b}, s31")
            A(f"  s_cmp_ge_u32 s31, 64")
            A(f"  s_cselect_b32 {sNx}, s30, {sNx}")

    sFb, sExp, sDif, sOne = "s65", "s66", "s67", "s76"

    def fbhook(proc):
        def f(j):
            proc(j)
            if fbm == 4:
                if j == 1:
                    lab = f"L_fb{len(A.L)}"
                    A(f"  s_and_b32 s31, {sI}, 1")
                    A(f"  s_or_b32 s31, s31, {sW}")
                    A(f"  s_cmp_lg_u32 s31, 0")
                    A(f"  s_cbranch_scc1 {lab}")
                    A("  s_waitcnt lgkmcnt(0)")
                    A(f"  s_sub_i32 s31, {sExp}, {sFb}")
                    A(f"  s_mul_i32 s31, s31, {sOne}")
                    A(f"  s_add_u32 {sExp}, {sExp}, 8")
                    A(f"  v_mov_b32 v{vX}, s31")
                    A(f"  v_mov_b32 v{vX+1}, 31104")
                    A(f"  ds_write_b32 v{vX+1}, v{vX}")
                    A(f"  s_mov_b32 {sFb}, {sOne}")
                    A(f"  s_atomic_add {sFb}, s[78:79], 0 glc")
                    A(f"{lab}:")
                if j == 5:
                    A(f"  v_mov_b32 v{vX+1}, 31104")
                    A(f"  ds_read_b32 v{vX}, v{vX+1}")
                if j == 6:
                    A("  s_waitcnt lgkmcnt(0)")
                    A(f"  v_readfirstlane_b32 {sDif}, v{vX}")
            elif j == 2 and fbm == 1:
                A(f"  s_mov_b32 {sDif}, 0")
                A(f"  s_atomic_add {sOne}, s[78:79], 0")
            elif j == 2 and fbm == 2:
                A("  s_waitcnt lgkmcnt(0)")
                A(f"  s_mov_b32 {sDif}, 0")
                A(f"  s_load_dword {sFb}, s[78:79], 0 glc")
            elif j == 2 and fbm == 3:
                A("  s_waitcnt lgkmcnt(0)")
                A(f"  s_mov_b32 {sDif}, 0")
            elif j == 2:
                A("  s_waitcnt lgkmcnt(0)")
                A(f"  s_sub_i32 {sDif}, {sExp}, {sFb}")
                A(f"  s_mul_i32 {sDif}, {sDif}, {sOne}")
                A(f"  s_add_u32 {sExp}, {sExp}, 28")
                A(f"  s_mov_b32 {sFb}, {sOne}")
                A(f"  s_atomic_add {sFb}, s[78:79], 0 glc")
        return f

    def fbloops(base, top, srd, proc, cn):
        for suf, cp in (("", cn), ("_s", [int(ch) for ch in str(fS)]), ("_f", [int(ch) for ch in str(fF)])):
            A(".p2align 6")
            top(base + suf)
            stream_iter(tk(srd, 0, sOff), tk(srd, 0, sNx), fbhook(proc), cp)
            advance()
            A(f"  s_cmp_gt_i32 {sDif}, {fb}")
            A(f"  s_cbranch_scc1 {base}_s")
            A(f"  s_cmp_lt_i32 {sDif}, {-fb}")
            A(f"  s_cbranch_scc1 {base}_f")
            A(f"  s_branch {base}")

    def p1top(lab):
        A(f"{lab}:")
        A(f"  s_cmp_ge_u32 {sI}, {sIt}")
        A("  s_cbranch_scc1 L_p1d")
        A(f"  v_readlane_b32 {sNx}, v{vList}, {sI}")
        A(f"  s_add_u32 {sI}, {sI}, 1")

    if fb:
        A(f"  s_and_b32 s77, {sH}, 7")
        A(f"  s_lshl_b32 s77, s77, 2")
        A(f"  s_sub_u32 s77, {sIdx}, s77")
        A(f"  s_add_u32 s77, s77, {sH}")
        A(f"  s_and_b32 s77, s77, 31")
        cntoff("s78", "s77", "s79")
        A(f"  s_add_u32 s78, s28, s78")
        A(f"  s_addc_u32 s79, s29, 0")
        A(f"  s_xor_b32 {sOne}, {sAA}, 1")
        A(f"  s_mov_b32 {sExp}, {-5 if fbm == 4 else -16}")
        A(f"  s_mov_b32 {sFb}, {-5 if fbm == 4 else -16}")
        if fbm == 4:
            A(f"  s_sub_u32 s77, {sH}, {sS}")
            A(f"  s_and_b32 s77, s77, 31")
            cntoff("s78", "s77", "s79")
            A(f"  s_add_u32 s78, s28, s78")
            A(f"  s_addc_u32 s79, s29, 0")
            A(f"  v_mov_b32 v{vX}, 0")
            A(f"  v_mov_b32 v{vX+1}, 31104")
            A(f"  ds_write_b32 v{vX+1}, v{vX}")
        fbloops("L_k", p1top, KB, kproc(0), caps)
    A(".p2align 6")
    A("L_loop:")
    A(f"  s_cmp_ge_u32 {sI}, {sIt}")
    A(f"  s_cbranch_scc1 {'L_dyn0' if D else 'L_p1d'}")
    A(f"  v_readlane_b32 {sNx}, v{vList}, {sI}")
    A(f"  s_add_u32 {sI}, {sI}, 1")
    if D:
        A(f"  s_cmp_lg_u32 {sI}, {NT}")
        A("  s_cbranch_scc1 L_iter")
        A("L_take:")
        A(f"  s_mov_b32 {sTk}, 1")
        A(f"  s_atomic_add {sTk}, {CNTP}, 0 glc")
        A("L_iter:")
    stream_iter(tk(KB, 0, sOff), tk(KB, 0, sNx), kproc(0))
    advance()
    A("  s_branch L_loop")
    if D:
        A("L_dyn0:")
        A(f"  s_cmp_eq_u32 {sAA}, 1")
        A("  s_cbranch_scc1 L_p1d")
        A("  s_waitcnt lgkmcnt(0)")
        A(f"  s_add_u32 s31, {sTk}, 1")
        A(f"  s_cmp_ge_u32 s31, {D}")
        A("  s_cbranch_scc1 L_p1d")
        pool()
        A(f"  s_mov_b32 m0, {sI}")
        A(f"  s_add_u32 {sI}, {sI}, 1")
        A(f"  s_mov_b32 {sIt}, {sI}")
        A(f"  v_writelane_b32 v{vList}, {sNx}, m0")
        A(f"  s_mov_b32 {sTk}, 0x10000")
        A(f"  s_cmp_ge_u32 {sI}, {NMAX}")
        A("  s_cbranch_scc1 L_iter")
        A("  s_branch L_take")
    A("L_p1d:")
    stamp(9)
    A(f"  v_readlane_b32 {sNx}, v{vList}, 0")
    A(f"  s_mov_b32 {sI}, 1")
    A(f"  s_lshl_b32 s30, {sW}, 13")
    A(f"  s_mov_b32 s15, 0x20000")
    A(f"  s_cmp_eq_u32 {sAA}, 1")
    A("  s_cselect_b32 s12, s56, s36")
    A("  s_cselect_b32 s13, s57, s37")
    A("  s_cselect_b32 s14, s58, s38")
    prep_next("s30", sNx, True)
    stream_iter(tk(KB, 0, sOff), tkn, kproc(0))
    advance()
    dpp("v_max_f32", vMr, vMr, vMr, "row_ror:4")
    scbase()
    dpp("v_max_f32", vMr, vMr, vMr, "row_ror:8")
    A(f"  v_mul_f32 v{vM}, {sC}, v{vMr}")
    A(f"  s_cmp_eq_u32 {sAA}, 1")
    A("  s_cbranch_scc1 L_event")

    def vproc(j):
        if j == 0:
            A("  s_waitcnt lgkmcnt(0)")
            probs()
        pv(vAcc, U0 + 4 * j, vPl if j < 4 else vP1l, vPh if j < 4 else vP1h, [KVL[j & 3]])

    capsV = [int(ch) for ch in str(capV)] if capV else caps
    capsF = [min(capF, cap + 1 + j, cap + 7 - j) for j in range(8)]

    def p2top(lab):
        A(f"{lab}:")
        A(f"  ds_read_b64 v[{vS0}:{vS0+1}], v{vSc}")
        A(f"  v_add_u32 v{vSc}, 128, v{vSc}")
        A(f"  s_cmp_ge_u32 {sI}, {sIt}")
        A("  s_cbranch_scc1 L_p2last")
        A(f"  v_readlane_b32 {sNx}, v{vList}, {sI}")
        A(f"  s_add_u32 {sI}, {sI}, 1")

    def vproc_peek(j):
        vproc(j)
        if j == 0:
            A(f"  s_cmp_ge_i32 {sTk}, {P3 - thr}")
            A(f"  s_cselect_b32 s23, 1, 0")
            A(f"  s_add_u32 s31, {sI}, {pk}")
            A(f"  s_cmp_lt_u32 s31, {sIt}")
            A("  s_cbranch_scc1 L_nopeek")
            A(f"  s_mov_b32 {sTk}, 0")
            A(f"  s_atomic_add {sTk}, {CNTP}, {CO2} glc")
            A("L_nopeek:")

    if fb:
        fbloops("L_p2", p2top, VB, vproc, capsV)
    if pk:
        A("L_p2:")
        A(f"  s_mov_b32 {sTk}, -1")
    A(".p2align 6")
    p2top("L_p2s" if pk else "L_p2x" if fb else "L_p2")
    stream_iter(tk(VB, 0, sOff), tk(VB, 0, sNx), vproc_peek if pk else vproc, capsV)
    advance()
    if pk:
        A("  s_cmp_eq_u32 s23, 0")
        A("  s_cbranch_scc1 L_p2s")
        p2top("L_p2f")
        stream_iter(tk(VB, 0, sOff), tk(VB, 0, sNx), vproc, capsF)
        advance()
        A("  s_branch L_p2f")
    else:
        A("  s_branch L_p2")

    def p3tile(lab):
        A("  s_waitcnt lgkmcnt(0)")
        A(f"  s_add_u32 {sT1}, {sTk}, 1")
        A(f"  s_cmp_ge_u32 {sT1}, {P3}")
        A(f"  s_cbranch_scc1 {lab}")
        A(f"  s_lshr_b32 s31, {sT1}, 1")
        if D:
            A(f"  s_add_u32 s31, s31, {D}")
        pool()
        A(f"  s_bitcmp1_b32 {sT1}, 0")
        A(f"  s_cselect_b32 s31, {hx(TJ[4])}, 0")
        A(f"  s_xor_b32 {sNx}, {sNx}, s31")
        if fx:
            A(f"  s_cmp_ge_u32 {sT1}, {P3 - fx}")
            A(f"  s_cbranch_scc1 {lab}_f")

    def take():
        for _ in range(xa):
            A(f"  s_atomic_add {sAA}, {CNTP}, 0")
        A(f"  s_mov_b32 {sTk}, 1")
        A(f"  s_atomic_add {sTk}, {CNTP}, {CO2} glc")

    def fproc(j, r=U0):
        if j < 4:
            dots(r + 4 * j, vQ, j)
            if j == 3:
                red16(vT)
                softmax(vT, vM, vLs, vAcc, vPl, vPh)
        else:
            pv(vAcc, r + 4 * j, vPl, vPh, [KVL[j & 3]])

    def final_head(cur, proc):
        for k in range(LT, 8):
            cur(k)
        for k in range(8):
            ldx(KB if k < 4 else VB, slot(3) + 4 * k, sNx, TJ[k & 3])
        for j in range(JT, 8):
            if j > JT:
                A(f"  s_waitcnt vmcnt({16-j-1})")
            proc(j)

    def final_tile():
        issued = 8
        for k in range(8):
            w = f"  s_waitcnt vmcnt({issued-k-1})"
            loads = []
            while issued - k - 1 < cap and issued - 8 < min(nC, cap):
                loads.append(lambda q=issued - 8: wostream(q))
                issued += 1
            wait_issue(w, loads)
            fproc(k, slot(3))

    NWO = 16 - 8 * early
    nC = min(nC, NWO)
    wostream = lambda j: (wl(WOA, slot(2), vWo, sT0, 8192)(j) if j + 8 * early < 8 else wl(WOB, slot(1), vWo, sT0, 8192)(j + 8 * early - 8))
    capsP = [min(capP, cap + 1 + j, cap + 7 - j) for j in range(8)] if capP else caps
    JT = min(j for j in range(8) if j + 1 + capsP[j] > 8)
    LT = max([cap] + [j + 1 + capsP[j] for j in range(JT)])

    def split_iter(cur, proc, lab):
        assert steps(0, JT, cap, cur, None, proc, caps=capsP) == LT
        A(f"  s_waitcnt vmcnt({LT-JT-1})")
        p3tile(lab)
        if tke:
            take()
        steps(JT, 8, LT, cur, ft(sNx), proc, first_wait=False, caps=capsP)
        A(f"  s_mov_b32 {sOff}, {sNx}")

    def tail_iter(cur, proc):
        steps(JT, 8, LT, cur, wostream, proc, nmax=nC, first_wait=False, caps=capsP)

    A("L_p2last:")
    A("  s_waitcnt lgkmcnt(0)")
    stamp(10)
    vproc2 = lambda j: pv(vAcc, U0 + 4 * j, vPl if j < 4 else vP1l, vPh if j < 4 else vP1h, [KVL[j & 3]])
    woa = wl(WOA, slot(2), vWo, sT0, 8192)
    wob = wl(WOB, slot(1), vWo, sT0, 8192)
    if early:
        probs()
        stream_iter(tk(VB, 0, sOff), woa, vproc2)
        last_cur, last_proc = woa, (lambda j: None)
        if early == 2:
            stream_iter(woa, wob, last_proc)
            last_cur = wob
        take()
    else:
        take()
        probs()
        last_cur, last_proc = tk(VB, 0, sOff), vproc2
    split_iter(last_cur, last_proc, "L_tail0")
    A("L_loop3:")
    if not tke:
        take()
    split_iter(ft(sOff), fproc, "L_drain")
    A("  s_branch L_loop3")

    A("L_tail0:")
    stamp(6)
    tail_iter(last_cur, last_proc)
    A("  s_branch L_fin")
    A("L_drain:")
    stamp(6)
    tail_iter(ft(sOff), fproc)
    if fx:
        A("  s_branch L_fin")
        A("L_tail0_f:")
        stamp(6)
        final_head(last_cur, last_proc)
        A("  s_branch L_final")
        A("L_drain_f:")
        stamp(6)
        final_head(ft(sOff), fproc)
        A("L_final:")
        final_tile()
    A("L_fin:")
    nc = min(nC, cap)
    if wo == "C":
        for j in range(nc, NWO):
            wostream(j)
    elif wo == "CD":
        for j in range(nc, min(nF, NWO)):
            wostream(j)
        nc = max(nc, min(nF, NWO))
    fin(vAcc, vM, vLs, L_BPART)
    stamp(7)
    A("  s_waitcnt lgkmcnt(0)")
    A("  s_barrier")
    A(f"  ds_read_u16 v{vPl}, v{vCo} offset:{L_OA}")
    vPo, bx = 4, slot(0)

    def dpolls():
        for k in range(4):
            if k:
                A(f"  s_add_u32 {sT2}, s31, {k*WG_STRIDE}")
            A(f"  buffer_load_dwordx4 v[{bx+4*k}:{bx+4*k+3}], v{vPo}, {WS}, {sT2 if k else 's31'} offen sc1")

    if dp:
        A(f"  s_mov_b32 s64, s28\n  s_mov_b32 s65, s29\n  s_mov_b32 s66, {WS_SIZE}\n  s_mov_b32 s67, 0x20000")
        A(f"  v_and_b32 v{vPo}, 0xfc, v{vCo}")
        A(f"  v_lshlrev_b32 v{vPo}, 2, v{vPo}")
        A(f"  v_bfe_u32 v5, v0, 3, 1")
        A(f"  v_lshl_add_u32 v{vPo}, v5, 14, v{vPo}")
        A(f"  v_and_b32 v5, 16, v0")
        A(f"  v_cmp_ne_u32 s[76:77], 0, v5")
        A(f"  s_lshl_b32 s31, {sH}, 15")
        A(f"  s_add_u32 s31, s31, {W_BP}")
        A(f"  s_mov_b32 {sSpin}, {SPIN}")
    if "D" in wo:
        A("  s_barrier")
        if dp == 2:
            dpolls()
        for j in range(nc, NWO):
            wostream(j)
    if dp == 1:
        dpolls()
    zero(vAcc)
    A(f"  s_waitcnt vmcnt({12 if dp else 8}) lgkmcnt(0)")
    A(f"  v_lshlrev_b32 v{vPh}, 16, v{vPl}")
    pv(vAcc, slot(2), vPl, vPh, range(8))
    redrows(vAcc, L_O2A)
    zero(vAcc + 2, 6)
    A("  s_waitcnt lgkmcnt(0)")
    A("  s_barrier")
    if dp:
        zero(vAcc, 2)
        A("  s_branch L_dp_w")
        A("L_dp:")
        dpolls()
        A("L_dp_w:")
        A("  s_waitcnt vmcnt(0)")
        A(f"  v_max3_u32 v5, v{bx}, v{bx+1}, v{bx+2}")
        for i in range(3, 15, 2):
            A(f"  v_max3_u32 v5, v5, v{bx+i}, v{bx+i+1}")
        A(f"  v_max_u32 v5, v5, v{bx+15}")
        A(f"  v_max3_f32 v{vM}, v{bx+2}, v{bx+6}, v{bx+10}")
        A(f"  v_cmp_eq_u32 vcc, -1, v5")
        A(f"  v_max_f32 v{vM}, v{vM}, v{bx+14}")
        A(f"  s_sub_u32 {sSpin}, {sSpin}, 1")
        A("  s_cbranch_scc1 L_dp_ok")
        A("  s_cbranch_vccnz L_dp")
        A("L_dp_ok:")
        dpp("v_max_f32", vM, vM, vM, "row_ror:8")
        for k in range(4):
            A(f"  v_cndmask_b32 v{bx+4*k}, v{bx+4*k}, v{bx+4*k+1}, s[76:77]")
        for k in range(4):
            A(f"  v_sub_f32 v{bx+4*k+2}, v{bx+4*k+2}, v{vM}")
        for k in range(4):
            A(f"  v_exp_f32 v{bx+4*k+2}, v{bx+4*k+2}")
        A(f"  v_mul_f32 v6, v{bx+2}, v{bx+3}")
        A(f"  v_mul_f32 v7, v{bx+2}, v{bx}")
        for k in range(1, 4):
            A(f"  v_fmac_f32 v6, v{bx+4*k+2}, v{bx+4*k+3}")
            A(f"  v_fmac_f32 v7, v{bx+4*k+2}, v{bx+4*k}")
        dpp("v_add_f32", 6, 6, 6, "row_ror:8")
        dpp("v_add_f32", 7, 7, 7, "row_ror:8")
        A("  v_rcp_f32 v6, v6")
        A("  v_mul_f32 v7, v7, v6")
        A(f"  v_cvt_pk_bf16_f32 v{vPl}, v7, 0")
        stamp(11)
    else:
        A(f"  ds_read_u16 v{vPl}, v{vCo} offset:{L_OB}")
        zero(vAcc, 2)
        A("  s_waitcnt vmcnt(0) lgkmcnt(0)")
    A(f"  v_lshlrev_b32 v{vPh}, 16, v{vPl}")
    pv(vAcc, slot(1), vPl, vPh, range(8))
    redrows(vAcc, L_O2B)
    stamp(8)
    if stamps:
        A(f"  s_cmp_lg_u32 {sW}, 0")
        A("  s_cbranch_scc1 L_nost0")
        A(f"  s_lshl_b32 {sT0}, s2, 8")
        A(f"  s_add_u32 {sT0}, {sT0}, {STAMP1}")
        A(f"  v_lshl_add_u32 v4, v0, 2, {sT0}")
        A("  s_mov_b64 exec, 0xffff")
        A("  global_store_dword v4, v252, s[28:29]")
        A("  s_mov_b64 exec, -1")
        A("L_nost0:")
    A("  s_waitcnt lgkmcnt(0)")
    A("  s_barrier")
    A("  s_endpgm")

    capsA = [min(capA, cap + 1 + j, cap + 7 - j) for j in range(8)]

    def akproc(j):
        for m in range(4):
            for i in range(8):
                d = vSA + 4 * i + (j & 3)
                A(f"  v_dot2_f32_bf16 v{d}, v{U0+4*j+m}, v{vQA+4*i+m}, {'0' if m == 0 else 'v%d' % d}")
        if j & 3 == 3:
            for a, b, bank in ((0, 0, 0x3), (1, 2, 0x3), (0, 1, 0xc), (1, 3, 0xc)):
                for i in range(8):
                    dpp("v_add_f32", vRA + 2 * i + a, vSA + 4 * i + b, vSA + 4 * i + b, "row_ror:8", bank)
            for a, bank in ((0, 0x5), (1, 0xa)):
                for i in range(8):
                    dpp("v_add_f32", vTA + i, vRA + 2 * i + a, vRA + 2 * i + a, "row_half_mirror", bank)
            for ctrl in ("quad_perm:[1,0,3,2]", "quad_perm:[2,3,0,1]"):
                for i in range(8):
                    dpp("v_add_f32", vTA + i, vTA + i, vTA + i, ctrl)
            for i in range(8):
                A(f"  v_max_f32 v{vMrA+i}, v{vMrA+i}, v{vTA+i}")
                A(f"  ds_write_b32 v{vX+4}, v{vTA+i} offset:{4096+128*i+4*(j>>2)}")

    def avproc(j):
        if j == 0:
            A("  s_waitcnt lgkmcnt(0)")
            for i in range(16):
                A(f"  v_fma_f32 v{vSA+i}, v{vSA+i}, {sC}, -v{vMA+i//2}")
            for i in range(16):
                A(f"  v_exp_f32 v{vSA+i}, v{vSA+i}")
            for i in range(16):
                A(f"  v_cvt_pk_bf16_f32 v{vCfA+2*i}, v{vSA+i}, 0")
                A(f"  v_add_f32 v{vLA+i//2}, v{vLA+i//2}, v{vSA+i}")
            for i in range(16):
                A(f"  v_lshlrev_b32 v{vCfA+2*i+1}, 16, v{vCfA+2*i}")
        for i in range(8):
            c = vCfA + 4 * i + 2 * (j >> 2)
            pv(vAccA + 8 * i, U0 + 4 * j, c, c + 1, [KVL[j & 3]])

    A("L_event:")
    A("  s_barrier")
    for i in range(8):
        A(f"  ds_read_b128 v[{vQA+4*i}:{vQA+4*i+3}], v{vX+5} offset:{L_QA+256*i}")
    for i in range(8):
        A(f"  v_mov_b32 v{vMrA+i}, 0xff7fffff")
        A(f"  v_mov_b32 v{vLA+i}, 0")
    A(f"  v_mov_b32 v{vX+4}, v{vSc}")
    A("  s_mov_b32 s31, 4")
    A("  s_waitcnt lgkmcnt(0)")
    A("L_ak:")
    A("  s_sub_u32 s31, s31, 1")
    A(f"  s_add_u32 {sNx}, {sOff}, 32768")
    A("  s_cmp_eq_u32 s31, 0")
    A("  s_cselect_b32 s12, s60, s56")
    A("  s_cselect_b32 s13, s61, s57")
    A(f"  s_cselect_b32 {sNx}, s30, {sNx}")
    stream_iter(tka(KA, sOff), tka(NXT, sNx), akproc, capsA)
    A(f"  s_mov_b32 {sOff}, {sNx}")
    A(f"  v_add_u32 v{vX+4}, 1024, v{vX+4}")
    A("  s_cbranch_scc0 L_ak")
    for i in range(8):
        dpp("v_max_f32", vMrA + i, vMrA + i, vMrA + i, "row_ror:4")
    for i in range(8):
        dpp("v_max_f32", vMrA + i, vMrA + i, vMrA + i, "row_ror:8")
    for i in range(8):
        A(f"  v_mul_f32 v{vMA+i}, {sC}, v{vMrA+i}")
    zero(vAccA, 64)
    A(f"  v_mov_b32 v{vX+4}, v{vSc}")
    A(f"  v_readlane_b32 s30, v{vList}, 0")
    A("  s_mov_b32 s31, 4")
    A("L_av:")
    for i in range(8):
        A(f"  ds_read_b64 v[{vSA+2*i}:{vSA+2*i+1}], v{vX+4} offset:{4096+128*i}")
    A("  s_sub_u32 s31, s31, 1")
    A(f"  s_add_u32 {sNx}, {sOff}, 32768")
    A("  s_cmp_eq_u32 s31, 0")
    A("  s_cselect_b32 s12, s36, s60")
    A("  s_cselect_b32 s13, s37, s61")
    A("  s_cselect_b32 s14, s38, s62")
    prep_next(sNx, "s30", False)
    stream_iter(tka(VA, sOff), tkn, avproc, capsA)
    advance()
    A(f"  v_add_u32 v{vX+4}, 1024, v{vX+4}")
    A("  s_cmp_eq_u32 s31, 0")
    A("  s_cbranch_scc0 L_av")
    for i in range(8):
        fin(vAccA + 8 * i, vMA + i, vLA + i, L_APART + RS * i)
    A("  s_waitcnt lgkmcnt(0)")
    A("  s_barrier")
    stamp(5)
    A("  s_branch L_p2")

    hL8, hZ, hA = 1, 2, 3
    hD = 8
    hE = 40
    hW, hL, hO, h16 = 58, 66, 68, 72
    sWG = "s30"

    def guard(r, n):
        for i in range(n):
            A(f"  v_min_u32 v{r+i}, -2, v{r+i}")

    def anysent(r, n, lab):
        A(f"  v_max3_u32 v{hW}, v{r}, v{r+1}, v{r+2}")
        i = 3
        while i < n:
            if i + 1 < n:
                A(f"  v_max3_u32 v{hW}, v{hW}, v{r+i}, v{r+i+1}")
                i += 2
            else:
                A(f"  v_max_u32 v{hW}, v{hW}, v{r+i}")
                i += 1
        A(f"  v_cmp_eq_u32 vcc, -1, v{hW}")
        A(f"  s_sub_u32 {sSpin}, {sSpin}, 1")
        A(f"  s_cbranch_scc1 {lab}_ok")
        A(f"  s_cbranch_vccnz {lab}")
        A(f"{lab}_ok:")

    def sum4(ldsoff, wsoff):
        for v in range(4):
            A(f"  ds_read_b64 v[{hD+2*v}:{hD+2*v+1}], v{hL8} offset:{ldsoff+v*PS}")
        A("  s_waitcnt lgkmcnt(0)")
        A(f"  v_pk_add_f32 v[{hD}:{hD+1}], v[{hD}:{hD+1}], v[{hD+2}:{hD+3}]")
        A(f"  v_pk_add_f32 v[{hD+4}:{hD+5}], v[{hD+4}:{hD+5}], v[{hD+6}:{hD+7}]")
        A(f"  v_pk_add_f32 v[{hD}:{hD+1}], v[{hD}:{hD+1}], v[{hD+4}:{hD+5}]")
        guard(hD, 2)
        A(f"  buffer_store_dwordx2 v[{hD}:{hD+1}], v{hL8}, {WS}, {sWG} offen offset:{wsoff} sc1")

    def qgather(lab, sbase, ldsaddr, ldsoff):
        A(f"  s_mov_b32 {sSpin}, {SPIN}")
        A(f"{lab}:")
        for p in range(8):
            if p:
                A(f"  s_add_u32 {sT2}, {sbase}, {p*WG_STRIDE}")
            A(f"  buffer_load_dwordx2 v[{hD+2*p}:{hD+2*p+1}], v{hL8}, {WS}, {sT2 if p else sbase} offen sc1")
        A("  s_waitcnt vmcnt(0)")
        anysent(hD, 16, lab)
        for st in (1, 2, 4):
            for p in range(0, 8, 2 * st):
                A(f"  v_pk_add_f32 v[{hD+2*p}:{hD+2*p+1}], v[{hD+2*p}:{hD+2*p+1}], v[{hD+2*(p+st)}:{hD+2*(p+st)+1}]")
        A(f"  v_cvt_pk_bf16_f32 v{hD}, v{hD}, v{hD+1}")
        A(f"  ds_write_b32 v{ldsaddr}, v{hD} offset:{ldsoff}")

    def merge(n, norm, o, e, st):
        M = hO + 2
        A(f"  v_max3_f32 v{M}, v{e}, v{e+st}, v{e+2*st}")
        i = 3
        while i < n:
            if i + 1 < n:
                A(f"  v_max3_f32 v{M}, v{M}, v{e+st*i}, v{e+st*(i+1)}")
                i += 2
            else:
                A(f"  v_max_f32 v{M}, v{M}, v{e+st*i}")
                i += 1
        for p in range(n):
            A(f"  v_sub_f32 v{hW+p}, v{e+st*p}, v{M}")
        for p in range(n):
            A(f"  v_exp_f32 v{hW+p}, v{hW+p}")
        A(f"  v_mul_f32 v{M+1}, v{hW}, v{e+1}")
        A(f"  v_mul_f32 v{hO}, v{hW}, v{o}")
        A(f"  v_mul_f32 v{hO+1}, v{hW}, v{o+1}")
        for p in range(1, n):
            A(f"  v_fmac_f32 v{M+1}, v{hW+p}, v{e+st*p+1}")
            A(f"  v_fmac_f32 v{hO}, v{hW+p}, v{o+st*p}")
            A(f"  v_fmac_f32 v{hO+1}, v{hW+p}, v{o+st*p+1}")
        if norm:
            A(f"  v_rcp_f32 v{hL}, v{M+1}")
            A(f"  v_mul_f32 v{hO}, v{hO}, v{hL}")
            A(f"  v_mul_f32 v{hO+1}, v{hO+1}, v{hL}")
            A(f"  v_cvt_pk_bf16_f32 v{hO}, v{hO}, v{hO+1}")

    def combine4(a8, az, ldsoff, so, wsoff):
        for v in range(4):
            A(f"  ds_read_b64 v[{hE+2*v}:{hE+2*v+1}], v{az} offset:{ldsoff+v*PS+512}")
        for v in range(4):
            A(f"  ds_read_b64 v[{hD+2*v}:{hD+2*v+1}], v{a8} offset:{ldsoff+v*PS}")
        A("  s_waitcnt lgkmcnt(0)")
        merge(4, False, hD, hE, 2)
        guard(hO, 4)
        A(f"  buffer_store_dwordx4 v[{hO}:{hO+3}], v{h16}, {WS}, {so} offen offset:{wsoff} sc1")

    def combine8(lab, sbase, stride, ldsoff, bar=False):
        def polls():
            for p in range(8):
                if p:
                    A(f"  s_add_u32 {sT2}, {sbase}, {p*stride}")
                so = sT2 if p else sbase
                A(f"  buffer_load_dwordx4 v[{hD+4*p}:{hD+4*p+3}], v{h16}, {WS}, {so} offen sc1")
        A(f"  s_mov_b32 {sSpin}, {SPIN}")
        if bar:
            polls()
            A("  s_barrier")
            A(f"  s_branch {lab}_w")
        A(f"{lab}:")
        polls()
        A(f"{lab}_w:")
        A("  s_waitcnt vmcnt(0)")
        anysent(hD, 32, lab)
        merge(8, True, hD, hD + 2, 4)
        A(f"  ds_write_b32 v{hA}, v{hO} offset:{ldsoff}")

    A("L_helper:")
    if prio:
        A(f"  s_setprio {prio}")
    A(f"  s_lshl_b32 {sWG}, s2, 12")
    for i in range(4):
        A(f"  v_mov_b32 v{hD+i}, -1")
    A(f"  s_mov_b32 s66, {WS_SIZE}\n  s_mov_b32 s67, 0x20000\n  s_mov_b32 s78, 4096\n  s_mov_b32 s79, 0x20000")
    A("  s_waitcnt lgkmcnt(0)")
    A("  s_mov_b32 s64, s28\n  s_mov_b32 s65, s29")
    for j in range(4 if not noclr & 1 else 0):
        A(f"  buffer_store_dwordx4 v[{hD}:{hD+3}], v{vL16}, {WS}, {sWG} offen offset:{j*1024} sc1")
    A("  s_mov_b32 s76, s24\n  s_mov_b32 s77, s25")
    A(f"  s_lshl_b32 {sT0}, {sH}, 3")
    A(f"  s_add_u32 s80, s26, {sT0}\n  s_addc_u32 s81, s27, 0")
    A(f"  s_lshl_b32 s31, {sH}, 13")
    A(f"  s_add_u32 s31, s31, {W_AP}")
    A(f"  s_cmp_eq_u32 {sAA}, 0")
    A("  s_cbranch_scc1 L_h_noclr")
    A(f"  s_add_u32 {sT2}, s31, 4096")
    for j in range(8 if not noclr & 2 else 0):
        A(f"  buffer_store_dwordx4 v[{hD}:{hD+3}], v{vL16}, {WS}, {'s31' if j < 4 else sT2} offen offset:{(j%4)*1024} sc1")
    A("L_h_noclr:")
    if pt & 1:
        A(f"  s_lshl_b32 {sT0}, {sH}, 23")
        A(f"  v_lshlrev_b32 v6, 21, v0")
        A(f"  v_add_u32 v7, {sT0}, v6")
        A("  s_mov_b64 exec, 15")
        A(f"  global_load_dword v{hE}, v7, s[16:17] nt")
        A(f"  global_load_dword v{hE+1}, v6, s[10:11] nt")
        A("  s_mov_b64 exec, -1")
    A(f"  v_lshlrev_b32 v4, 2, v0")
    A(f"  v_lshlrev_b32 v5, 3, v0")
    A("  s_waitcnt vmcnt(0)")
    A(f"  v_mov_b32 v{h16}, v{vL16}")
    A(f"  v_mov_b32 v{hA}, v4")
    A(f"  v_mov_b32 v{hL8}, v5")
    A(f"  v_mov_b32 v{hZ}, 0")
    A(f"  s_mov_b32 {sTk}, 1")
    A(f"  s_atomic_add {sTk}, {DBGP}, 0 glc")
    A("  s_waitcnt lgkmcnt(0)")
    stamp(1)
    A("  s_barrier")
    sum4(L_QBP, W_QB)
    A(f"  s_add_u32 {sTk}, {sTk}, 1")
    A(f"  s_mov_b32 {sSpin}, {SPIN}")
    A("L_h_flag:")
    A(f"  s_cmp_ge_u32 {sTk}, 8")
    A("  s_cbranch_scc1 L_h_flag_ok")
    if fl:
        A(f"  global_load_dword v{hE}, v{hZ}, {DBGP} sc1")
        A("  s_waitcnt vmcnt(0)")
        A(f"  v_readfirstlane_b32 {sTk}, v{hE}")
        A(f"  s_sub_u32 {sSpin}, {sSpin}, 1")
    else:
        A(f"  s_mov_b32 {sTk}, 0")
        A(f"  s_atomic_add {sTk}, {DBGP}, 0 glc")
        A(f"  s_sub_u32 {sSpin}, {sSpin}, 1")
        A("  s_waitcnt lgkmcnt(0)")
    A("  s_cbranch_scc0 L_h_flag")
    A("L_h_flag_ok:")
    stamp(2)
    A(f"  s_lshl_b32 {sT0}, {sH}, 15")
    qgather("L_h_qb", sT0, hA, L_Q)
    stamp(3)
    A("  s_waitcnt lgkmcnt(0)")
    A("  s_barrier")
    sum4(L_QAP, W_QA)
    if pt & 2:
        A(f"  s_lshl_b32 {sT0}, {sH}, 23")
        A(f"  v_lshlrev_b32 v6, 21, v0")
        A(f"  v_add_u32 v7, {sT0}, v6")
        A("  s_mov_b64 exec, 15")
        A(f"  global_load_dword v{hE}, v7, s[18:19] nt")
        A(f"  global_load_dword v{hE+1}, v6, s[12:13] nt")
        A(f"  global_load_dword v{hE+2}, v6, s[22:23] nt")
        A("  s_mov_b64 exec, -1")
    A(f"  s_mov_b32 {sSpin}, {SPIN}")
    A("L_h_all:")
    A(f"  global_load_dword v{hD+4}, v{hA}, s[26:27] sc1")
    A("  s_waitcnt vmcnt(0)")
    A(f"  v_cmp_gt_u32 vcc, 8, v{hD+4}")
    A("  s_nop 1")
    A("  s_and_b32 vcc_lo, vcc_lo, 0x55555555")
    A("  s_and_b32 vcc_hi, vcc_hi, 0x55555555")
    A(f"  s_sub_u32 {sSpin}, {sSpin}, 1")
    A("  s_cbranch_scc1 L_h_all_ok")
    A("  s_cmp_eq_u64 vcc, 0")
    A("  s_cbranch_scc0 L_h_all")
    A("L_h_all_ok:")
    stamp(4)
    A(f"  s_cmp_eq_u32 {sAA}, 0")
    A("  s_cbranch_scc1 L_h_noaa")
    A(f"  s_lshr_b32 {sT0}, {sH}, 3")
    A(f"  s_lshl_b32 {sT0}, {sT0}, 18")
    A(f"  s_add_u32 {sT0}, {sT0}, {W_QA}")
    A(f"  v_mov_b32 v6, v{hA}")
    A(f"  s_mov_b32 {sT1}, 8")
    A("L_h_qa_next:")
    qgather("L_h_qa", sT0, 6, L_QA)
    A(f"  s_add_u32 {sT0}, {sT0}, {8*WG_STRIDE}")
    A("  v_add_u32 v6, 256, v6")
    A(f"  s_sub_u32 {sT1}, {sT1}, 1")
    A(f"  s_cmp_lg_u32 {sT1}, 0")
    A("  s_cbranch_scc1 L_h_qa_next")
    A("  s_waitcnt lgkmcnt(0)")
    A("  s_barrier")
    A("  s_barrier")
    A(f"  v_mov_b32 v6, v{hL8}")
    A(f"  v_mov_b32 v7, 0")
    A(f"  s_mov_b32 {sT1}, 8")
    A("L_h_ap_next:")
    combine4(6, 7, L_APART, "s31", 0)
    A(f"  s_add_u32 s31, s31, 1024")
    A(f"  v_add_u32 v6, {RS}, v6")
    A(f"  v_add_u32 v7, {RS}, v7")
    A(f"  s_sub_u32 {sT1}, {sT1}, 1")
    A(f"  s_cmp_lg_u32 {sT1}, 0")
    A("  s_cbranch_scc1 L_h_ap_next")
    A("L_h_noaa:")
    A(f"  s_lshr_b32 {sT0}, {sH}, 3")
    A(f"  s_lshl_b32 {sT0}, {sT0}, 16")
    A(f"  s_and_b32 {sT1}, {sH}, 7")
    A(f"  s_lshl_b32 {sT1}, {sT1}, 10")
    A(f"  s_add_u32 {sT0}, {sT0}, {sT1}")
    A(f"  s_add_u32 {sT0}, {sT0}, {W_AP}")
    A(f"  v_lshlrev_b32 v6, 13, v0")
    A(f"  s_mov_b32 {sSpin}, {SPIN}")
    A("  s_mov_b64 exec, 0xff")
    A("L_h_apw:")
    if slp:
        A(f"  s_sleep {slp}")
    A(f"  buffer_load_dword v{hD}, v6, {WS}, {sT0} offen offset:12 sc1")
    A("  s_waitcnt vmcnt(0)")
    A(f"  v_cmp_eq_u32 vcc, -1, v{hD}")
    A(f"  s_sub_u32 {sSpin}, {sSpin}, 1")
    A("  s_cbranch_scc1 L_h_apw_ok")
    A("  s_cbranch_vccnz L_h_apw")
    A("L_h_apw_ok:")
    A("  s_mov_b64 exec, -1")
    combine8("L_h_ap8", sT0, 8192, L_OA)
    stamp(5)
    if touch:
        A(f"  s_lshl_b32 {sT0}, {sH}, 18")
        A(f"  v_mov_b32 v6, {sT0}")
        A("  s_mov_b64 exec, 1")
        A(f"  global_load_dword v{hD}, v6, s[12:13] nt")
        A(f"  global_load_dword v{hD+1}, v6, s[22:23] nt")
        if touch > 1:
            A(f"  global_load_dword v{hD+2}, v{hZ}, s[24:25] nt")
        A("  s_waitcnt vmcnt(0)")
        A("  s_mov_b64 exec, -1")
    A(f"  s_lshl_b32 {sT0}, {sH}, 15")
    A(f"  s_add_u32 {sT0}, {sT0}, {W_BP}")
    A("  v_and_b32 v6, 31, v0")
    A("  v_lshlrev_b32 v6, 15, v6")
    A("  v_lshrrev_b32 v7, 5, v0")
    A("  v_lshl_add_u32 v6, v7, 9, v6")
    A(f"  s_lshl_b32 {sT1}, {sS}, 12")
    A(f"  s_lshl_b32 s31, {sH}, 4")
    A(f"  s_add_u32 {sT1}, {sT1}, s31")
    A(f"  s_add_u32 {sT1}, {sT1}, {W_O2B}")
    A("  v_xor_b32 v7, 1, v7")
    A("  v_lshlrev_b32 v7, 11, v7")
    A(f"  s_lshl_b32 s31, {sS}, 8")
    A(f"  s_lshl_b32 {sTk}, {sH}, 3")
    A(f"  s_add_u32 s31, s31, {sTk}")
    A("  s_waitcnt lgkmcnt(0)")
    A("  s_barrier")
    stamp(6)
    combine4(hL8, hZ, L_BPART, sWG, W_BP)
    if "D" in wo and (dp or not poll1):
        A("  s_barrier")
    if not dp:
        combine8("L_h_bp8", sT0, WG_STRIDE, L_OB, "D" in wo and poll1)
    stamp(7)
    A("  s_waitcnt lgkmcnt(0)")
    A("  s_barrier")
    sum4(L_O2A, W_O2A)
    A("  s_barrier")
    sum4(L_O2B, W_O2B)
    stamp(8)
    A(f"  s_mov_b32 {sSpin}, {SPIN}")
    if not pipe:
        A("L_h_fin:")
        A(f"  buffer_load_dwordx4 v[{hE}:{hE+3}], v6, {WS}, {sT1} offen sc1")
        A("  s_waitcnt vmcnt(0)")
        anysent(hE, 4, "L_h_fin")
    else:
        for r in range(2):
            A(f"  buffer_load_dwordx4 v[{hD+4*r}:{hD+4*r+3}], v6, {WS}, {sT1} offen sc1")
        A("L_h_fin:")
        for r in range(3):
            q = (r + 2) % 3
            A(f"  buffer_load_dwordx4 v[{hD+4*q}:{hD+4*q+3}], v6, {WS}, {sT1} offen sc1")
            A("  s_waitcnt vmcnt(2)")
            A(f"  v_max3_u32 v{hW}, v{hD+4*r}, v{hD+4*r+1}, v{hD+4*r+2}")
            A(f"  v_max_u32 v{hW}, v{hW}, v{hD+4*r+3}")
            A(f"  v_cmp_eq_u32 vcc, -1, v{hW}")
            for i in range(4):
                A(f"  v_mov_b32 v{hE+i}, v{hD+4*r+i}")
            A("  s_cbranch_vccz L_h_fin_ok")
        A(f"  s_sub_u32 {sSpin}, {sSpin}, 1")
        A("  s_cbranch_scc0 L_h_fin")
        A("L_h_fin_ok:")
    for ctrl in ("row_ror:8", "row_ror:4", "quad_perm:[2,3,0,1]", "quad_perm:[1,0,3,2]"):
        for i in range(4):
            dpp("v_add_f32", hE + i, hE + i, hE + i, ctrl)
    for i in range(4):
        A(f"  v_mov_b32 v{hE+4+i}, v{hE+i}")
    for i in range(4):
        A(f"  v_permlane16_swap_b32 v{hE+i}, v{hE+4+i}")
    for i in range(4):
        A(f"  v_add_f32 v{hE+i}, v{hE+i}, v{hE+4+i}")
    A(f"  v_cvt_pk_bf16_f32 v{hE}, v{hE}, v{hE+1}")
    A(f"  v_cvt_pk_bf16_f32 v{hE+1}, v{hE+2}, v{hE+3}")
    A("  s_mov_b32 exec_lo, 1")
    A("  s_mov_b32 exec_hi, 1")
    A(f"  buffer_store_dwordx2 v[{hE}:{hE+1}], v7, {OUT}, s31 offen {osc}")
    if stamps:
        A("  s_mov_b64 exec, -1")
        stamp(9, True)
        A(f"  s_lshl_b32 {sT0}, s2, 8")
        A(f"  s_add_u32 {sT0}, {sT0}, {STAMP1+64}")
        A(f"  v_lshl_add_u32 v253, v0, 2, {sT0}")
        A("  s_mov_b64 exec, 0xffff")
        A("  global_store_dword v253, v252, s[28:29]")
        A("  v_mov_b32 v8, s98\n  v_mov_b32 v9, s99\n  v_mov_b32 v10, s96\n  v_mov_b32 v11, s97")
        A(f"  s_lshl_b32 {sT0}, s2, 4")
        A(f"  s_add_u32 {sT0}, {sT0}, {STAMP0}")
        A(f"  v_mov_b32 v253, {sT0}")
        A("  s_mov_b64 exec, 1")
        A("  global_store_dwordx4 v253, v[8:11], s[28:29]")
    A("L_end:")
    A("  s_endpgm")
    A('.section .rodata,"a"')
    A(".p2align 6")
    A(f".amdhsa_kernel {KN}")
    A("  .amdhsa_next_free_vgpr 256")
    A("  .amdhsa_next_free_sgpr 102")
    A("  .amdhsa_accum_offset 256")
    A("  .amdhsa_group_segment_fixed_size 0")
    A("  .amdhsa_kernarg_size 104")
    A("  .amdhsa_user_sgpr_count 2")
    A("  .amdhsa_user_sgpr_kernarg_segment_ptr 1")
    A("  .amdhsa_system_sgpr_workgroup_id_x 1")
    A(".end_amdhsa_kernel")
    A.pad()
    return A.text()


if __name__ == "__main__":
    names = []
    for spec in sys.argv[1:]:
        out = None
        if "@" in spec:
            spec, out = spec.split("@")
        kv = dict(x.split("=") for x in spec.split(",") if x)
        p = {k: (v.replace("+", " ") if k in ("pol", "wo", "osc") else int(v)) for k, v in kv.items()}
        name = out or "k_" + spec.replace("=", "").replace(",", "_").replace("+", "") + ".s"
        open(name, "w").write(gen(**p))
        names.append(name)
    print(" ".join(os.path.relpath(n, "code") for n in names))
```

```python
import sys, os
sys.path.insert(0, os.path.dirname(os.path.abspath(__file__)))
from asmlib import Asm

KN = "concat_heads__sliding_block_cached__mha_block_cached__decode_kernel"
HEADER = open(os.path.join(os.path.dirname(os.path.abspath(__file__)), "header.txt")).read()

WG_STRIDE = 4096
W_QB, W_QA, W_BP, W_O2B, W_O2A, W_CNT = 0, 512, 1024, 2048, 2560, 3072
W_AP = 1 << 20
WS_SIZE = (1 << 20) + 32 * 8192
STAMP0 = 0x20000000
STAMP1 = 0x20100000
PS = 544
RS = 4 * PS
L_QBP, L_QAP, L_BPART, L_O2A, L_O2B, L_APART = 0, RS, 2 * RS, 3 * RS, 4 * RS, 5 * RS
L_Q = 13 * RS
L_OA = L_Q + 256
L_OB = L_OA + 256
L_QA = L_OB + 256
L_SC = 32768
LDS_BYTES = 65536
SPIN = 1 << 20
DOC = '''
; Fused single-launch decode step, 256 workgroups (one per CU) x 5 waves; written by gen/gen.py (own generator).
;   workgroup w: head h = w>>3, slice s = w&7.  waves 0-3 stream HBM with a fixed number of 1-KiB loads in flight,
;   wave 4 (helper) does the hand-offs between workgroups.
;   1. q = x@wq: 128-row slices per workgroup, 8 partials per head exchanged through d_ws (K loads are prefetched meanwhile)
;      dealt dynamically as fused K+V tiles (online softmax).  Branch A (GQA window) is done by one workgroup per head group
;      between its two phases.
;   3. partial (o, max, sum) boxes are merged per head, o@wo is done in 128x128 blocks, 32 partial rows are summed per column.
;   write-through stores; readers poll with sc1 loads until no word holds the sentinel.  All spins are bounded.
'''
PATS = [
    "j0:10 j1:11 j2:12 v0:13 v1:14 s0:15 s1:16 s2:17 i0:18 i1:19 i2:20 i3:21 i4:22 h0: h1: h2: h3: h4:",
    "j0:10+12 j1:14+19 j2:22 v0:21 v1:13 s0:14 s1:15+18 s2:11 i0:10 i1:15 i2:16+17 i3:17 i4:20 h0: h1: h2:10+17 h3:20 h4:13",
    "j0:20 j1:11 j2:18+22 v0:13 v1:21 s0:14 s1:10 s2:17 i0:16+19 i1:15 i2:12 i3:18 i4:16 h0:10 h1:17 h2:10 h3:15+21 h4:10",
    "j0:12 j1:11 j2:13 v0:16 v1:21 s0:14+22 s1:10 s2:17 i0:18 i1:15 i2:21+22 i3:20+22 i4:19 h0: h1:16 h2:21 h3:15+18 h4:22",
    "j0:10+19 j1:16+22 j2:22 v0:21 v1:13 s0:20 s1:12 s2:11+14 i0:14 i1:15 i2:19 i3:17 i4:11+18 h0:13 h1: h2:13 h3: h4:13+16",
    "j0:13 j1:17+21 j2:11+12 v0:20 v1:21 s0:13+14 s1:16 s2:18+22 i0:15 i1:18 i2:12 i3:13+19 i4:10+21 h0:18 h1: h2: h3: h4:15",
    "j0:12+22 j1:11+19 j2:21 v0:14 v1:13 s0:15 s1:16 s2:17 i0:11+22 i1:10 i2:12+13 i3:18 i4:20 h0:20 h1:12 h2:19 h3: h4:21",
    "j0:9 j1:19+20 j2:13 v0:21 v1:11 s0:9+10 s1:14 s2:17 i0:15 i1:12 i2:20+21 i3:18 i4:22 h0:10 h1:13+17 h2:10 h3:22 h4:10+15 k0:16 k1:8",
    "j0:16 j1:12 j2:13 v0:21 v1:11 s0:14 s1:10 s2:17+19+21 i0:8 i1:22 i2:19 i3:11+18+21 i4:20 h0:13 h1:19 h2:8 h3: h4:22 k0:8+9+15 k1:15",
    "j0:21 j1:9+11+19 j2:9 v0:12+22 v1:13 s0:12+14+15+19 s1:16 s2:17 i0:11+22 i1:18 i2:10 i3:20 i4:12 h0:13 h1:10+18 h2: h3: h4: k0:8 k1:14",
    "j0:8 j1:14 j2:20 v0:9+13 v1:10+12 s0:13+18 s1:11+12 s2:17 i0:15 i1:19 i2:21 i3:22 i4:13 h0: h1:17 h2:8 h3: h4:10+14 k0:12+16 k1:10+13",
    "j0:8 j1:21 j2:22 v0:9 v1:11 s0:10 s1:11+14 s2:17 i0:19 i1:15 i2:13+21 i3:12+19 i4:8+18 h0:10 h1:9+15+17 h2: h3: h4: k0:16 k1:13+15+20",
    "j0:12+18 j1:8+11 j2:9 v0:16 v1:15 s0:10 s1:14 s2:17+18 i0:13+21 i1:16+19 i2:12+16+21 i3:20 i4:22 h0:21 h1: h2:16 h3: h4:15 k0:13 k1:8",
    "j0:9+21 j1:8+21 j2:15 v0:10+12 v1:13 s0:18 s1:10 s2:11 i0:16 i1:19 i2:9+22 i3:20 i4:12+14+15 h0: h1:12 h2: h3:10 h4:16 k0:8 k1:17+22",
    "j0:13 j1:12+13 j2:8 v0:21 v1:11+22 s0:8+15 s1:14 s2:17 i0:16 i1:22 i2:20 i3:18 i4:10 h0: h1:8+9 h2:20+21+22 h3: h4: k0:19+22 k1:9",
    "j0:12 j1:9 j2:21 v0:11 v1:13 s0:14+16 s1:9+10 s2:17 i0:16 i1:20 i2:18 i3:22 i4:19+22 h0:12 h1:21 h2: h3:15 h4:8+21 k0:8+12 k1:15",
    "j0:8+9 j1:18 j2:10+21 v0:13 v1:19+20 s0:21 s1:14 s2:8+17 i0:9 i1:22 i2:11 i3:20 i4:12 h0:10 h1:11+17+20 h2:9 h3:20+22 h4:8 k0:15 k1:16",
    "j0:9 j1:21 j2:8+11+13 v0:15 v1:12+16+19 s0:14+21 s1:10 s2:15+17 i0:16 i1:18 i2:22 i3:19 i4:20 h0:10 h1:17+22 h2: h3:13 h4: k0:11 k1:8+9+15",
    "j0:16+21 j1:12 j2:19 v0:15 v1:9+21 s0:10+18 s1:21 s2:11+17 i0:13 i1:10 i2:14+19+22 i3:9+21+22 i4:12+20 h0: h1:12 h2: h3:10 h4: k0:17+22 k1:8",
]


def parse_pat(t):
    c = {}
    for w in t.split():
        k, b = w.split(":")
        c[k] = sum(1 << int(x) for x in b.split("+") if x)
    c.setdefault("k0", 256)
    c.setdefault("k1", 512)
    rows = [c[k] for k in c if k[0] != "h"]
    for bit in range(8, 23):
        p = next(x for x in rows if x >> bit & 1)
        rows.remove(p)
        rows = [x ^ p if x >> bit & 1 else x for x in rows]
    return c


def gen(NS=3, stamps=0, pol="nt", wo="CD", prio=3, cap=52, cap0=5, ust=1, n=31, na=25, nC=8, tke=0, capA=7, early=0, poll1=1, nF=8, touch=0, osc="", pipe=0, fx=24, pat=16, tab=0, D=0, uB=27, capP=0, pt=0, capV=66555555, pk=0, thr=56, capF=7, hoist=0, fb=0, fS=44444445, fF=66666665, csp=1, noclr=0, fbm=0, slp=0, sub=0, dp=1, xa=0, fl=0, pdp=0, pair=0):
    A = Asm()
    lo, frac = divmod(cap, 10)
    caps = [lo + (1 if (j + 1) * frac // 10 > j * frac // 10 else 0) for j in range(8)]
    if frac == 5:
        caps = [lo + 1 - (j & 1) for j in range(8)]
    if cap > 1000:
        caps = [int(ch) for ch in str(cap)]
    cap = caps[7]
    nst = [0]

    sH, sS, sW = "s84", "s85", "s3"
    sIdx, sOff, sTk, sIt = "s86", "s87", "s88", "s89"
    sT0, sT1, sT2, sC = "s90", "s91", "s93", "s92"
    sSpin, sAA = "s94", "s95"
    KB, VB, WQB, WQA, WOB, WOA, KA, VA, WS, XB, XA, OUT = ["s[%d:%d]" % (i, i + 3) for i in range(32, 80, 4)]
    DBGP, CNTP = "s[80:81]", "s[82:83]"
    vL16, vWq, vWo = 1, 2, 3
    vQ, vAcc, vM, vLs = 4, 8, 16, 17
    vS0, vR0, vR1, vT, vMx, vAl, vPl, vPh, vMn = 18, 22, 23, 24, 25, 26, 28, 29, 30
    vLo, vLm, vCo = 240, 241, 242
    vX = 244
    vList, vMr, vSc, vL16b = 243, 250, 251, 31
    vP1l, vP1h = 20, 21
    sI, sThr, sPend = "s100", "s24", "s25"
    E1 = 4 * (32 - na)
    E = E1 + 28 * (32 - n)
    P3 = 2 * (E - D)
    if sub:
        E, E1, P3, fx = E // 4, E1 // 4, P3 // 4, fx // 4
    assert E <= 128 and 32 - n <= 3
    COL = parse_pat(PATS[pat])
    TJ = [(COL["j0"] if j & 1 else 0) ^ (COL["j1"] if j & 2 else 0) ^ (COL["j2"] if j & 4 else 0) for j in range(8)]
    vP3a, vP3b = 254, 255
    NMAX = 48
    CO2 = 0x80 if csp else 0x100
    assert n > na and 28 * (NMAX - n) >= D
    NT, NTA = n, na
    assert P3 >= 0
    slot = lambda b: 32 + 32 * b
    vWQB, vWQA = 160, 192
    vQA, vAccA, vMA, vLA = 128, 160, 224, 232
    vSA, vRA, vMrA, vTA, vCfA = 64, 96, 112, 120, 80
    NXT = "s[12:15]"

    def stamp(k, force=False):
        if stamps == 1 or (stamps and force):
            A(f"  s_memrealtime s[96:97]")
            A(f"  s_waitcnt lgkmcnt(0)")
            A(f"  v_writelane_b32 v252, s96, {k}")

    def dpp(op, d, a, b, ctrl, bank=0xf):
        A(f"  {op}_dpp v{d}, v{a}, v{b} {ctrl} row_mask:0xf bank_mask:{bank:#x}")

    def kvload(srd, r, so, va=vL16):
        for j in range(4):
            A(f"  buffer_load_dwordx4 v[{r+4*j}:{r+4*j+3}], v{va}, {srd}, {so} offen offset:{j*1024} {pol}")

    def wload(srd, r, voff, sbase, step, j0=0, n=8):
        for j in range(j0, j0 + n):
            if j:
                A(f"  s_add_u32 {sT2}, {sbase}, {j*step}")
            so = sT2 if j else sbase
            A(f"  buffer_load_dwordx4 v[{r+4*j}:{r+4*j+3}], v{voff}, {srd}, {so} offen {pol}")

    def qk(k, q):
        for m in range(4):
            for j in range(4):
                if m == 0:
                    A(f"  v_dot2_f32_bf16 v{vS0+j}, v{k+4*j}, v{q}, 0")
                else:
                    A(f"  v_dot2c_f32_bf16 v{vS0+j}, v{k+4*j+m}, v{q+m}")

    def dots(k, q, j):
        d = vS0 + (j & 3)
        A(f"  v_dot2_f32_bf16 v{d}, v{k}, v{q}, 0")
        for m in range(1, 4):
            A(f"  v_dot2_f32_bf16 v{d}, v{k+m}, v{q+m}, v{d}")

    def ld(srd, r, va, so, off=0):
        A(f"  buffer_load_dwordx4 v[{r}:{r+3}], v{va}, {srd}, {so} offen offset:{off} {pol}")

    vKV, vAd, vNx = 253, 27, 30
    kmask = COL["k0"] | COL["k1"]
    plain = not any(v & kmask for k, v in COL.items() if k[0] != "k")
    TABN = ["j0", "j1", "j2", "v0", "v1", "s0", "s1", "s2", "i0", "i1", "i2", "i3", "i4", "h0", "h1", "h2", "h3", "h4", "k0", "k1"]
    vTab = 7
    if tab:
        plain = False
        TJ = [0] + ["s%d" % (3 + j) for j in range(1, 8)]
    hx = lambda x: x if isinstance(x, str) else hex(x)

    def col(nm):
        if not tab:
            return hex(COL[nm])
        A(f"  v_readlane_b32 s64, v{vTab}, {TABN.index(nm)}")
        return "s64"

    def ldx(srd, r, so, x):
        if x:
            A(f"  s_xor_b32 {sT2}, {so}, {hx(x)}")
        if plain:
            ld(srd, r, vKV, sT2 if x else so)
        else:
            A(f"  v_xor_b32 v{vAd}, {sT2 if x else so}, v{vKV}")
            ld(srd, r, vAd, "0")

    def tk(srd, b, so):
        return lambda j: ldx(srd, slot(b) + 4 * j, so, TJ[j])

    def tka(srd, so):
        return lambda j: ld(srd, slot(0) + 4 * j, vL16 if j < 4 else vL16b, so, (j & 3) * 1024)

    def tkn(j):
        A(f"  v_xor_b32 v{vAd}, s{16+j}, v{vNx}")
        ld(NXT, slot(0) + 4 * j, vAd, "0")

    def prep_next(sa, sb, a_if_scc):
        A("  s_cselect_b32 s23, 1, 0")
        for j in range(cap):
            A(f"  s_add_u32 s{16+j}, {sa}, {j*1024}")
            A(f"  s_xor_b32 {sT2}, {sb}, {hx(TJ[j])}")
            A(f"  s_cmp_eq_u32 s23, {1 if a_if_scc else 0}")
            A(f"  s_cselect_b32 s{16+j}, s{16+j}, {sT2}")
        A(f"  s_mov_b32 {sPend}, s16")
        A("  s_cselect_b64 vcc, -1, 0")
        A(f"  v_cndmask_b32 v{vNx}, v{vKV}, v{vL16}, vcc")

    def advance():
        A(f"  s_mov_b32 {sOff}, {sPend}")

    def ft(so):
        return lambda j: ldx(KB if j < 4 else VB, slot(0) + 4 * j, so, TJ[j & 3])

    def xormap(d, x):
        bits = [("i%d" % k, k) for k in range(5)] + [("v%d" % k, 5 + k) for k in range(2)] + \
               [("s%d" % k, 7 + k) for k in range(3)] + [("h%d" % k, 10 + k) for k in range(5)]
        first = True
        for nm, b in bits:
            if not COL[nm] and not tab:
                continue
            A(f"  v_bfe_i32 v{vX+3}, v{x}, {b}, 1")
            if first:
                A(f"  v_and_b32 v{d}, {col(nm)}, v{vX+3}")
                first = False
            else:
                A(f"  v_and_b32 v{vX+3}, {col(nm)}, v{vX+3}")
                A(f"  v_xor_b32 v{d}, v{d}, v{vX+3}")

    def wl(srd, r, voff, sbase, step):
        def f(j):
            if j:
                A(f"  s_add_u32 {sT2}, {sbase}, {j*step}")
            ld(srd, r + 4 * j, voff, sT2 if j else sbase)
        return f

    def wait_issue(wait, loads):
        mark = len(A.L)
        parts = []
        for k, f in enumerate(loads):
            m = len(A.L)
            f()
            seg = A.L[m:]
            if k & 1:
                seg = [x.replace(sT2, "s101").replace(f"v{vAd},", "v25,") for x in seg]
            parts.append(seg)
        del A.L[mark:]
        if hoist and wait and len(loads) <= 2:
            pre = [x for seg in parts for x in seg if "buffer_load" not in x]
            post = [x for seg in parts for x in seg if "buffer_load" in x]
            A.L += pre + [wait] + post
        else:
            A.L += ([wait] if wait else []) + [x for seg in parts for x in seg]

    def steps(j0, j1, lead, cur, nxt, proc, nmax=8, first_wait=True, caps=caps):
        for j in range(j0, j1):
            w = f"  s_waitcnt vmcnt({lead-j-1})" if first_wait or j > j0 else None
            loads = []
            while lead < min(j + 1 + caps[j], 8 + nmax):
                loads.append(lambda f=(cur if lead < 8 else nxt), k=lead & 7: f(k))
                lead += 1
            wait_issue(w, loads)
            proc(j)
        return lead

    def stream_iter(cur, nxt, proc, caps=caps):
        assert steps(0, 8, cap, cur, nxt, proc, caps=caps) == 8 + cap

    def red16(t):
        dpp("v_add_f32", vR0, vS0, vS0, "row_ror:8", 0x3)
        dpp("v_add_f32", vR1, vS0 + 2, vS0 + 2, "row_ror:8", 0x3)
        dpp("v_add_f32", vR0, vS0 + 1, vS0 + 1, "row_ror:8", 0xc)
        dpp("v_add_f32", vR1, vS0 + 3, vS0 + 3, "row_ror:8", 0xc)
        dpp("v_add_f32", t, vR0, vR0, "row_half_mirror", 0x5)
        dpp("v_add_f32", t, vR1, vR1, "row_half_mirror", 0xa)
        dpp("v_add_f32", t, t, t, "quad_perm:[1,0,3,2]")
        dpp("v_add_f32", t, t, t, "quad_perm:[2,3,0,1]")

    def softmax(t, m, l, acc, pl, ph):
        dpp("v_max_f32", vMx, t, t, "row_ror:4")
        dpp("v_max_f32", vMx, vMx, vMx, "row_ror:8")
        A(f"  v_mul_f32 v{vMx}, {sC}, v{vMx}")
        A(f"  v_max_f32 v{vMn}, v{m}, v{vMx}")
        A(f"  v_fma_f32 v{t}, v{t}, {sC}, -v{vMn}")
        A(f"  v_sub_f32 v{vAl}, v{m}, v{vMn}")
        A(f"  v_exp_f32 v{t}, v{t}")
        A(f"  v_exp_f32 v{vAl}, v{vAl}")
        A(f"  v_mov_b32 v{m}, v{vMn}")
        A(f"  v_cvt_pk_bf16_f32 v{pl}, v{t}, 0")
        A(f"  v_fma_f32 v{l}, v{l}, v{vAl}, v{t}")
        A(f"  v_lshlrev_b32 v{ph}, 16, v{pl}")
        for i in range(4):
            A(f"  v_pk_mul_f32 v[{acc+2*i}:{acc+2*i+1}], v[{acc+2*i}:{acc+2*i+1}], v[{vAl}:{vAl+1}] op_sel_hi:[1,0]")

    def pv(acc, v, pl, ph, lanes):
        for j, ln in enumerate(lanes):
            for m in range(4):
                dpp("v_dot2c_f32_bf16", acc + 2 * m, pl, v + 4 * j + m, f"row_newbcast:{ln}")
                dpp("v_dot2c_f32_bf16", acc + 2 * m + 1, ph, v + 4 * j + m, f"row_newbcast:{ln}")

    KVL = [0, 8, 4, 12]

    def zero(acc, n=8):
        for i in range(n):
            A(f"  v_mov_b32 v{acc+i}, 0")

    def redrows(acc, ldsoff):
        for a, b in ((0, 4), (2, 6), (1, 5), (3, 7)):
            A(f"  v_permlane32_swap_b32 v{acc+a}, v{acc+b}")
        for a, b in ((0, 4), (2, 6), (1, 5), (3, 7)):
            A(f"  v_add_f32 v{acc+a}, v{acc+a}, v{acc+b}")
        A(f"  v_permlane16_swap_b32 v{acc}, v{acc+2}")
        A(f"  v_permlane16_swap_b32 v{acc+1}, v{acc+3}")
        A(f"  v_add_f32 v{acc}, v{acc}, v{acc+2}")
        A(f"  v_add_f32 v{acc+1}, v{acc+1}, v{acc+3}")
        A(f"  ds_write_b64 v{vLo}, v[{acc}:{acc+1}] offset:{ldsoff}")

    def allrows(op, d, x):
        t1, t2 = vX + 2, vX + 3
        A(f"  v_mov_b32 v{t1}, v{x}")
        A(f"  v_mov_b32 v{t2}, v{x}")
        A(f"  v_permlane32_swap_b32 v{t1}, v{t2}")
        A(f"  {op} v{t1}, v{t1}, v{t2}")
        A(f"  v_mov_b32 v{t2}, v{t1}")
        A(f"  v_permlane16_swap_b32 v{t1}, v{t2}")
        A(f"  {op} v{d}, v{t1}, v{t2}")

    def fin(acc, m, l, ldsoff):
        M, Ls = vX, vX + 1
        allrows("v_max_f32", M, m)
        A(f"  v_sub_f32 v{vAl}, v{m}, v{M}")
        A(f"  v_exp_f32 v{vAl}, v{vAl}")
        dpp("v_add_f32", vR0, l, l, "row_ror:4")
        for i in range(4):
            A(f"  v_pk_mul_f32 v[{acc+2*i}:{acc+2*i+1}], v[{acc+2*i}:{acc+2*i+1}], v[{vAl}:{vAl+1}] op_sel_hi:[1,0]")
        dpp("v_add_f32", vR0, vR0, vR0, "row_ror:8")
        A(f"  v_mul_f32 v{vR0}, v{vR0}, v{vAl}")
        allrows("v_add_f32", Ls, vR0)
        A(f"  ds_write_b64 v{vLm}, v[{M}:{M+1}] offset:{ldsoff}")
        redrows(acc, ldsoff)

    def score(u):
        red16(vT)
        A(f"  v_max_f32 v{vMr}, v{vMr}, v{vT}")
        A(f"  ds_write_b32 v{vSc}, v{vT} offset:{4*u}")
        if u:
            A(f"  v_add_u32 v{vSc}, 128, v{vSc}")

    def scbase():
        A(f"  s_lshl_b32 {sT1}, {sW}, 13")
        A(f"  s_add_u32 {sT1}, {sT1}, {L_SC}")
        A(f"  v_lshrrev_b32 v{vSc}, 2, v0")
        A(f"  v_lshl_add_u32 v{vSc}, v{vSc}, 3, {sT1}")

    def probs():
        A(f"  v_fma_f32 v{vS0}, v{vS0}, {sC}, -v{vM}")
        A(f"  v_fma_f32 v{vS0+1}, v{vS0+1}, {sC}, -v{vM}")
        A(f"  v_exp_f32 v{vS0}, v{vS0}")
        A(f"  v_exp_f32 v{vS0+1}, v{vS0+1}")
        A(f"  v_cvt_pk_bf16_f32 v{vPl}, v{vS0}, 0")
        A(f"  v_add_f32 v{vLs}, v{vLs}, v{vS0}")
        A(f"  v_cvt_pk_bf16_f32 v{vP1l}, v{vS0+1}, 0")
        A(f"  v_lshlrev_b32 v{vPh}, 16, v{vPl}")
        A(f"  v_add_f32 v{vLs}, v{vLs}, v{vS0+1}")
        A(f"  v_lshlrev_b32 v{vP1h}, 16, v{vP1l}")

    A(HEADER.rstrip().replace("@LAUNCH@", f"; @launch grid=(256,1,1) block=(320,1,1) lds={LDS_BYTES}"))
    A(DOC.strip("\n"))
    A('.amdgcn_target "amdgcn-amd-amdhsa--gfx950"')
    A(".text")
    A(f".globl {KN}")
    A(".p2align 8")
    A(f".type {KN},@function")
    A(f"{KN}:")
    A("  s_cmp_ge_u32 s2, 256")
    A("  s_cbranch_scc1 L_end")
    if stamps:
        A("  s_memrealtime s[98:99]")
    A("  s_load_dwordx16 s[4:19], s[0:1], 0")
    A("  s_load_dwordx8 s[20:27], s[0:1], 64")
    A("  s_load_dwordx2 s[28:29], s[0:1], 96")
    A("  v_lshrrev_b32 v1, 6, v0")
    A("  v_and_b32 v0, 63, v0")
    A(f"  v_readfirstlane_b32 {sW}, v1")
    A(f"  s_lshr_b32 {sH}, s2, 3")
    A(f"  s_and_b32 {sS}, s2, 7")
    A(f"  s_and_b32 {sT0}, {sH}, 7")
    A(f"  s_cmp_eq_u32 {sT0}, {sS}")
    A(f"  s_cselect_b32 {sAA}, 1, 0")
    A(f"  v_lshlrev_b32 v{vL16}, 4, v0")
    if stamps:
        A("  v_mov_b32 v252, 0")
    A(f"  s_cmp_eq_u32 {sW}, 4")
    A("  s_cbranch_scc1 L_helper")
    A(f"  s_mov_b32 {sC}, 0x3e0293ee")
    A("  v_lshrrev_b32 v4, 4, v0")
    A("  v_and_b32 v5, 15, v0")
    for i in list(range(32, 64, 4)) + [68, 72]:
        A(f"  s_mov_b32 s{i+3}, 0x20000")
    A("  s_mov_b32 s34, 0x800000\n  s_mov_b32 s38, 0x800000")
    A("  s_mov_b32 s42, 0x800000\n  s_mov_b32 s46, 0x800000\n  s_mov_b32 s50, 0x800000\n  s_mov_b32 s54, 0x800000")
    A("  s_mov_b32 s58, 0x20000\n  s_mov_b32 s62, 0x20000")
    A(f"  s_mov_b32 s70, 2048\n  s_mov_b32 s74, 2048")
    A(f"  v_lshlrev_b32 v{vWq}, 13, v4")
    A(f"  v_lshl_add_u32 v{vWq}, v5, 4, v{vWq}")
    A(f"  v_and_b32 v6, 7, v5")
    A(f"  v_lshl_add_u32 v6, v6, 2, v4")
    A(f"  s_lshl_b32 {sT0}, {sW}, 5")
    A(f"  v_add_u32 v6, {sT0}, v6")
    A(f"  v_lshlrev_b32 v{vCo}, 1, v6")
    A(f"  s_lshl_b32 {sT1}, {sS}, 7")
    A(f"  s_add_u32 {sT0}, {sT0}, {sT1}")
    A(f"  s_lshl_b32 {sT0}, {sT0}, 13")
    A(f"  s_lshl_b32 {sT1}, {sH}, 8")
    A(f"  s_add_u32 {sT0}, {sT0}, {sT1}")
    A(f"  s_lshl_b32 {sT1}, {sS}, 8")
    A("  s_waitcnt lgkmcnt(0)")
    A("  s_mov_b32 s40, s20\n  s_mov_b32 s41, s21\n  s_mov_b32 s68, s14\n  s_mov_b32 s69, s15")
    A("  s_mov_b32 s72, s4\n  s_mov_b32 s73, s5\n  s_mov_b32 s44, s10\n  s_mov_b32 s45, s11")
    stamp(12)
    if tab:
        A(f"  v_lshlrev_b32 v{vTab}, 2, v0")
        A(f"  v_add_u32 v{vTab}, 0x30000000, v{vTab}")
        A(f"  global_load_dword v{vTab}, v{vTab}, s[28:29]")
    A(f"  buffer_load_ushort v{vPl}, v{vCo}, {XB}, {sT1} offen {pol}")
    A(f"  buffer_load_ushort v{vX+4}, v{vCo}, {XA}, {sT1} offen {pol}")
    SST = 32 * 4096 * (1 if ust > 1 else 2)
    items = [(wl(WQB, vWQB, vWq, sT0, 32768), j) for j in range(8)] + [(wl(WQA, vWQA, vWq, sT0, 32768), j) for j in range(8)]
    for b in range(NS):
        items += [(tk(KB, b, sOff), j) for j in range(8)]

    def issue(u):
        f, j = items[u]
        if u >= 16 and j == 0:
            A(f"  v_readlane_b32 {sOff}, v{vList}, {(u-16)//8}")
        f(j)

    for u in range(cap0):
        issue(u)
    A(f"  s_lshl_b32 s30, {sH}, 23")
    A(f"  s_add_u32 s32, s16, s30\n  s_addc_u32 s33, s17, 0\n  s_add_u32 s36, s18, s30\n  s_addc_u32 s37, s19, 0")
    A(f"  s_lshl_b32 {sIdx}, {sS}, 2")
    A(f"  s_add_u32 {sIdx}, {sIdx}, {sW}")
    A(f"  v_add_u32 v{vL16b}, 4096, v{vL16}")
    if tab:
        A(f"  s_waitcnt vmcnt({cap0+2})")
    A(f"  v_bfe_i32 v{vX}, v0, 4, 1")
    A(f"  v_and_b32 v{vX}, {col('k0')}, v{vX}")
    A(f"  v_bfe_i32 v{vX+1}, v0, 5, 1")
    A(f"  v_and_b32 v{vX+1}, {col('k1')}, v{vX+1}")
    A(f"  v_xor_b32 v{vX}, v{vX}, v{vX+1}")
    A(f"  v_lshl_add_u32 v{vKV}, v5, 4, v{vX}")
    A(f"  s_lshl_b32 s30, s2, 7")
    A(f"  s_lshl_b32 s31, {sW}, 5")
    A(f"  s_or_b32 s30, s30, s31")
    A(f"  v_and_b32 v{vX}, 31, v0")
    A(f"  v_or_b32 v{vX}, s30, v{vX}")
    xormap(vList, vX)
    E2 = E - E1
    for t, e0 in ((vP3a, 0), (vP3b, 64)):
        if e0 >= E:
            break
        A(f"  s_and_b32 s31, {sH}, 7")
        A(f"  s_lshl_b32 s31, s31, 2")
        if sub:
            A(f"  s_lshr_b32 s31, s31, 2")
            A(f"  v_mul_u32_u24 v{vX+2}, 9363, v0")
            A(f"  v_lshrrev_b32 v{vX+2}, 16, v{vX+2}")
            A(f"  v_mul_u32_u24 v{vX+1}, 7, v{vX+2}")
            A(f"  v_sub_u32 v{vX+1}, v0, v{vX+1}")
            A(f"  v_add_u32 v{vX+2}, {NT}, v{vX+2}")
            A(f"  v_cmp_le_u32 vcc, s31, v{vX+1}")
            A(f"  v_cndmask_b32 v{vX+3}, 0, 1, vcc")
            A(f"  v_add_u32 v{vX+1}, v{vX+1}, v{vX+3}")
            A(f"  v_lshl_add_u32 v{vX+1}, v{vX+1}, 7, v{vX+2}")
            A(f"  s_lshl_b32 s31, s31, 7")
            A(f"  s_add_u32 s31, s31, {NTA - E2}")
            A(f"  v_add_u32 v{vX+2}, s31, v0")
            A(f"  v_cmp_gt_u32 vcc, {E2}, v0")
            A(f"  v_cndmask_b32 v{vX}, v{vX+2}, v{vX+1}, vcc")
            A(f"  s_lshl_b32 s31, {sW}, 5")
            A(f"  v_or_b32 v{vX}, s31, v{vX}")
        else:
            A(f"  v_add_u32 v{vX}, {e0}, v0")
            A(f"  v_mul_u32_u24 v{vX+2}, 2341, v{vX}")
            A(f"  v_lshrrev_b32 v{vX+2}, 16, v{vX+2}")
            A(f"  v_mul_u32_u24 v{vX+1}, 28, v{vX+2}")
            A(f"  v_sub_u32 v{vX+1}, v{vX}, v{vX+1}")
            A(f"  v_add_u32 v{vX+2}, {NT}, v{vX+2}")
            A(f"  v_cmp_le_u32 vcc, s31, v{vX+1}")
            A(f"  v_cndmask_b32 v{vX+3}, 0, 4, vcc")
            A(f"  v_add_u32 v{vX+1}, v{vX+1}, v{vX+3}")
            A(f"  v_lshl_add_u32 v{vX+1}, v{vX+1}, 5, v{vX+2}")
            A(f"  v_cmp_gt_u32 vcc, {E2}, v{vX}")
            A(f"  v_subrev_u32 v{vX}, {E2}, v{vX}")
            A(f"  v_and_b32 v{vX+2}, 3, v{vX}")
            A(f"  v_add_u32 v{vX+2}, s31, v{vX+2}")
            A(f"  v_lshrrev_b32 v{vX+3}, 2, v{vX}")
            A(f"  v_add_u32 v{vX+3}, {NTA}, v{vX+3}")
            A(f"  v_lshl_add_u32 v{vX+2}, v{vX+2}, 5, v{vX+3}")
            A(f"  v_cndmask_b32 v{vX}, v{vX+2}, v{vX+1}, vcc")
        A(f"  s_lshl_b32 s31, {sH}, 10")
        A(f"  v_and_b32 v{vX}, 0x3ff, v{vX}")
        A(f"  v_or_b32 v{vX}, s31, v{vX}")
        xormap(t, vX)
    A(f"  s_lshr_b32 {sT1}, {sH}, 3")
    A(f"  s_lshl_b32 {sT1}, {sT1}, 23")
    A(f"  s_and_b32 s30, {sH}, 7")
    A(f"  s_lshl_b32 s30, s30, 17")
    A(f"  s_add_u32 {sT1}, {sT1}, s30")
    A(f"  s_add_u32 {sT1}, {sT1}, {28672*256}")
    A("  s_mov_b32 s48, s22\n  s_mov_b32 s49, s23\n  s_mov_b32 s52, s12\n  s_mov_b32 s53, s13")
    A(f"  s_add_u32 s56, s6, {sT1}\n  s_addc_u32 s57, s7, 0\n  s_add_u32 s60, s8, {sT1}\n  s_addc_u32 s61, s9, 0")
    def cntoff(d, g, t):
        A(f"  s_lshl_b32 {d}, {g}, 15")
        A(f"  s_add_u32 {d}, {d}, {W_CNT}")
        if csp:
            A(f"  s_and_b32 {t}, {g}, 7")
            A(f"  s_lshl_b32 {t}, {t}, 12")
            A(f"  s_add_u32 {d}, {d}, {t}")
            A(f"  s_lshr_b32 {t}, {g}, 3")
            A(f"  s_lshl_b32 {t}, {t}, 8")
            A(f"  s_add_u32 {d}, {d}, {t}")

    if sub:
        A(f"  s_lshl_b32 s31, {sW}, 1")
        A(f"  s_add_u32 s31, s31, {sH}")
        A(f"  s_and_b32 s31, s31, 7")
        A(f"  s_lshl_b32 s30, {sH}, 3")
        A(f"  s_add_u32 s30, s30, s31")
        A(f"  s_lshl_b32 s30, s30, 12")
        A(f"  s_lshr_b32 s31, {sH}, 3")
        A(f"  s_add_u32 s31, s31, {sW}")
        A(f"  s_and_b32 s31, s31, 3")
        A(f"  s_lshl_b32 s31, s31, 8")
        A(f"  s_add_u32 s30, s30, s31")
        A(f"  s_add_u32 s30, s30, {W_CNT}")
    else:
        cntoff("s30", sH, "s31")
    A(f"  s_add_u32 s82, s28, s30\n  s_addc_u32 s83, s29, 0")
    A(f"  v_lshlrev_b32 v{vWo}, 11, v4")
    A(f"  v_lshl_add_u32 v{vWo}, v5, 4, v{vWo}")
    A(f"  v_lshlrev_b32 v{vLo}, 5, v5")
    A(f"  v_lshl_add_u32 v{vLo}, v4, 3, v{vLo}")
    A(f"  s_mul_i32 {sT1}, {sW}, {PS}")
    A(f"  v_add_u32 v{vLo}, {sT1}, v{vLo}")
    A(f"  s_add_u32 {sT1}, {sT1}, 512")
    A(f"  v_mov_b32 v{vLm}, {sT1}")
    A(f"  v_lshlrev_b32 v{vX+5}, 4, v5")
    if tab:
        for j in range(1, 8):
            A(f"  v_readlane_b32 s{3+j}, v{vTab}, {20+j}")
    zero(vAcc)
    U0, U1 = slot(0), slot(0) + 16
    sNx = sPend

    def kproc(b):
        def f(j):
            dots(slot(b) + 4 * j, vQ, j)
            if j & 3 == 3:
                score(j >> 2)
        return f

    def pre_b2():
        A(f"  s_lshl_b32 {sT0}, {sH}, 7")
        A(f"  s_lshl_b32 {sT1}, {sW}, 5")
        A(f"  s_add_u32 {sT0}, {sT0}, {sT1}")
        A(f"  s_lshl_b32 {sT0}, {sT0}, 11")
        A(f"  s_lshl_b32 {sT1}, {sS}, 8")
        A(f"  s_add_u32 {sT0}, {sT0}, {sT1}")
        zero(vAcc)
        A(f"  v_mov_b32 v{vMr}, 0xff7fffff")
        A(f"  v_mov_b32 v{vM}, 0xff7fffff")
        A(f"  v_mov_b32 v{vLs}, 0")
        scbase()
        A(f"  s_mov_b32 {sI}, {NS+1}")
        A(f"  s_cmp_eq_u32 {sAA}, 1")
        A(f"  s_cselect_b32 {sIt}, {NTA}, {NT}")

    def b2():
        stamp(2)
        A("  s_waitcnt lgkmcnt(0)")
        A("  s_barrier")
        A(f"  ds_read_b128 v[{vQ}:{vQ+3}], v{vX+5} offset:{L_Q}")

    NB = len(items)
    if uB:
        items += [(tk(KB, 0, sOff), j) for j in range(cap)]
    nxt = cap0
    done = 16
    for u in range(NB):
        if not uB and u >= 16 and nxt >= len(items):
            break
        w = f"  s_waitcnt vmcnt({nxt-u-1})"
        loads = []
        while nxt < min(len(items), u + 1 + cap0) and (nxt < NB or done > 16 + nxt - NB):
            loads.append(lambda k=nxt: issue(k))
            nxt += 1
        wait_issue(w, loads)
        if u == 0:
            stamp(13)
            A(f"  v_lshlrev_b32 v{vPh}, 16, v{vPl}")
        if u < 8:
            pv(vAcc, vWQB + 4 * u, vPl, vPh, [u])
        elif u < 16:
            pv(vAcc, vWQA + 4 * (u - 8), vPl, vPh, [u - 8])
        if u == 7:
            redrows(vAcc, L_QBP)
            stamp(1)
            A("  s_waitcnt lgkmcnt(0)")
            A("  s_barrier")
            stamp(14)
            zero(vAcc)
            A(f"  v_mov_b32 v{vPl}, v{vX+4}")
            A(f"  v_lshlrev_b32 v{vPh}, 16, v{vX+4}")
        if u == 15:
            redrows(vAcc, L_QAP)
            stamp(15)
        if u == 16:
            pre_b2()
        if uB and u == uB:
            b2()
        if uB and u > uB:
            if u == uB + 1:
                A("  s_waitcnt lgkmcnt(0)")
                stamp(3)
            left = NB - 1 - u
            k = u + 1 - done if left == 0 else min(u + 1 - done, 3)
            for _ in range(k):
                kproc((done - 16) // 8)((done - 16) % 8)
                done += 1
    if uB:
        assert done == NB
        while nxt < len(items):
            issue(nxt)
            nxt += 1
    else:
        A(f"  v_readlane_b32 {sOff}, v{vList}, {NS}")
        b2()
        A("  s_waitcnt lgkmcnt(0)")
        stamp(3)
        A(f"  s_waitcnt vmcnt({(NS-1)*8})")
        for j in range(8):
            kproc(0)(j)
            if j < cap:
                tk(KB, 0, sOff)(j)
        for b in range(1, NS):
            A(f"  s_waitcnt vmcnt({(NS-1-b)*8+cap})")
            for j in range(8):
                kproc(b)(j)
    stamp(4)
    def pool():
        A(f"  v_readlane_b32 {sNx}, v{vP3a}, s31")
        if E > 64:
            A(f"  v_readlane_b32 s30, v{vP3b}, s31")
            A(f"  s_cmp_ge_u32 s31, 64")
            A(f"  s_cselect_b32 {sNx}, s30, {sNx}")

    sFb, sExp, sDif, sOne = "s65", "s66", "s67", "s76"

    def fbhook(proc):
        def f(j):
            proc(j)
            if fbm == 4:
                if j == 1:
                    lab = f"L_fb{len(A.L)}"
                    A(f"  s_and_b32 s31, {sI}, 1")
                    A(f"  s_or_b32 s31, s31, {sW}")
                    A(f"  s_cmp_lg_u32 s31, 0")
                    A(f"  s_cbranch_scc1 {lab}")
                    A("  s_waitcnt lgkmcnt(0)")
                    A(f"  s_sub_i32 s31, {sExp}, {sFb}")
                    A(f"  s_mul_i32 s31, s31, {sOne}")
                    A(f"  s_add_u32 {sExp}, {sExp}, 8")
                    A(f"  v_mov_b32 v{vX}, s31")
                    A(f"  v_mov_b32 v{vX+1}, 31104")
                    A(f"  ds_write_b32 v{vX+1}, v{vX}")
                    A(f"  s_mov_b32 {sFb}, {sOne}")
                    A(f"  s_atomic_add {sFb}, s[78:79], 0 glc")
                    A(f"{lab}:")
                if j == 5:
                    A(f"  v_mov_b32 v{vX+1}, 31104")
                    A(f"  ds_read_b32 v{vX}, v{vX+1}")
                if j == 6:
                    A("  s_waitcnt lgkmcnt(0)")
                    A(f"  v_readfirstlane_b32 {sDif}, v{vX}")
            elif j == 2 and fbm == 1:
                A(f"  s_mov_b32 {sDif}, 0")
                A(f"  s_atomic_add {sOne}, s[78:79], 0")
            elif j == 2 and fbm == 2:
                A("  s_waitcnt lgkmcnt(0)")
                A(f"  s_mov_b32 {sDif}, 0")
                A(f"  s_load_dword {sFb}, s[78:79], 0 glc")
            elif j == 2 and fbm == 3:
                A("  s_waitcnt lgkmcnt(0)")
                A(f"  s_mov_b32 {sDif}, 0")
            elif j == 2:
                A("  s_waitcnt lgkmcnt(0)")
                A(f"  s_sub_i32 {sDif}, {sExp}, {sFb}")
                A(f"  s_mul_i32 {sDif}, {sDif}, {sOne}")
                A(f"  s_add_u32 {sExp}, {sExp}, 28")
                A(f"  s_mov_b32 {sFb}, {sOne}")
                A(f"  s_atomic_add {sFb}, s[78:79], 0 glc")
        return f

    def fbloops(base, top, srd, proc, cn):
        for suf, cp in (("", cn), ("_s", [int(ch) for ch in str(fS)]), ("_f", [int(ch) for ch in str(fF)])):
            A(".p2align 6")
            top(base + suf)
            stream_iter(tk(srd, 0, sOff), tk(srd, 0, sNx), fbhook(proc), cp)
            advance()
            A(f"  s_cmp_gt_i32 {sDif}, {fb}")
            A(f"  s_cbranch_scc1 {base}_s")
            A(f"  s_cmp_lt_i32 {sDif}, {-fb}")
            A(f"  s_cbranch_scc1 {base}_f")
            A(f"  s_branch {base}")

    def p1top(lab):
        A(f"{lab}:")
        A(f"  s_cmp_ge_u32 {sI}, {sIt}")
        A("  s_cbranch_scc1 L_p1d")
        A(f"  v_readlane_b32 {sNx}, v{vList}, {sI}")
        A(f"  s_add_u32 {sI}, {sI}, 1")

    if fb:
        A(f"  s_and_b32 s77, {sH}, 7")
        A(f"  s_lshl_b32 s77, s77, 2")
        A(f"  s_sub_u32 s77, {sIdx}, s77")
        A(f"  s_add_u32 s77, s77, {sH}")
        A(f"  s_and_b32 s77, s77, 31")
        cntoff("s78", "s77", "s79")
        A(f"  s_add_u32 s78, s28, s78")
        A(f"  s_addc_u32 s79, s29, 0")
        A(f"  s_xor_b32 {sOne}, {sAA}, 1")
        A(f"  s_mov_b32 {sExp}, {-5 if fbm == 4 else -16}")
        A(f"  s_mov_b32 {sFb}, {-5 if fbm == 4 else -16}")
        if fbm == 4:
            A(f"  s_sub_u32 s77, {sH}, {sS}")
            A(f"  s_and_b32 s77, s77, 31")
            cntoff("s78", "s77", "s79")
            A(f"  s_add_u32 s78, s28, s78")
            A(f"  s_addc_u32 s79, s29, 0")
            A(f"  v_mov_b32 v{vX}, 0")
            A(f"  v_mov_b32 v{vX+1}, 31104")
            A(f"  ds_write_b32 v{vX+1}, v{vX}")
        fbloops("L_k", p1top, KB, kproc(0), caps)
    A(".p2align 6")
    A("L_loop:")
    A(f"  s_cmp_ge_u32 {sI}, {sIt}")
    A(f"  s_cbranch_scc1 {'L_dyn0' if D else 'L_p1d'}")
    A(f"  v_readlane_b32 {sNx}, v{vList}, {sI}")
    A(f"  s_add_u32 {sI}, {sI}, 1")
    if D:
        A(f"  s_cmp_lg_u32 {sI}, {NT}")
        A("  s_cbranch_scc1 L_iter")
        A("L_take:")
        A(f"  s_mov_b32 {sTk}, 1")
        A(f"  s_atomic_add {sTk}, {CNTP}, 0 glc")
        A("L_iter:")
    stream_iter(tk(KB, 0, sOff), tk(KB, 0, sNx), kproc(0))
    advance()
    A("  s_branch L_loop")
    if D:
        A("L_dyn0:")
        A(f"  s_cmp_eq_u32 {sAA}, 1")
        A("  s_cbranch_scc1 L_p1d")
        A("  s_waitcnt lgkmcnt(0)")
        A(f"  s_add_u32 s31, {sTk}, 1")
        A(f"  s_cmp_ge_u32 s31, {D}")
        A("  s_cbranch_scc1 L_p1d")
        pool()
        A(f"  s_mov_b32 m0, {sI}")
        A(f"  s_add_u32 {sI}, {sI}, 1")
        A(f"  s_mov_b32 {sIt}, {sI}")
        A(f"  v_writelane_b32 v{vList}, {sNx}, m0")
        A(f"  s_mov_b32 {sTk}, 0x10000")
        A(f"  s_cmp_ge_u32 {sI}, {NMAX}")
        A("  s_cbranch_scc1 L_iter")
        A("  s_branch L_take")
    A("L_p1d:")
    stamp(9)
    A(f"  v_readlane_b32 {sNx}, v{vList}, 0")
    A(f"  s_mov_b32 {sI}, 1")
    A(f"  s_lshl_b32 s30, {sW}, 13")
    A(f"  s_mov_b32 s15, 0x20000")
    A(f"  s_cmp_eq_u32 {sAA}, 1")
    A("  s_cselect_b32 s12, s56, s36")
    A("  s_cselect_b32 s13, s57, s37")
    A("  s_cselect_b32 s14, s58, s38")
    prep_next("s30", sNx, True)
    stream_iter(tk(KB, 0, sOff), tkn, kproc(0))
    advance()
    dpp("v_max_f32", vMr, vMr, vMr, "row_ror:4")
    scbase()
    dpp("v_max_f32", vMr, vMr, vMr, "row_ror:8")
    A(f"  v_mul_f32 v{vM}, {sC}, v{vMr}")
    A(f"  s_cmp_eq_u32 {sAA}, 1")
    A("  s_cbranch_scc1 L_event")

    def vproc(j):
        if j == 0:
            A("  s_waitcnt lgkmcnt(0)")
            probs()
        pv(vAcc, U0 + 4 * j, vPl if j < 4 else vP1l, vPh if j < 4 else vP1h, [KVL[j & 3]])

    capsV = [int(ch) for ch in str(capV)] if capV else caps
    capsF = [min(capF, cap + 1 + j, cap + 7 - j) for j in range(8)]

    def p2top(lab):
        A(f"{lab}:")
        A(f"  ds_read_b64 v[{vS0}:{vS0+1}], v{vSc}")
        A(f"  v_add_u32 v{vSc}, 128, v{vSc}")
        A(f"  s_cmp_ge_u32 {sI}, {sIt}")
        A("  s_cbranch_scc1 L_p2last")
        A(f"  v_readlane_b32 {sNx}, v{vList}, {sI}")
        A(f"  s_add_u32 {sI}, {sI}, 1")

    def vproc_peek(j):
        vproc(j)
        if j == 0:
            A(f"  s_cmp_ge_i32 {sTk}, {P3 - thr}")
            A(f"  s_cselect_b32 s23, 1, 0")
            A(f"  s_add_u32 s31, {sI}, {pk}")
            A(f"  s_cmp_lt_u32 s31, {sIt}")
            A("  s_cbranch_scc1 L_nopeek")
            A(f"  s_mov_b32 {sTk}, 0")
            A(f"  s_atomic_add {sTk}, {CNTP}, {CO2} glc")
            A("L_nopeek:")

    if fb:
        fbloops("L_p2", p2top, VB, vproc, capsV)
    if pk:
        A("L_p2:")
        A(f"  s_mov_b32 {sTk}, -1")
    A(".p2align 6")
    p2top("L_p2s" if pk else "L_p2x" if fb else "L_p2")
    stream_iter(tk(VB, 0, sOff), tk(VB, 0, sNx), vproc_peek if pk else vproc, capsV)
    advance()
    if pk:
        A("  s_cmp_eq_u32 s23, 0")
        A("  s_cbranch_scc1 L_p2s")
        p2top("L_p2f")
        stream_iter(tk(VB, 0, sOff), tk(VB, 0, sNx), vproc, capsF)
        advance()
        A("  s_branch L_p2f")
    else:
        A("  s_branch L_p2")

    def p3tile(lab):
        A("  s_waitcnt lgkmcnt(0)")
        A(f"  s_add_u32 {sT1}, {sTk}, 1")
        A(f"  s_cmp_ge_u32 {sT1}, {P3}")
        A(f"  s_cbranch_scc1 {lab}")
        A(f"  s_lshr_b32 s31, {sT1}, 1")
        if D:
            A(f"  s_add_u32 s31, s31, {D}")
        pool()
        A(f"  s_bitcmp1_b32 {sT1}, 0")
        A(f"  s_cselect_b32 s31, {hx(TJ[4])}, 0")
        A(f"  s_xor_b32 {sNx}, {sNx}, s31")
        if fx and pair:
            A(f"  s_mul_i32 s31, s23, {P3}")
            A(f"  s_add_u32 s31, s31, {P3 - fx}")
            A(f"  s_cmp_ge_u32 {sT1}, s31")
            A(f"  s_cbranch_scc1 {lab}_f")
        elif fx:
            A(f"  s_cmp_ge_u32 {sT1}, {P3 - fx}")
            A(f"  s_cbranch_scc1 {lab}_f")

    def take():
        for _ in range(xa):
            A(f"  s_atomic_add {sAA}, {CNTP}, 0")
        A(f"  s_mov_b32 {sTk}, 1")
        A(f"  s_atomic_add {sTk}, {CNTP}, {CO2} glc")

    def fproc(j, r=U0):
        if j < 4:
            dots(r + 4 * j, vQ, j)
            if j == 3:
                red16(vT)
                softmax(vT, vM, vLs, vAcc, vPl, vPh)
        else:
            pv(vAcc, r + 4 * j, vPl, vPh, [KVL[j & 3]])

    def final_head(cur, proc):
        for k in range(LT, 8):
            cur(k)
        for k in range(8):
            ldx(KB if k < 4 else VB, slot(3) + 4 * k, sNx, TJ[k & 3])
        for j in range(JT, 8):
            if j > JT:
                A(f"  s_waitcnt vmcnt({16-j-1})")
            proc(j)

    def final_tile():
        issued = 8
        for k in range(8):
            w = f"  s_waitcnt vmcnt({issued-k-1})"
            loads = []
            while issued - k - 1 < cap and issued - 8 < min(nC, cap):
                loads.append(lambda q=issued - 8: wostream(q))
                issued += 1
            wait_issue(w, loads)
            fproc(k, slot(3))

    NWO = 16 - 8 * early
    nC = min(nC, NWO)
    wostream = lambda j: (wl(WOA, slot(2), vWo, sT0, 8192)(j) if j + 8 * early < 8 else wl(WOB, slot(1), vWo, sT0, 8192)(j + 8 * early - 8))
    capsP = [min(capP, cap + 1 + j, cap + 7 - j) for j in range(8)] if capP else caps
    JT = min(j for j in range(8) if j + 1 + capsP[j] > 8)
    LT = max([cap] + [j + 1 + capsP[j] for j in range(JT)])

    def split_iter(cur, proc, lab):
        assert steps(0, JT, cap, cur, None, proc, caps=capsP) == LT
        A(f"  s_waitcnt vmcnt({LT-JT-1})")
        p3tile(lab)
        if tke:
            take()
        steps(JT, 8, LT, cur, ft(sNx), proc, first_wait=False, caps=capsP)
        A(f"  s_mov_b32 {sOff}, {sNx}")

    def tail_iter(cur, proc):
        steps(JT, 8, LT, cur, wostream, proc, nmax=nC, first_wait=False, caps=capsP)

    A("L_p2last:")
    A("  s_waitcnt lgkmcnt(0)")
    stamp(10)
    vproc2 = lambda j: pv(vAcc, U0 + 4 * j, vPl if j < 4 else vP1l, vPh if j < 4 else vP1h, [KVL[j & 3]])
    woa = wl(WOA, slot(2), vWo, sT0, 8192)
    wob = wl(WOB, slot(1), vWo, sT0, 8192)
    if early:
        probs()
        stream_iter(tk(VB, 0, sOff), woa, vproc2)
        last_cur, last_proc = woa, (lambda j: None)
        if early == 2:
            stream_iter(woa, wob, last_proc)
            last_cur = wob
        take()
    else:
        take()
        if pair:
            A("  s_mov_b32 s23, 0")
        probs()
        last_cur, last_proc = tk(VB, 0, sOff), vproc2
    split_iter(last_cur, last_proc, "L_tail0")
    A("L_loop3:")
    if pair:
        A(f"  s_mov_b32 {sTk}, {sT1}")
        A("  s_cmp_eq_u32 s23, 1")
        A("  s_mov_b32 s23, 0")
        A("  s_cbranch_scc1 L_have")
        A(f"  s_cmp_lt_u32 {sT1}, {pair}")
        A("  s_cselect_b32 s23, 1, 0")
        A(f"  s_add_u32 {sTk}, s23, 1")
        A(f"  s_atomic_add {sTk}, {CNTP}, {CO2} glc")
        A("L_have:")
    elif not tke:
        take()
    split_iter(ft(sOff), fproc, "L_drain")
    A("  s_branch L_loop3")

    A("L_tail0:")
    stamp(6)
    tail_iter(last_cur, last_proc)
    A("  s_branch L_fin")
    A("L_drain:")
    stamp(6)
    tail_iter(ft(sOff), fproc)
    if fx:
        A("  s_branch L_fin")
        A("L_tail0_f:")
        stamp(6)
        final_head(last_cur, last_proc)
        A("  s_branch L_final")
        A("L_drain_f:")
        stamp(6)
        final_head(ft(sOff), fproc)
        A("L_final:")
        final_tile()
    A("L_fin:")
    nc = min(nC, cap)
    if wo == "C":
        for j in range(nc, NWO):
            wostream(j)
    elif wo == "CD":
        for j in range(nc, min(nF, NWO)):
            wostream(j)
        nc = max(nc, min(nF, NWO))
    fin(vAcc, vM, vLs, L_BPART)
    stamp(7)
    A("  s_waitcnt lgkmcnt(0)")
    A("  s_barrier")
    A(f"  ds_read_u16 v{vPl}, v{vCo} offset:{L_OA}")
    vPo, bx = 4, slot(0)

    def dpolls(bx=bx):
        for k in range(4):
            if k:
                A(f"  s_add_u32 {sT2}, s31, {k*WG_STRIDE}")
            A(f"  buffer_load_dwordx4 v[{bx+4*k}:{bx+4*k+3}], v{vPo}, {WS}, {sT2 if k else 's31'} offen sc1")

    if dp:
        A(f"  s_mov_b32 s64, s28\n  s_mov_b32 s65, s29\n  s_mov_b32 s66, {WS_SIZE}\n  s_mov_b32 s67, 0x20000")
        A(f"  v_and_b32 v{vPo}, 0xfc, v{vCo}")
        A(f"  v_lshlrev_b32 v{vPo}, 2, v{vPo}")
        A(f"  v_bfe_u32 v5, v0, 3, 1")
        A(f"  v_lshl_add_u32 v{vPo}, v5, 14, v{vPo}")
        A(f"  v_and_b32 v5, 16, v0")
        A(f"  v_cmp_ne_u32 s[76:77], 0, v5")
        A(f"  s_lshl_b32 s31, {sH}, 15")
        A(f"  s_add_u32 s31, s31, {W_BP}")
        A(f"  s_mov_b32 {sSpin}, {SPIN}")
    if "D" in wo:
        A("  s_barrier")
        if dp == 2:
            dpolls()
        for j in range(nc, NWO):
            wostream(j)
    if dp == 1:
        dpolls()
    zero(vAcc)
    A(f"  s_waitcnt vmcnt({12 if dp else 8}) lgkmcnt(0)")
    A(f"  v_lshlrev_b32 v{vPh}, 16, v{vPl}")
    pv(vAcc, slot(2), vPl, vPh, range(8))
    redrows(vAcc, L_O2A)
    zero(vAcc + 2, 6)
    A("  s_waitcnt lgkmcnt(0)")
    A("  s_barrier")
    if dp:
        zero(vAcc, 2)

        def dcheck(bx):
            A(f"  v_max3_u32 v5, v{bx}, v{bx+1}, v{bx+2}")
            for i in range(3, 15, 2):
                A(f"  v_max3_u32 v5, v5, v{bx+i}, v{bx+i+1}")
            A(f"  v_max_u32 v5, v5, v{bx+15}")
            A(f"  v_max3_f32 v{vM}, v{bx+2}, v{bx+6}, v{bx+10}")
            A(f"  v_cmp_eq_u32 vcc, -1, v5")
            A(f"  v_max_f32 v{vM}, v{vM}, v{bx+14}")

        def dmerge(bx):
            dpp("v_max_f32", vM, vM, vM, "row_ror:8")
            for k in range(4):
                A(f"  v_cndmask_b32 v{bx+4*k}, v{bx+4*k}, v{bx+4*k+1}, s[76:77]")
            for k in range(4):
                A(f"  v_sub_f32 v{bx+4*k+2}, v{bx+4*k+2}, v{vM}")
            for k in range(4):
                A(f"  v_exp_f32 v{bx+4*k+2}, v{bx+4*k+2}")
            A(f"  v_mul_f32 v6, v{bx+2}, v{bx+3}")
            A(f"  v_mul_f32 v7, v{bx+2}, v{bx}")
            for k in range(1, 4):
                A(f"  v_fmac_f32 v6, v{bx+4*k+2}, v{bx+4*k+3}")
                A(f"  v_fmac_f32 v7, v{bx+4*k+2}, v{bx+4*k}")

        if pdp:
            dpolls(bx + 16)
            A("L_dp:")
            A("  s_waitcnt vmcnt(4)")
            dcheck(bx)
            A("  s_cbranch_vccz L_dp_ok0")
            dpolls(bx)
            A("  s_waitcnt vmcnt(4)")
            dcheck(bx + 16)
            A(f"  s_sub_u32 {sSpin}, {sSpin}, 1")
            A("  s_cbranch_scc1 L_dp_ok1")
            A("  s_cbranch_vccz L_dp_ok1")
            dpolls(bx + 16)
            A("  s_branch L_dp")
            A("L_dp_ok1:")
            dmerge(bx + 16)
            A("  s_branch L_dp_ok")
            A("L_dp_ok0:")
            dmerge(bx)
            A("L_dp_ok:")
        else:
            A("  s_branch L_dp_w")
            A("L_dp:")
            dpolls()
            A("L_dp_w:")
            A("  s_waitcnt vmcnt(0)")
            dcheck(bx)
            A(f"  s_sub_u32 {sSpin}, {sSpin}, 1")
            A("  s_cbranch_scc1 L_dp_ok")
            A("  s_cbranch_vccnz L_dp")
            A("L_dp_ok:")
            dmerge(bx)
        dpp("v_add_f32", 6, 6, 6, "row_ror:8")
        dpp("v_add_f32", 7, 7, 7, "row_ror:8")
        A("  v_rcp_f32 v6, v6")
        A("  v_mul_f32 v7, v7, v6")
        A(f"  v_cvt_pk_bf16_f32 v{vPl}, v7, 0")
        stamp(11)
    else:
        A(f"  ds_read_u16 v{vPl}, v{vCo} offset:{L_OB}")
        zero(vAcc, 2)
        A("  s_waitcnt vmcnt(0) lgkmcnt(0)")
    A(f"  v_lshlrev_b32 v{vPh}, 16, v{vPl}")
    pv(vAcc, slot(1), vPl, vPh, range(8))
    redrows(vAcc, L_O2B)
    stamp(8)
    if stamps:
        A(f"  s_cmp_lg_u32 {sW}, 0")
        A("  s_cbranch_scc1 L_nost0")
        A(f"  s_lshl_b32 {sT0}, s2, 8")
        A(f"  s_add_u32 {sT0}, {sT0}, {STAMP1}")
        A(f"  v_lshl_add_u32 v4, v0, 2, {sT0}")
        A("  s_mov_b64 exec, 0xffff")
        A("  global_store_dword v4, v252, s[28:29]")
        A("  s_mov_b64 exec, -1")
        A("L_nost0:")
    A("  s_waitcnt lgkmcnt(0)")
    A("  s_barrier")
    A("  s_endpgm")

    capsA = [min(capA, cap + 1 + j, cap + 7 - j) for j in range(8)]

    def akproc(j):
        for m in range(4):
            for i in range(8):
                d = vSA + 4 * i + (j & 3)
                A(f"  v_dot2_f32_bf16 v{d}, v{U0+4*j+m}, v{vQA+4*i+m}, {'0' if m == 0 else 'v%d' % d}")
        if j & 3 == 3:
            for a, b, bank in ((0, 0, 0x3), (1, 2, 0x3), (0, 1, 0xc), (1, 3, 0xc)):
                for i in range(8):
                    dpp("v_add_f32", vRA + 2 * i + a, vSA + 4 * i + b, vSA + 4 * i + b, "row_ror:8", bank)
            for a, bank in ((0, 0x5), (1, 0xa)):
                for i in range(8):
                    dpp("v_add_f32", vTA + i, vRA + 2 * i + a, vRA + 2 * i + a, "row_half_mirror", bank)
            for ctrl in ("quad_perm:[1,0,3,2]", "quad_perm:[2,3,0,1]"):
                for i in range(8):
                    dpp("v_add_f32", vTA + i, vTA + i, vTA + i, ctrl)
            for i in range(8):
                A(f"  v_max_f32 v{vMrA+i}, v{vMrA+i}, v{vTA+i}")
                A(f"  ds_write_b32 v{vX+4}, v{vTA+i} offset:{4096+128*i+4*(j>>2)}")

    def avproc(j):
        if j == 0:
            A("  s_waitcnt lgkmcnt(0)")
            for i in range(16):
                A(f"  v_fma_f32 v{vSA+i}, v{vSA+i}, {sC}, -v{vMA+i//2}")
            for i in range(16):
                A(f"  v_exp_f32 v{vSA+i}, v{vSA+i}")
            for i in range(16):
                A(f"  v_cvt_pk_bf16_f32 v{vCfA+2*i}, v{vSA+i}, 0")
                A(f"  v_add_f32 v{vLA+i//2}, v{vLA+i//2}, v{vSA+i}")
            for i in range(16):
                A(f"  v_lshlrev_b32 v{vCfA+2*i+1}, 16, v{vCfA+2*i}")
        for i in range(8):
            c = vCfA + 4 * i + 2 * (j >> 2)
            pv(vAccA + 8 * i, U0 + 4 * j, c, c + 1, [KVL[j & 3]])

    A("L_event:")
    A("  s_barrier")
    for i in range(8):
        A(f"  ds_read_b128 v[{vQA+4*i}:{vQA+4*i+3}], v{vX+5} offset:{L_QA+256*i}")
    for i in range(8):
        A(f"  v_mov_b32 v{vMrA+i}, 0xff7fffff")
        A(f"  v_mov_b32 v{vLA+i}, 0")
    A(f"  v_mov_b32 v{vX+4}, v{vSc}")
    A("  s_mov_b32 s31, 4")
    A("  s_waitcnt lgkmcnt(0)")
    A("L_ak:")
    A("  s_sub_u32 s31, s31, 1")
    A(f"  s_add_u32 {sNx}, {sOff}, 32768")
    A("  s_cmp_eq_u32 s31, 0")
    A("  s_cselect_b32 s12, s60, s56")
    A("  s_cselect_b32 s13, s61, s57")
    A(f"  s_cselect_b32 {sNx}, s30, {sNx}")
    stream_iter(tka(KA, sOff), tka(NXT, sNx), akproc, capsA)
    A(f"  s_mov_b32 {sOff}, {sNx}")
    A(f"  v_add_u32 v{vX+4}, 1024, v{vX+4}")
    A("  s_cbranch_scc0 L_ak")
    for i in range(8):
        dpp("v_max_f32", vMrA + i, vMrA + i, vMrA + i, "row_ror:4")
    for i in range(8):
        dpp("v_max_f32", vMrA + i, vMrA + i, vMrA + i, "row_ror:8")
    for i in range(8):
        A(f"  v_mul_f32 v{vMA+i}, {sC}, v{vMrA+i}")
    zero(vAccA, 64)
    A(f"  v_mov_b32 v{vX+4}, v{vSc}")
    A(f"  v_readlane_b32 s30, v{vList}, 0")
    A("  s_mov_b32 s31, 4")
    A("L_av:")
    for i in range(8):
        A(f"  ds_read_b64 v[{vSA+2*i}:{vSA+2*i+1}], v{vX+4} offset:{4096+128*i}")
    A("  s_sub_u32 s31, s31, 1")
    A(f"  s_add_u32 {sNx}, {sOff}, 32768")
    A("  s_cmp_eq_u32 s31, 0")
    A("  s_cselect_b32 s12, s36, s60")
    A("  s_cselect_b32 s13, s37, s61")
    A("  s_cselect_b32 s14, s38, s62")
    prep_next(sNx, "s30", False)
    stream_iter(tka(VA, sOff), tkn, avproc, capsA)
    advance()
    A(f"  v_add_u32 v{vX+4}, 1024, v{vX+4}")
    A("  s_cmp_eq_u32 s31, 0")
    A("  s_cbranch_scc0 L_av")
    for i in range(8):
        fin(vAccA + 8 * i, vMA + i, vLA + i, L_APART + RS * i)
    A("  s_waitcnt lgkmcnt(0)")
    A("  s_barrier")
    stamp(5)
    A("  s_branch L_p2")

    hL8, hZ, hA = 1, 2, 3
    hD = 8
    hE = 40
    hW, hL, hO, h16 = 58, 66, 68, 72
    sWG = "s30"

    def guard(r, n):
        for i in range(n):
            A(f"  v_min_u32 v{r+i}, -2, v{r+i}")

    def anysent(r, n, lab):
        A(f"  v_max3_u32 v{hW}, v{r}, v{r+1}, v{r+2}")
        i = 3
        while i < n:
            if i + 1 < n:
                A(f"  v_max3_u32 v{hW}, v{hW}, v{r+i}, v{r+i+1}")
                i += 2
            else:
                A(f"  v_max_u32 v{hW}, v{hW}, v{r+i}")
                i += 1
        A(f"  v_cmp_eq_u32 vcc, -1, v{hW}")
        A(f"  s_sub_u32 {sSpin}, {sSpin}, 1")
        A(f"  s_cbranch_scc1 {lab}_ok")
        A(f"  s_cbranch_vccnz {lab}")
        A(f"{lab}_ok:")

    def sum4(ldsoff, wsoff):
        for v in range(4):
            A(f"  ds_read_b64 v[{hD+2*v}:{hD+2*v+1}], v{hL8} offset:{ldsoff+v*PS}")
        A("  s_waitcnt lgkmcnt(0)")
        A(f"  v_pk_add_f32 v[{hD}:{hD+1}], v[{hD}:{hD+1}], v[{hD+2}:{hD+3}]")
        A(f"  v_pk_add_f32 v[{hD+4}:{hD+5}], v[{hD+4}:{hD+5}], v[{hD+6}:{hD+7}]")
        A(f"  v_pk_add_f32 v[{hD}:{hD+1}], v[{hD}:{hD+1}], v[{hD+4}:{hD+5}]")
        guard(hD, 2)
        A(f"  buffer_store_dwordx2 v[{hD}:{hD+1}], v{hL8}, {WS}, {sWG} offen offset:{wsoff} sc1")

    def qgather(lab, sbase, ldsaddr, ldsoff):
        A(f"  s_mov_b32 {sSpin}, {SPIN}")
        A(f"{lab}:")
        for p in range(8):
            if p:
                A(f"  s_add_u32 {sT2}, {sbase}, {p*WG_STRIDE}")
            A(f"  buffer_load_dwordx2 v[{hD+2*p}:{hD+2*p+1}], v{hL8}, {WS}, {sT2 if p else sbase} offen sc1")
        A("  s_waitcnt vmcnt(0)")
        anysent(hD, 16, lab)
        for st in (1, 2, 4):
            for p in range(0, 8, 2 * st):
                A(f"  v_pk_add_f32 v[{hD+2*p}:{hD+2*p+1}], v[{hD+2*p}:{hD+2*p+1}], v[{hD+2*(p+st)}:{hD+2*(p+st)+1}]")
        A(f"  v_cvt_pk_bf16_f32 v{hD}, v{hD}, v{hD+1}")
        A(f"  ds_write_b32 v{ldsaddr}, v{hD} offset:{ldsoff}")

    def merge(n, norm, o, e, st):
        M = hO + 2
        A(f"  v_max3_f32 v{M}, v{e}, v{e+st}, v{e+2*st}")
        i = 3
        while i < n:
            if i + 1 < n:
                A(f"  v_max3_f32 v{M}, v{M}, v{e+st*i}, v{e+st*(i+1)}")
                i += 2
            else:
                A(f"  v_max_f32 v{M}, v{M}, v{e+st*i}")
                i += 1
        for p in range(n):
            A(f"  v_sub_f32 v{hW+p}, v{e+st*p}, v{M}")
        for p in range(n):
            A(f"  v_exp_f32 v{hW+p}, v{hW+p}")
        A(f"  v_mul_f32 v{M+1}, v{hW}, v{e+1}")
        A(f"  v_mul_f32 v{hO}, v{hW}, v{o}")
        A(f"  v_mul_f32 v{hO+1}, v{hW}, v{o+1}")
        for p in range(1, n):
            A(f"  v_fmac_f32 v{M+1}, v{hW+p}, v{e+st*p+1}")
            A(f"  v_fmac_f32 v{hO}, v{hW+p}, v{o+st*p}")
            A(f"  v_fmac_f32 v{hO+1}, v{hW+p}, v{o+st*p+1}")
        if norm:
            A(f"  v_rcp_f32 v{hL}, v{M+1}")
            A(f"  v_mul_f32 v{hO}, v{hO}, v{hL}")
            A(f"  v_mul_f32 v{hO+1}, v{hO+1}, v{hL}")
            A(f"  v_cvt_pk_bf16_f32 v{hO}, v{hO}, v{hO+1}")

    def combine4(a8, az, ldsoff, so, wsoff):
        for v in range(4):
            A(f"  ds_read_b64 v[{hE+2*v}:{hE+2*v+1}], v{az} offset:{ldsoff+v*PS+512}")
        for v in range(4):
            A(f"  ds_read_b64 v[{hD+2*v}:{hD+2*v+1}], v{a8} offset:{ldsoff+v*PS}")
        A("  s_waitcnt lgkmcnt(0)")
        merge(4, False, hD, hE, 2)
        guard(hO, 4)
        A(f"  buffer_store_dwordx4 v[{hO}:{hO+3}], v{h16}, {WS}, {so} offen offset:{wsoff} sc1")

    def combine8(lab, sbase, stride, ldsoff, bar=False):
        def polls():
            for p in range(8):
                if p:
                    A(f"  s_add_u32 {sT2}, {sbase}, {p*stride}")
                so = sT2 if p else sbase
                A(f"  buffer_load_dwordx4 v[{hD+4*p}:{hD+4*p+3}], v{h16}, {WS}, {so} offen sc1")
        A(f"  s_mov_b32 {sSpin}, {SPIN}")
        if bar:
            polls()
            A("  s_barrier")
            A(f"  s_branch {lab}_w")
        A(f"{lab}:")
        polls()
        A(f"{lab}_w:")
        A("  s_waitcnt vmcnt(0)")
        anysent(hD, 32, lab)
        merge(8, True, hD, hD + 2, 4)
        A(f"  ds_write_b32 v{hA}, v{hO} offset:{ldsoff}")

    A("L_helper:")
    if prio:
        A(f"  s_setprio {prio}")
    A(f"  s_lshl_b32 {sWG}, s2, 12")
    for i in range(4):
        A(f"  v_mov_b32 v{hD+i}, -1")
    A(f"  s_mov_b32 s66, {WS_SIZE}\n  s_mov_b32 s67, 0x20000\n  s_mov_b32 s78, 4096\n  s_mov_b32 s79, 0x20000")
    A("  s_waitcnt lgkmcnt(0)")
    A("  s_mov_b32 s64, s28\n  s_mov_b32 s65, s29")
    for j in range(4 if not noclr & 1 else 0):
        A(f"  buffer_store_dwordx4 v[{hD}:{hD+3}], v{vL16}, {WS}, {sWG} offen offset:{j*1024} sc1")
    A("  s_mov_b32 s76, s24\n  s_mov_b32 s77, s25")
    A(f"  s_lshl_b32 {sT0}, {sH}, 3")
    A(f"  s_add_u32 s80, s26, {sT0}\n  s_addc_u32 s81, s27, 0")
    A(f"  s_lshl_b32 s31, {sH}, 13")
    A(f"  s_add_u32 s31, s31, {W_AP}")
    A(f"  s_cmp_eq_u32 {sAA}, 0")
    A("  s_cbranch_scc1 L_h_noclr")
    A(f"  s_add_u32 {sT2}, s31, 4096")
    for j in range(8 if not noclr & 2 else 0):
        A(f"  buffer_store_dwordx4 v[{hD}:{hD+3}], v{vL16}, {WS}, {'s31' if j < 4 else sT2} offen offset:{(j%4)*1024} sc1")
    A("L_h_noclr:")
    if pt & 1:
        A(f"  s_lshl_b32 {sT0}, {sH}, 23")
        A(f"  v_lshlrev_b32 v6, 21, v0")
        A(f"  v_add_u32 v7, {sT0}, v6")
        A("  s_mov_b64 exec, 15")
        A(f"  global_load_dword v{hE}, v7, s[16:17] nt")
        A(f"  global_load_dword v{hE+1}, v6, s[10:11] nt")
        A("  s_mov_b64 exec, -1")
    A(f"  v_lshlrev_b32 v4, 2, v0")
    A(f"  v_lshlrev_b32 v5, 3, v0")
    A("  s_waitcnt vmcnt(0)")
    A(f"  v_mov_b32 v{h16}, v{vL16}")
    A(f"  v_mov_b32 v{hA}, v4")
    A(f"  v_mov_b32 v{hL8}, v5")
    A(f"  v_mov_b32 v{hZ}, 0")
    A(f"  s_mov_b32 {sTk}, 1")
    A(f"  s_atomic_add {sTk}, {DBGP}, 0 glc")
    A("  s_waitcnt lgkmcnt(0)")
    stamp(1)
    A("  s_barrier")
    sum4(L_QBP, W_QB)
    A(f"  s_add_u32 {sTk}, {sTk}, 1")
    A(f"  s_mov_b32 {sSpin}, {SPIN}")
    A("L_h_flag:")
    A(f"  s_cmp_ge_u32 {sTk}, 8")
    A("  s_cbranch_scc1 L_h_flag_ok")
    if fl:
        A(f"  global_load_dword v{hE}, v{hZ}, {DBGP} sc1")
        A("  s_waitcnt vmcnt(0)")
        A(f"  v_readfirstlane_b32 {sTk}, v{hE}")
        A(f"  s_sub_u32 {sSpin}, {sSpin}, 1")
    else:
        A(f"  s_mov_b32 {sTk}, 0")
        A(f"  s_atomic_add {sTk}, {DBGP}, 0 glc")
        A(f"  s_sub_u32 {sSpin}, {sSpin}, 1")
        A("  s_waitcnt lgkmcnt(0)")
    A("  s_cbranch_scc0 L_h_flag")
    A("L_h_flag_ok:")
    stamp(2)
    A(f"  s_lshl_b32 {sT0}, {sH}, 15")
    qgather("L_h_qb", sT0, hA, L_Q)
    stamp(3)
    A("  s_waitcnt lgkmcnt(0)")
    A("  s_barrier")
    sum4(L_QAP, W_QA)
    if pt & 2:
        A(f"  s_lshl_b32 {sT0}, {sH}, 23")
        A(f"  v_lshlrev_b32 v6, 21, v0")
        A(f"  v_add_u32 v7, {sT0}, v6")
        A("  s_mov_b64 exec, 15")
        A(f"  global_load_dword v{hE}, v7, s[18:19] nt")
        A(f"  global_load_dword v{hE+1}, v6, s[12:13] nt")
        A(f"  global_load_dword v{hE+2}, v6, s[22:23] nt")
        A("  s_mov_b64 exec, -1")
    A(f"  s_mov_b32 {sSpin}, {SPIN}")
    A("L_h_all:")
    A(f"  global_load_dword v{hD+4}, v{hA}, s[26:27] sc1")
    A("  s_waitcnt vmcnt(0)")
    A(f"  v_cmp_gt_u32 vcc, 8, v{hD+4}")
    A("  s_nop 1")
    A("  s_and_b32 vcc_lo, vcc_lo, 0x55555555")
    A("  s_and_b32 vcc_hi, vcc_hi, 0x55555555")
    A(f"  s_sub_u32 {sSpin}, {sSpin}, 1")
    A("  s_cbranch_scc1 L_h_all_ok")
    A("  s_cmp_eq_u64 vcc, 0")
    A("  s_cbranch_scc0 L_h_all")
    A("L_h_all_ok:")
    stamp(4)
    A(f"  s_cmp_eq_u32 {sAA}, 0")
    A("  s_cbranch_scc1 L_h_noaa")
    A(f"  s_lshr_b32 {sT0}, {sH}, 3")
    A(f"  s_lshl_b32 {sT0}, {sT0}, 18")
    A(f"  s_add_u32 {sT0}, {sT0}, {W_QA}")
    A(f"  v_mov_b32 v6, v{hA}")
    A(f"  s_mov_b32 {sT1}, 8")
    A("L_h_qa_next:")
    qgather("L_h_qa", sT0, 6, L_QA)
    A(f"  s_add_u32 {sT0}, {sT0}, {8*WG_STRIDE}")
    A("  v_add_u32 v6, 256, v6")
    A(f"  s_sub_u32 {sT1}, {sT1}, 1")
    A(f"  s_cmp_lg_u32 {sT1}, 0")
    A("  s_cbranch_scc1 L_h_qa_next")
    A("  s_waitcnt lgkmcnt(0)")
    A("  s_barrier")
    A("  s_barrier")
    A(f"  v_mov_b32 v6, v{hL8}")
    A(f"  v_mov_b32 v7, 0")
    A(f"  s_mov_b32 {sT1}, 8")
    A("L_h_ap_next:")
    combine4(6, 7, L_APART, "s31", 0)
    A(f"  s_add_u32 s31, s31, 1024")
    A(f"  v_add_u32 v6, {RS}, v6")
    A(f"  v_add_u32 v7, {RS}, v7")
    A(f"  s_sub_u32 {sT1}, {sT1}, 1")
    A(f"  s_cmp_lg_u32 {sT1}, 0")
    A("  s_cbranch_scc1 L_h_ap_next")
    A("L_h_noaa:")
    A(f"  s_lshr_b32 {sT0}, {sH}, 3")
    A(f"  s_lshl_b32 {sT0}, {sT0}, 16")
    A(f"  s_and_b32 {sT1}, {sH}, 7")
    A(f"  s_lshl_b32 {sT1}, {sT1}, 10")
    A(f"  s_add_u32 {sT0}, {sT0}, {sT1}")
    A(f"  s_add_u32 {sT0}, {sT0}, {W_AP}")
    A(f"  v_lshlrev_b32 v6, 13, v0")
    A(f"  s_mov_b32 {sSpin}, {SPIN}")
    A("  s_mov_b64 exec, 0xff")
    A("L_h_apw:")
    if slp:
        A(f"  s_sleep {slp}")
    A(f"  buffer_load_dword v{hD}, v6, {WS}, {sT0} offen offset:12 sc1")
    A("  s_waitcnt vmcnt(0)")
    A(f"  v_cmp_eq_u32 vcc, -1, v{hD}")
    A(f"  s_sub_u32 {sSpin}, {sSpin}, 1")
    A("  s_cbranch_scc1 L_h_apw_ok")
    A("  s_cbranch_vccnz L_h_apw")
    A("L_h_apw_ok:")
    A("  s_mov_b64 exec, -1")
    combine8("L_h_ap8", sT0, 8192, L_OA)
    stamp(5)
    if touch:
        A(f"  s_lshl_b32 {sT0}, {sH}, 18")
        A(f"  v_mov_b32 v6, {sT0}")
        A("  s_mov_b64 exec, 1")
        A(f"  global_load_dword v{hD}, v6, s[12:13] nt")
        A(f"  global_load_dword v{hD+1}, v6, s[22:23] nt")
        if touch > 1:
            A(f"  global_load_dword v{hD+2}, v{hZ}, s[24:25] nt")
        A("  s_waitcnt vmcnt(0)")
        A("  s_mov_b64 exec, -1")
    A(f"  s_lshl_b32 {sT0}, {sH}, 15")
    A(f"  s_add_u32 {sT0}, {sT0}, {W_BP}")
    A("  v_and_b32 v6, 31, v0")
    A("  v_lshlrev_b32 v6, 15, v6")
    A("  v_lshrrev_b32 v7, 5, v0")
    A("  v_lshl_add_u32 v6, v7, 9, v6")
    A(f"  s_lshl_b32 {sT1}, {sS}, 12")
    A(f"  s_lshl_b32 s31, {sH}, 4")
    A(f"  s_add_u32 {sT1}, {sT1}, s31")
    A(f"  s_add_u32 {sT1}, {sT1}, {W_O2B}")
    A("  v_xor_b32 v7, 1, v7")
    A("  v_lshlrev_b32 v7, 11, v7")
    A(f"  s_lshl_b32 s31, {sS}, 8")
    A(f"  s_lshl_b32 {sTk}, {sH}, 3")
    A(f"  s_add_u32 s31, s31, {sTk}")
    A("  s_waitcnt lgkmcnt(0)")
    A("  s_barrier")
    stamp(6)
    combine4(hL8, hZ, L_BPART, sWG, W_BP)
    if "D" in wo and (dp or not poll1):
        A("  s_barrier")
    if not dp:
        combine8("L_h_bp8", sT0, WG_STRIDE, L_OB, "D" in wo and poll1)
    stamp(7)
    A("  s_waitcnt lgkmcnt(0)")
    A("  s_barrier")
    sum4(L_O2A, W_O2A)
    A("  s_barrier")
    sum4(L_O2B, W_O2B)
    stamp(8)
    A(f"  s_mov_b32 {sSpin}, {SPIN}")
    if not pipe:
        A("L_h_fin:")
        A(f"  buffer_load_dwordx4 v[{hE}:{hE+3}], v6, {WS}, {sT1} offen sc1")
        A("  s_waitcnt vmcnt(0)")
        anysent(hE, 4, "L_h_fin")
    else:
        for r in range(2):
            A(f"  buffer_load_dwordx4 v[{hD+4*r}:{hD+4*r+3}], v6, {WS}, {sT1} offen sc1")
        A("L_h_fin:")
        for r in range(3):
            q = (r + 2) % 3
            A(f"  buffer_load_dwordx4 v[{hD+4*q}:{hD+4*q+3}], v6, {WS}, {sT1} offen sc1")
            A("  s_waitcnt vmcnt(2)")
            A(f"  v_max3_u32 v{hW}, v{hD+4*r}, v{hD+4*r+1}, v{hD+4*r+2}")
            A(f"  v_max_u32 v{hW}, v{hW}, v{hD+4*r+3}")
            A(f"  v_cmp_eq_u32 vcc, -1, v{hW}")
            for i in range(4):
                A(f"  v_mov_b32 v{hE+i}, v{hD+4*r+i}")
            A("  s_cbranch_vccz L_h_fin_ok")
        A(f"  s_sub_u32 {sSpin}, {sSpin}, 1")
        A("  s_cbranch_scc0 L_h_fin")
        A("L_h_fin_ok:")
    for ctrl in ("row_ror:8", "row_ror:4", "quad_perm:[2,3,0,1]", "quad_perm:[1,0,3,2]"):
        for i in range(4):
            dpp("v_add_f32", hE + i, hE + i, hE + i, ctrl)
    for i in range(4):
        A(f"  v_mov_b32 v{hE+4+i}, v{hE+i}")
    for i in range(4):
        A(f"  v_permlane16_swap_b32 v{hE+i}, v{hE+4+i}")
    for i in range(4):
        A(f"  v_add_f32 v{hE+i}, v{hE+i}, v{hE+4+i}")
    A(f"  v_cvt_pk_bf16_f32 v{hE}, v{hE}, v{hE+1}")
    A(f"  v_cvt_pk_bf16_f32 v{hE+1}, v{hE+2}, v{hE+3}")
    A("  s_mov_b32 exec_lo, 1")
    A("  s_mov_b32 exec_hi, 1")
    A(f"  buffer_store_dwordx2 v[{hE}:{hE+1}], v7, {OUT}, s31 offen {osc}")
    if stamps:
        A("  s_mov_b64 exec, -1")
        stamp(9, True)
        A("  s_waitcnt vmcnt(0)")
        A(f"  s_lshl_b32 {sT0}, s2, 8")
        A(f"  s_add_u32 {sT0}, {sT0}, {STAMP1+64}")
        A(f"  v_lshl_add_u32 v253, v0, 2, {sT0}")
        A("  s_mov_b64 exec, 0xffff")
        A("  global_store_dword v253, v252, s[28:29]")
        A("  v_mov_b32 v8, s98\n  v_mov_b32 v9, s99\n  v_mov_b32 v10, s96\n  v_mov_b32 v11, s97")
        A(f"  s_lshl_b32 {sT0}, s2, 4")
        A(f"  s_add_u32 {sT0}, {sT0}, {STAMP0}")
        A(f"  v_mov_b32 v253, {sT0}")
        A("  s_mov_b64 exec, 1")
        A("  global_store_dwordx4 v253, v[8:11], s[28:29]")
    A("L_end:")
    A("  s_endpgm")
    A('.section .rodata,"a"')
    A(".p2align 6")
    A(f".amdhsa_kernel {KN}")
    A("  .amdhsa_next_free_vgpr 256")
    A("  .amdhsa_next_free_sgpr 102")
    A("  .amdhsa_accum_offset 256")
    A("  .amdhsa_group_segment_fixed_size 0")
    A("  .amdhsa_kernarg_size 104")
    A("  .amdhsa_user_sgpr_count 2")
    A("  .amdhsa_user_sgpr_kernarg_segment_ptr 1")
    A("  .amdhsa_system_sgpr_workgroup_id_x 1")
    A(".end_amdhsa_kernel")
    A.pad()
    return A.text()


if __name__ == "__main__":
    names = []
    for spec in sys.argv[1:]:
        out = None
        if "@" in spec:
            spec, out = spec.split("@")
        kv = dict(x.split("=") for x in spec.split(",") if x)
        p = {k: (v.replace("+", " ") if k in ("pol", "wo", "osc") else int(v)) for k, v in kv.items()}
        name = out or "k_" + spec.replace("=", "").replace(",", "_").replace("+", "") + ".s"
        open(name, "w").write(gen(**p))
        names.append(name)
    print(" ".join(os.path.relpath(n, "code") for n in names))
```

```python
import sys, os
sys.path.insert(0, os.path.dirname(os.path.abspath(__file__)))
from asmlib import Asm

KN = "concat_heads__sliding_block_cached__mha_block_cached__decode_kernel"
HEADER = open(os.path.join(os.path.dirname(os.path.abspath(__file__)), "header.txt")).read()

WG_STRIDE = 4096
W_QB, W_QA, W_BP, W_O2B, W_O2A, W_CNT = 0, 512, 1024, 2048, 2560, 3072
W_AP = 1 << 20
W_X = (1 << 20) + 32 * 8192
WS_BASE = W_X
STAMP0 = 0x20000000
STAMP1 = 0x20100000
PS = 544
RS = 4 * PS
L_QBP, L_QAP, L_BPART, L_O2A, L_O2B, L_APART = 0, RS, 2 * RS, 3 * RS, 4 * RS, 5 * RS
L_Q = 13 * RS
L_OA = L_Q + 256
L_OB = L_OA + 256
L_QA = L_OB + 256
L_RK = L_QA + 2048
L_SC = 32768
LDS_BYTES = 65536
SPIN = 1 << 20
DOC = '''
; Fused single-launch decode step, 256 workgroups (one per CU) x 5 waves; written by gen/gen.py (own generator).
;   workgroup w: head h = w>>3, slice s = w&7.  waves 0-3 stream HBM with a fixed number of 1-KiB loads in flight,
;   wave 4 (helper) does the hand-offs between workgroups.
;   1. q = x@wq: 128-row slices per workgroup, 8 partials per head exchanged through d_ws (K loads are prefetched meanwhile)
;      dealt dynamically as fused K+V tiles (online softmax).  Branch A (GQA window) is done by one workgroup per head group
;      between its two phases.
;   3. partial (o, max, sum) boxes are merged per head, o@wo is done in 128x128 blocks, 32 partial rows are summed per column.
;   write-through stores; readers poll with sc1 loads until no word holds the sentinel.  All spins are bounded.
'''
PATS = [
    "j0:10 j1:11 j2:12 v0:13 v1:14 s0:15 s1:16 s2:17 i0:18 i1:19 i2:20 i3:21 i4:22 h0: h1: h2: h3: h4:",
    "j0:10+12 j1:14+19 j2:22 v0:21 v1:13 s0:14 s1:15+18 s2:11 i0:10 i1:15 i2:16+17 i3:17 i4:20 h0: h1: h2:10+17 h3:20 h4:13",
    "j0:20 j1:11 j2:18+22 v0:13 v1:21 s0:14 s1:10 s2:17 i0:16+19 i1:15 i2:12 i3:18 i4:16 h0:10 h1:17 h2:10 h3:15+21 h4:10",
    "j0:12 j1:11 j2:13 v0:16 v1:21 s0:14+22 s1:10 s2:17 i0:18 i1:15 i2:21+22 i3:20+22 i4:19 h0: h1:16 h2:21 h3:15+18 h4:22",
    "j0:10+19 j1:16+22 j2:22 v0:21 v1:13 s0:20 s1:12 s2:11+14 i0:14 i1:15 i2:19 i3:17 i4:11+18 h0:13 h1: h2:13 h3: h4:13+16",
    "j0:13 j1:17+21 j2:11+12 v0:20 v1:21 s0:13+14 s1:16 s2:18+22 i0:15 i1:18 i2:12 i3:13+19 i4:10+21 h0:18 h1: h2: h3: h4:15",
    "j0:12+22 j1:11+19 j2:21 v0:14 v1:13 s0:15 s1:16 s2:17 i0:11+22 i1:10 i2:12+13 i3:18 i4:20 h0:20 h1:12 h2:19 h3: h4:21",
    "j0:9 j1:19+20 j2:13 v0:21 v1:11 s0:9+10 s1:14 s2:17 i0:15 i1:12 i2:20+21 i3:18 i4:22 h0:10 h1:13+17 h2:10 h3:22 h4:10+15 k0:16 k1:8",
    "j0:16 j1:12 j2:13 v0:21 v1:11 s0:14 s1:10 s2:17+19+21 i0:8 i1:22 i2:19 i3:11+18+21 i4:20 h0:13 h1:19 h2:8 h3: h4:22 k0:8+9+15 k1:15",
    "j0:21 j1:9+11+19 j2:9 v0:12+22 v1:13 s0:12+14+15+19 s1:16 s2:17 i0:11+22 i1:18 i2:10 i3:20 i4:12 h0:13 h1:10+18 h2: h3: h4: k0:8 k1:14",
    "j0:8 j1:14 j2:20 v0:9+13 v1:10+12 s0:13+18 s1:11+12 s2:17 i0:15 i1:19 i2:21 i3:22 i4:13 h0: h1:17 h2:8 h3: h4:10+14 k0:12+16 k1:10+13",
    "j0:8 j1:21 j2:22 v0:9 v1:11 s0:10 s1:11+14 s2:17 i0:19 i1:15 i2:13+21 i3:12+19 i4:8+18 h0:10 h1:9+15+17 h2: h3: h4: k0:16 k1:13+15+20",
    "j0:12+18 j1:8+11 j2:9 v0:16 v1:15 s0:10 s1:14 s2:17+18 i0:13+21 i1:16+19 i2:12+16+21 i3:20 i4:22 h0:21 h1: h2:16 h3: h4:15 k0:13 k1:8",
    "j0:9+21 j1:8+21 j2:15 v0:10+12 v1:13 s0:18 s1:10 s2:11 i0:16 i1:19 i2:9+22 i3:20 i4:12+14+15 h0: h1:12 h2: h3:10 h4:16 k0:8 k1:17+22",
    "j0:13 j1:12+13 j2:8 v0:21 v1:11+22 s0:8+15 s1:14 s2:17 i0:16 i1:22 i2:20 i3:18 i4:10 h0: h1:8+9 h2:20+21+22 h3: h4: k0:19+22 k1:9",
    "j0:12 j1:9 j2:21 v0:11 v1:13 s0:14+16 s1:9+10 s2:17 i0:16 i1:20 i2:18 i3:22 i4:19+22 h0:12 h1:21 h2: h3:15 h4:8+21 k0:8+12 k1:15",
    "j0:8+9 j1:18 j2:10+21 v0:13 v1:19+20 s0:21 s1:14 s2:8+17 i0:9 i1:22 i2:11 i3:20 i4:12 h0:10 h1:11+17+20 h2:9 h3:20+22 h4:8 k0:15 k1:16",
    "j0:9 j1:21 j2:8+11+13 v0:15 v1:12+16+19 s0:14+21 s1:10 s2:15+17 i0:16 i1:18 i2:22 i3:19 i4:20 h0:10 h1:17+22 h2: h3:13 h4: k0:11 k1:8+9+15",
    "j0:16+21 j1:12 j2:19 v0:15 v1:9+21 s0:10+18 s1:21 s2:11+17 i0:13 i1:10 i2:14+19+22 i3:9+21+22 i4:12+20 h0: h1:12 h2: h3:10 h4: k0:17+22 k1:8",
]


def parse_pat(t):
    c = {}
    for w in t.split():
        k, b = w.split(":")
        c[k] = sum(1 << int(x) for x in b.split("+") if x)
    c.setdefault("k0", 256)
    c.setdefault("k1", 512)
    rows = [c[k] for k in c if k[0] != "h"]
    for bit in range(8, 23):
        p = next(x for x in rows if x >> bit & 1)
        rows.remove(p)
        rows = [x ^ p if x >> bit & 1 else x for x in rows]
    return c


def gen(NS=3, stamps=0, pol="nt", wo="CD", prio=3, cap=52, cap0=5, ust=1, n=31, na=25, nC=8, tke=0, capA=7, early=0, poll1=1, nF=8, touch=0, osc="", pipe=0, fx=24, pat=16, tab=0, D=0, uB=27, capP=0, pt=0, capV=66555555, pk=0, thr=56, capF=7, hoist=0, fb=0, fS=44444445, fF=66666665, csp=1, noclr=0, fbm=0, slp=0, sub=0, dp=1, xa=0, fl=0, pdp=0, pair=0, c00=0, dual=0, rk=0):
    A = Asm()
    WS_SIZE = WS_BASE + (256 * 512 if dual else 0)
    lo, frac = divmod(cap, 10)
    caps = [lo + (1 if (j + 1) * frac // 10 > j * frac // 10 else 0) for j in range(8)]
    if frac == 5:
        caps = [lo + 1 - (j & 1) for j in range(8)]
    if cap > 1000:
        caps = [int(ch) for ch in str(cap)]
    cap = caps[7]
    nst = [0]

    sH, sS, sW = "s84", "s85", "s3"
    sIdx, sOff, sTk, sIt = "s86", "s87", "s88", "s89"
    sT0, sT1, sT2, sC = "s90", "s91", "s93", "s92"
    sSpin, sAA = "s94", "s95"
    KB, VB, WQB, WQA, WOB, WOA, KA, VA, WS, XB, XA, OUT = ["s[%d:%d]" % (i, i + 3) for i in range(32, 80, 4)]
    DBGP, CNTP = "s[80:81]", "s[82:83]"
    vL16, vWq, vWo = 1, 2, 3
    vQ, vAcc, vM, vLs = 4, 8, 16, 17
    vS0, vR0, vR1, vT, vMx, vAl, vPl, vPh, vMn = 18, 22, 23, 24, 25, 26, 28, 29, 30
    vLo, vLm, vCo = 240, 241, 242
    vX = 244
    vList, vMr, vSc, vL16b = 243, 250, 251, 31
    vP1l, vP1h = 20, 21
    sI, sThr, sPend = "s100", "s24", "s25"
    E1 = 4 * (32 - na)
    E = E1 + 28 * (32 - n)
    P3 = 2 * (E - D)
    if sub:
        E, E1, P3, fx = E // 4, E1 // 4, P3 // 4, fx // 4
    assert E <= 128 and 32 - n <= 3
    COL = parse_pat(PATS[pat])
    TJ = [(COL["j0"] if j & 1 else 0) ^ (COL["j1"] if j & 2 else 0) ^ (COL["j2"] if j & 4 else 0) for j in range(8)]
    vP3a, vP3b = 254, 255
    NMAX = 48
    CO2 = 0x80 if csp else 0x100
    assert n > na and 28 * (NMAX - n) >= D
    NT, NTA = n, na
    assert P3 >= 0
    slot = lambda b: 32 + 32 * b
    vWQB, vWQA = 160, 192
    vQA, vAccA, vMA, vLA = 128, 160, 224, 232
    vSA, vRA, vMrA, vTA, vCfA = 64, 96, 112, 120, 80
    NXT = "s[12:15]"

    def stamp(k, force=False):
        if stamps == 1 or (stamps and force):
            A(f"  s_memrealtime s[96:97]")
            A(f"  s_waitcnt lgkmcnt(0)")
            A(f"  v_writelane_b32 v252, s96, {k}")

    def dpp(op, d, a, b, ctrl, bank=0xf):
        A(f"  {op}_dpp v{d}, v{a}, v{b} {ctrl} row_mask:0xf bank_mask:{bank:#x}")

    def kvload(srd, r, so, va=vL16):
        for j in range(4):
            A(f"  buffer_load_dwordx4 v[{r+4*j}:{r+4*j+3}], v{va}, {srd}, {so} offen offset:{j*1024} {pol}")

    def wload(srd, r, voff, sbase, step, j0=0, n=8):
        for j in range(j0, j0 + n):
            if j:
                A(f"  s_add_u32 {sT2}, {sbase}, {j*step}")
            so = sT2 if j else sbase
            A(f"  buffer_load_dwordx4 v[{r+4*j}:{r+4*j+3}], v{voff}, {srd}, {so} offen {pol}")

    def qk(k, q):
        for m in range(4):
            for j in range(4):
                if m == 0:
                    A(f"  v_dot2_f32_bf16 v{vS0+j}, v{k+4*j}, v{q}, 0")
                else:
                    A(f"  v_dot2c_f32_bf16 v{vS0+j}, v{k+4*j+m}, v{q+m}")

    def dots(k, q, j):
        d = vS0 + (j & 3)
        A(f"  v_dot2_f32_bf16 v{d}, v{k}, v{q}, 0")
        for m in range(1, 4):
            A(f"  v_dot2_f32_bf16 v{d}, v{k+m}, v{q+m}, v{d}")

    def ld(srd, r, va, so, off=0):
        A(f"  buffer_load_dwordx4 v[{r}:{r+3}], v{va}, {srd}, {so} offen offset:{off} {pol}")

    vKV, vAd, vNx = 253, 27, 30
    kmask = COL["k0"] | COL["k1"]
    plain = not any(v & kmask for k, v in COL.items() if k[0] != "k")
    TABN = ["j0", "j1", "j2", "v0", "v1", "s0", "s1", "s2", "i0", "i1", "i2", "i3", "i4", "h0", "h1", "h2", "h3", "h4", "k0", "k1"]
    vTab = 7
    if tab:
        plain = False
        TJ = [0] + ["s%d" % (3 + j) for j in range(1, 8)]
    hx = lambda x: x if isinstance(x, str) else hex(x)

    def col(nm):
        if not tab:
            return hex(COL[nm])
        A(f"  v_readlane_b32 s64, v{vTab}, {TABN.index(nm)}")
        return "s64"

    def ldx(srd, r, so, x):
        if x:
            A(f"  s_xor_b32 {sT2}, {so}, {hx(x)}")
        if plain:
            ld(srd, r, vKV, sT2 if x else so)
        else:
            A(f"  v_xor_b32 v{vAd}, {sT2 if x else so}, v{vKV}")
            ld(srd, r, vAd, "0")

    def tk(srd, b, so):
        return lambda j: ldx(srd, slot(b) + 4 * j, so, TJ[j])

    def tka(srd, so):
        return lambda j: ld(srd, slot(0) + 4 * j, vL16 if j < 4 else vL16b, so, (j & 3) * 1024)

    def tkn(j):
        A(f"  v_xor_b32 v{vAd}, s{16+j}, v{vNx}")
        ld(NXT, slot(0) + 4 * j, vAd, "0")

    def prep_next(sa, sb, a_if_scc):
        A("  s_cselect_b32 s23, 1, 0")
        for j in range(cap):
            A(f"  s_add_u32 s{16+j}, {sa}, {j*1024}")
            A(f"  s_xor_b32 {sT2}, {sb}, {hx(TJ[j])}")
            A(f"  s_cmp_eq_u32 s23, {1 if a_if_scc else 0}")
            A(f"  s_cselect_b32 s{16+j}, s{16+j}, {sT2}")
        A(f"  s_mov_b32 {sPend}, s16")
        A("  s_cselect_b64 vcc, -1, 0")
        A(f"  v_cndmask_b32 v{vNx}, v{vKV}, v{vL16}, vcc")

    def advance():
        A(f"  s_mov_b32 {sOff}, {sPend}")

    def ft(so):
        return lambda j: ldx(KB if j < 4 else VB, slot(0) + 4 * j, so, TJ[j & 3])

    def xormap(d, x):
        bits = [("i%d" % k, k) for k in range(5)] + [("v%d" % k, 5 + k) for k in range(2)] + \
               [("s%d" % k, 7 + k) for k in range(3)] + [("h%d" % k, 10 + k) for k in range(5)]
        first = True
        for nm, b in bits:
            if not COL[nm] and not tab:
                continue
            A(f"  v_bfe_i32 v{vX+3}, v{x}, {b}, 1")
            if first:
                A(f"  v_and_b32 v{d}, {col(nm)}, v{vX+3}")
                first = False
            else:
                A(f"  v_and_b32 v{vX+3}, {col(nm)}, v{vX+3}")
                A(f"  v_xor_b32 v{d}, v{d}, v{vX+3}")

    def wl(srd, r, voff, sbase, step):
        def f(j):
            if j:
                A(f"  s_add_u32 {sT2}, {sbase}, {j*step}")
            ld(srd, r + 4 * j, voff, sT2 if j else sbase)
        return f

    def wait_issue(wait, loads):
        mark = len(A.L)
        parts = []
        for k, f in enumerate(loads):
            m = len(A.L)
            f()
            seg = A.L[m:]
            if k & 1:
                seg = [x.replace(sT2, "s101").replace(f"v{vAd},", "v25,") for x in seg]
            parts.append(seg)
        del A.L[mark:]
        if hoist and wait and len(loads) <= 2:
            pre = [x for seg in parts for x in seg if "buffer_load" not in x]
            post = [x for seg in parts for x in seg if "buffer_load" in x]
            A.L += pre + [wait] + post
        else:
            A.L += ([wait] if wait else []) + [x for seg in parts for x in seg]

    def steps(j0, j1, lead, cur, nxt, proc, nmax=8, first_wait=True, caps=caps):
        for j in range(j0, j1):
            w = f"  s_waitcnt vmcnt({lead-j-1})" if first_wait or j > j0 else None
            loads = []
            while lead < min(j + 1 + caps[j], 8 + nmax):
                loads.append(lambda f=(cur if lead < 8 else nxt), k=lead & 7: f(k))
                lead += 1
            wait_issue(w, loads)
            proc(j)
        return lead

    def stream_iter(cur, nxt, proc, caps=caps):
        assert steps(0, 8, cap, cur, nxt, proc, caps=caps) == 8 + cap

    def red16(t):
        dpp("v_add_f32", vR0, vS0, vS0, "row_ror:8", 0x3)
        dpp("v_add_f32", vR1, vS0 + 2, vS0 + 2, "row_ror:8", 0x3)
        dpp("v_add_f32", vR0, vS0 + 1, vS0 + 1, "row_ror:8", 0xc)
        dpp("v_add_f32", vR1, vS0 + 3, vS0 + 3, "row_ror:8", 0xc)
        dpp("v_add_f32", t, vR0, vR0, "row_half_mirror", 0x5)
        dpp("v_add_f32", t, vR1, vR1, "row_half_mirror", 0xa)
        dpp("v_add_f32", t, t, t, "quad_perm:[1,0,3,2]")
        dpp("v_add_f32", t, t, t, "quad_perm:[2,3,0,1]")

    def softmax(t, m, l, acc, pl, ph):
        dpp("v_max_f32", vMx, t, t, "row_ror:4")
        dpp("v_max_f32", vMx, vMx, vMx, "row_ror:8")
        A(f"  v_mul_f32 v{vMx}, {sC}, v{vMx}")
        A(f"  v_max_f32 v{vMn}, v{m}, v{vMx}")
        A(f"  v_fma_f32 v{t}, v{t}, {sC}, -v{vMn}")
        A(f"  v_sub_f32 v{vAl}, v{m}, v{vMn}")
        A(f"  v_exp_f32 v{t}, v{t}")
        A(f"  v_exp_f32 v{vAl}, v{vAl}")
        A(f"  v_mov_b32 v{m}, v{vMn}")
        A(f"  v_cvt_pk_bf16_f32 v{pl}, v{t}, 0")
        A(f"  v_fma_f32 v{l}, v{l}, v{vAl}, v{t}")
        A(f"  v_lshlrev_b32 v{ph}, 16, v{pl}")
        for i in range(4):
            A(f"  v_pk_mul_f32 v[{acc+2*i}:{acc+2*i+1}], v[{acc+2*i}:{acc+2*i+1}], v[{vAl}:{vAl+1}] op_sel_hi:[1,0]")

    def pv(acc, v, pl, ph, lanes):
        for j, ln in enumerate(lanes):
            for m in range(4):
                dpp("v_dot2c_f32_bf16", acc + 2 * m, pl, v + 4 * j + m, f"row_newbcast:{ln}")
                dpp("v_dot2c_f32_bf16", acc + 2 * m + 1, ph, v + 4 * j + m, f"row_newbcast:{ln}")

    KVL = [0, 8, 4, 12]

    def zero(acc, n=8):
        for i in range(n):
            A(f"  v_mov_b32 v{acc+i}, 0")

    def redrows(acc, ldsoff):
        for a, b in ((0, 4), (2, 6), (1, 5), (3, 7)):
            A(f"  v_permlane32_swap_b32 v{acc+a}, v{acc+b}")
        for a, b in ((0, 4), (2, 6), (1, 5), (3, 7)):
            A(f"  v_add_f32 v{acc+a}, v{acc+a}, v{acc+b}")
        A(f"  v_permlane16_swap_b32 v{acc}, v{acc+2}")
        A(f"  v_permlane16_swap_b32 v{acc+1}, v{acc+3}")
        A(f"  v_add_f32 v{acc}, v{acc}, v{acc+2}")
        A(f"  v_add_f32 v{acc+1}, v{acc+1}, v{acc+3}")
        A(f"  ds_write_b64 v{vLo}, v[{acc}:{acc+1}] offset:{ldsoff}")

    def allrows(op, d, x):
        t1, t2 = vX + 2, vX + 3
        A(f"  v_mov_b32 v{t1}, v{x}")
        A(f"  v_mov_b32 v{t2}, v{x}")
        A(f"  v_permlane32_swap_b32 v{t1}, v{t2}")
        A(f"  {op} v{t1}, v{t1}, v{t2}")
        A(f"  v_mov_b32 v{t2}, v{t1}")
        A(f"  v_permlane16_swap_b32 v{t1}, v{t2}")
        A(f"  {op} v{d}, v{t1}, v{t2}")

    def fin(acc, m, l, ldsoff):
        M, Ls = vX, vX + 1
        allrows("v_max_f32", M, m)
        A(f"  v_sub_f32 v{vAl}, v{m}, v{M}")
        A(f"  v_exp_f32 v{vAl}, v{vAl}")
        dpp("v_add_f32", vR0, l, l, "row_ror:4")
        for i in range(4):
            A(f"  v_pk_mul_f32 v[{acc+2*i}:{acc+2*i+1}], v[{acc+2*i}:{acc+2*i+1}], v[{vAl}:{vAl+1}] op_sel_hi:[1,0]")
        dpp("v_add_f32", vR0, vR0, vR0, "row_ror:8")
        A(f"  v_mul_f32 v{vR0}, v{vR0}, v{vAl}")
        allrows("v_add_f32", Ls, vR0)
        A(f"  ds_write_b64 v{vLm}, v[{M}:{M+1}] offset:{ldsoff}")
        redrows(acc, ldsoff)

    def score(u):
        red16(vT)
        A(f"  v_max_f32 v{vMr}, v{vMr}, v{vT}")
        A(f"  ds_write_b32 v{vSc}, v{vT} offset:{4*u}")
        if u:
            A(f"  v_add_u32 v{vSc}, 128, v{vSc}")

    def scbase():
        A(f"  s_lshl_b32 {sT1}, {sW}, 13")
        A(f"  s_add_u32 {sT1}, {sT1}, {L_SC}")
        A(f"  v_lshrrev_b32 v{vSc}, 2, v0")
        A(f"  v_lshl_add_u32 v{vSc}, v{vSc}, 3, {sT1}")

    def probs():
        A(f"  v_fma_f32 v{vS0}, v{vS0}, {sC}, -v{vM}")
        A(f"  v_fma_f32 v{vS0+1}, v{vS0+1}, {sC}, -v{vM}")
        A(f"  v_exp_f32 v{vS0}, v{vS0}")
        A(f"  v_exp_f32 v{vS0+1}, v{vS0+1}")
        A(f"  v_cvt_pk_bf16_f32 v{vPl}, v{vS0}, 0")
        A(f"  v_add_f32 v{vLs}, v{vLs}, v{vS0}")
        A(f"  v_cvt_pk_bf16_f32 v{vP1l}, v{vS0+1}, 0")
        A(f"  v_lshlrev_b32 v{vPh}, 16, v{vPl}")
        A(f"  v_add_f32 v{vLs}, v{vLs}, v{vS0+1}")
        A(f"  v_lshlrev_b32 v{vP1h}, 16, v{vP1l}")

    A(HEADER.rstrip().replace("@LAUNCH@", f"; @launch grid=(256,1,1) block=(320,1,1) lds={LDS_BYTES}"))
    A(DOC.strip("\n"))
    A('.amdgcn_target "amdgcn-amd-amdhsa--gfx950"')
    A(".text")
    A(f".globl {KN}")
    A(".p2align 8")
    A(f".type {KN},@function")
    A(f"{KN}:")
    A("  s_cmp_ge_u32 s2, 256")
    A("  s_cbranch_scc1 L_end")
    if stamps:
        A("  s_memrealtime s[98:99]")
    A("  s_load_dwordx16 s[4:19], s[0:1], 0")
    A("  s_load_dwordx8 s[20:27], s[0:1], 64")
    A("  s_load_dwordx2 s[28:29], s[0:1], 96")
    A("  v_lshrrev_b32 v1, 6, v0")
    A("  v_and_b32 v0, 63, v0")
    A(f"  v_readfirstlane_b32 {sW}, v1")
    A(f"  s_lshr_b32 {sH}, s2, 3")
    A(f"  s_and_b32 {sS}, s2, 7")
    A(f"  s_and_b32 {sT0}, {sH}, 7")
    A(f"  s_cmp_eq_u32 {sT0}, {sS}")
    A(f"  s_cselect_b32 {sAA}, 1, 0")
    A(f"  v_lshlrev_b32 v{vL16}, 4, v0")
    if stamps:
        A("  v_mov_b32 v252, 0")
    A(f"  s_cmp_eq_u32 {sW}, 4")
    A("  s_cbranch_scc1 L_helper")
    A(f"  s_mov_b32 {sC}, 0x3e0293ee")
    A("  v_lshrrev_b32 v4, 4, v0")
    A("  v_and_b32 v5, 15, v0")
    for i in list(range(32, 64, 4)) + [68, 72]:
        A(f"  s_mov_b32 s{i+3}, 0x20000")
    A("  s_mov_b32 s34, 0x800000\n  s_mov_b32 s38, 0x800000")
    A("  s_mov_b32 s42, 0x800000\n  s_mov_b32 s46, 0x800000\n  s_mov_b32 s50, 0x800000\n  s_mov_b32 s54, 0x800000")
    A("  s_mov_b32 s58, 0x20000\n  s_mov_b32 s62, 0x20000")
    A(f"  s_mov_b32 s70, 2048\n  s_mov_b32 s74, 2048")
    A(f"  v_lshlrev_b32 v{vWq}, 13, v4")
    A(f"  v_lshl_add_u32 v{vWq}, v5, 4, v{vWq}")
    A(f"  v_and_b32 v6, 7, v5")
    A(f"  v_lshl_add_u32 v6, v6, 2, v4")
    A(f"  s_lshl_b32 {sT0}, {sW}, 5")
    A(f"  v_add_u32 v6, {sT0}, v6")
    A(f"  v_lshlrev_b32 v{vCo}, 1, v6")
    A(f"  s_lshl_b32 {sT1}, {sS}, 7")
    A(f"  s_add_u32 {sT0}, {sT0}, {sT1}")
    A(f"  s_lshl_b32 {sT0}, {sT0}, 13")
    A(f"  s_lshl_b32 {sT1}, {sH}, 8")
    A(f"  s_add_u32 {sT0}, {sT0}, {sT1}")
    A(f"  s_lshl_b32 {sT1}, {sS}, 8")
    A("  s_waitcnt lgkmcnt(0)")
    A("  s_mov_b32 s40, s20\n  s_mov_b32 s41, s21\n  s_mov_b32 s68, s14\n  s_mov_b32 s69, s15")
    A("  s_mov_b32 s72, s4\n  s_mov_b32 s73, s5\n  s_mov_b32 s44, s10\n  s_mov_b32 s45, s11")
    stamp(12)
    if tab:
        A(f"  v_lshlrev_b32 v{vTab}, 2, v0")
        A(f"  v_add_u32 v{vTab}, 0x30000000, v{vTab}")
        A(f"  global_load_dword v{vTab}, v{vTab}, s[28:29]")
    A(f"  buffer_load_ushort v{vPl}, v{vCo}, {XB}, {sT1} offen {pol}")
    A(f"  buffer_load_ushort v{vX+4}, v{vCo}, {XA}, {sT1} offen {pol}")
    SST = 32 * 4096 * (1 if ust > 1 else 2)
    items = [(wl(WQB, vWQB, vWq, sT0, 32768), j) for j in range(8)] + [(wl(WQA, vWQA, vWq, sT0, 32768), j) for j in range(8)]
    for b in range(NS):
        items += [(tk(KB, b, sOff), j) for j in range(8)]

    def issue(u):
        f, j = items[u]
        if u >= 16 and j == 0:
            A(f"  v_readlane_b32 {sOff}, v{vList}, {(u-16)//8}")
        f(j)

    c00 = c00 or cap0
    for u in range(c00):
        issue(u)
    A(f"  s_lshl_b32 s30, {sH}, 23")
    A(f"  s_add_u32 s32, s16, s30\n  s_addc_u32 s33, s17, 0\n  s_add_u32 s36, s18, s30\n  s_addc_u32 s37, s19, 0")
    A(f"  s_lshl_b32 {sIdx}, {sS}, 2")
    A(f"  s_add_u32 {sIdx}, {sIdx}, {sW}")
    A(f"  v_add_u32 v{vL16b}, 4096, v{vL16}")
    if tab:
        A(f"  s_waitcnt vmcnt({cap0+2})")
    A(f"  v_bfe_i32 v{vX}, v0, 4, 1")
    A(f"  v_and_b32 v{vX}, {col('k0')}, v{vX}")
    A(f"  v_bfe_i32 v{vX+1}, v0, 5, 1")
    A(f"  v_and_b32 v{vX+1}, {col('k1')}, v{vX+1}")
    A(f"  v_xor_b32 v{vX}, v{vX}, v{vX+1}")
    A(f"  v_lshl_add_u32 v{vKV}, v5, 4, v{vX}")
    A(f"  s_lshl_b32 s30, s2, 7")
    A(f"  s_lshl_b32 s31, {sW}, 5")
    A(f"  s_or_b32 s30, s30, s31")
    A(f"  v_and_b32 v{vX}, 31, v0")
    A(f"  v_or_b32 v{vX}, s30, v{vX}")
    xormap(vList, vX)
    E2 = E - E1
    for t, e0 in ((vP3a, 0), (vP3b, 64)):
        if e0 >= E:
            break
        A(f"  s_and_b32 s31, {sH}, 7")
        A(f"  s_lshl_b32 s31, s31, 2")
        if sub:
            A(f"  s_lshr_b32 s31, s31, 2")
            A(f"  v_mul_u32_u24 v{vX+2}, 9363, v0")
            A(f"  v_lshrrev_b32 v{vX+2}, 16, v{vX+2}")
            A(f"  v_mul_u32_u24 v{vX+1}, 7, v{vX+2}")
            A(f"  v_sub_u32 v{vX+1}, v0, v{vX+1}")
            A(f"  v_add_u32 v{vX+2}, {NT}, v{vX+2}")
            A(f"  v_cmp_le_u32 vcc, s31, v{vX+1}")
            A(f"  v_cndmask_b32 v{vX+3}, 0, 1, vcc")
            A(f"  v_add_u32 v{vX+1}, v{vX+1}, v{vX+3}")
            A(f"  v_lshl_add_u32 v{vX+1}, v{vX+1}, 7, v{vX+2}")
            A(f"  s_lshl_b32 s31, s31, 7")
            A(f"  s_add_u32 s31, s31, {NTA - E2}")
            A(f"  v_add_u32 v{vX+2}, s31, v0")
            A(f"  v_cmp_gt_u32 vcc, {E2}, v0")
            A(f"  v_cndmask_b32 v{vX}, v{vX+2}, v{vX+1}, vcc")
            A(f"  s_lshl_b32 s31, {sW}, 5")
            A(f"  v_or_b32 v{vX}, s31, v{vX}")
        else:
            A(f"  v_add_u32 v{vX}, {e0}, v0")
            A(f"  v_mul_u32_u24 v{vX+2}, 2341, v{vX}")
            A(f"  v_lshrrev_b32 v{vX+2}, 16, v{vX+2}")
            A(f"  v_mul_u32_u24 v{vX+1}, 28, v{vX+2}")
            A(f"  v_sub_u32 v{vX+1}, v{vX}, v{vX+1}")
            A(f"  v_add_u32 v{vX+2}, {NT}, v{vX+2}")
            A(f"  v_cmp_le_u32 vcc, s31, v{vX+1}")
            A(f"  v_cndmask_b32 v{vX+3}, 0, 4, vcc")
            A(f"  v_add_u32 v{vX+1}, v{vX+1}, v{vX+3}")
            A(f"  v_lshl_add_u32 v{vX+1}, v{vX+1}, 5, v{vX+2}")
            A(f"  v_cmp_gt_u32 vcc, {E2}, v{vX}")
            A(f"  v_subrev_u32 v{vX}, {E2}, v{vX}")
            A(f"  v_and_b32 v{vX+2}, 3, v{vX}")
            A(f"  v_add_u32 v{vX+2}, s31, v{vX+2}")
            A(f"  v_lshrrev_b32 v{vX+3}, 2, v{vX}")
            A(f"  v_add_u32 v{vX+3}, {NTA}, v{vX+3}")
            A(f"  v_lshl_add_u32 v{vX+2}, v{vX+2}, 5, v{vX+3}")
            A(f"  v_cndmask_b32 v{vX}, v{vX+2}, v{vX+1}, vcc")
        A(f"  s_lshl_b32 s31, {sH}, 10")
        A(f"  v_and_b32 v{vX}, 0x3ff, v{vX}")
        A(f"  v_or_b32 v{vX}, s31, v{vX}")
        xormap(t, vX)
    A(f"  s_lshr_b32 {sT1}, {sH}, 3")
    A(f"  s_lshl_b32 {sT1}, {sT1}, 23")
    A(f"  s_and_b32 s30, {sH}, 7")
    A(f"  s_lshl_b32 s30, s30, 17")
    A(f"  s_add_u32 {sT1}, {sT1}, s30")
    A(f"  s_add_u32 {sT1}, {sT1}, {28672*256}")
    A("  s_mov_b32 s48, s22\n  s_mov_b32 s49, s23\n  s_mov_b32 s52, s12\n  s_mov_b32 s53, s13")
    A(f"  s_add_u32 s56, s6, {sT1}\n  s_addc_u32 s57, s7, 0\n  s_add_u32 s60, s8, {sT1}\n  s_addc_u32 s61, s9, 0")
    def cntoff(d, g, t):
        A(f"  s_lshl_b32 {d}, {g}, 15")
        A(f"  s_add_u32 {d}, {d}, {W_CNT}")
        if csp:
            A(f"  s_and_b32 {t}, {g}, 7")
            A(f"  s_lshl_b32 {t}, {t}, 12")
            A(f"  s_add_u32 {d}, {d}, {t}")
            A(f"  s_lshr_b32 {t}, {g}, 3")
            A(f"  s_lshl_b32 {t}, {t}, 8")
            A(f"  s_add_u32 {d}, {d}, {t}")

    if sub:
        A(f"  s_lshl_b32 s31, {sW}, 1")
        A(f"  s_add_u32 s31, s31, {sH}")
        A(f"  s_and_b32 s31, s31, 7")
        A(f"  s_lshl_b32 s30, {sH}, 3")
        A(f"  s_add_u32 s30, s30, s31")
        A(f"  s_lshl_b32 s30, s30, 12")
        A(f"  s_lshr_b32 s31, {sH}, 3")
        A(f"  s_add_u32 s31, s31, {sW}")
        A(f"  s_and_b32 s31, s31, 3")
        A(f"  s_lshl_b32 s31, s31, 8")
        A(f"  s_add_u32 s30, s30, s31")
        A(f"  s_add_u32 s30, s30, {W_CNT}")
    else:
        cntoff("s30", sH, "s31")
    A(f"  s_add_u32 s82, s28, s30\n  s_addc_u32 s83, s29, 0")
    A(f"  v_lshlrev_b32 v{vWo}, 11, v4")
    A(f"  v_lshl_add_u32 v{vWo}, v5, 4, v{vWo}")
    A(f"  v_lshlrev_b32 v{vLo}, 5, v5")
    A(f"  v_lshl_add_u32 v{vLo}, v4, 3, v{vLo}")
    A(f"  s_mul_i32 {sT1}, {sW}, {PS}")
    A(f"  v_add_u32 v{vLo}, {sT1}, v{vLo}")
    A(f"  s_add_u32 {sT1}, {sT1}, 512")
    A(f"  v_mov_b32 v{vLm}, {sT1}")
    A(f"  v_lshlrev_b32 v{vX+5}, 4, v5")
    if tab:
        for j in range(1, 8):
            A(f"  v_readlane_b32 s{3+j}, v{vTab}, {20+j}")
    zero(vAcc)
    U0, U1 = slot(0), slot(0) + 16
    sNx = sPend

    def kproc(b):
        def f(j):
            dots(slot(b) + 4 * j, vQ, j)
            if j & 3 == 3:
                score(j >> 2)
        return f

    def pre_b2():
        A(f"  s_lshl_b32 {sT0}, {sH}, 7")
        A(f"  s_lshl_b32 {sT1}, {sW}, 5")
        A(f"  s_add_u32 {sT0}, {sT0}, {sT1}")
        A(f"  s_lshl_b32 {sT0}, {sT0}, 11")
        A(f"  s_lshl_b32 {sT1}, {sS}, 8")
        A(f"  s_add_u32 {sT0}, {sT0}, {sT1}")
        zero(vAcc)
        A(f"  v_mov_b32 v{vMr}, 0xff7fffff")
        A(f"  v_mov_b32 v{vM}, 0xff7fffff")
        A(f"  v_mov_b32 v{vLs}, 0")
        scbase()
        A(f"  s_mov_b32 {sI}, {NS+1}")
        A(f"  s_cmp_eq_u32 {sAA}, 1")
        A(f"  s_cselect_b32 {sIt}, {NTA}, {NT}")

    def b2():
        stamp(2)
        A("  s_waitcnt lgkmcnt(0)")
        A("  s_barrier")
        A(f"  ds_read_b128 v[{vQ}:{vQ+3}], v{vX+5} offset:{L_Q}")

    NB = len(items)
    if uB:
        items += [(tk(KB, 0, sOff), j) for j in range(cap)]
    nxt = c00
    done = 16
    for u in range(NB):
        if not uB and u >= 16 and nxt >= len(items):
            break
        w = f"  s_waitcnt vmcnt({nxt-u-1})"
        loads = []
        while nxt < min(len(items), u + 1 + cap0) and (nxt < NB or done > 16 + nxt - NB):
            loads.append(lambda k=nxt: issue(k))
            nxt += 1
        wait_issue(w, loads)
        if u == 0:
            stamp(13)
            A(f"  v_lshlrev_b32 v{vPh}, 16, v{vPl}")
        if u < 8:
            pv(vAcc, vWQB + 4 * u, vPl, vPh, [u])
        elif u < 16:
            pv(vAcc, vWQA + 4 * (u - 8), vPl, vPh, [u - 8])
        if u == 7:
            redrows(vAcc, L_QBP)
            stamp(1)
            A("  s_waitcnt lgkmcnt(0)")
            A("  s_barrier")
            stamp(14)
            zero(vAcc)
            A(f"  v_mov_b32 v{vPl}, v{vX+4}")
            A(f"  v_lshlrev_b32 v{vPh}, 16, v{vX+4}")
        if u == 15:
            redrows(vAcc, L_QAP)
            stamp(15)
        if u == 16:
            pre_b2()
        if uB and u == uB:
            b2()
        if uB and u > uB:
            if u == uB + 1:
                A("  s_waitcnt lgkmcnt(0)")
                stamp(3)
            left = NB - 1 - u
            k = u + 1 - done if left == 0 else min(u + 1 - done, 3)
            for _ in range(k):
                kproc((done - 16) // 8)((done - 16) % 8)
                done += 1
    if uB:
        assert done == NB
        while nxt < len(items):
            issue(nxt)
            nxt += 1
    else:
        A(f"  v_readlane_b32 {sOff}, v{vList}, {NS}")
        b2()
        A("  s_waitcnt lgkmcnt(0)")
        stamp(3)
        A(f"  s_waitcnt vmcnt({(NS-1)*8})")
        for j in range(8):
            kproc(0)(j)
            if j < cap:
                tk(KB, 0, sOff)(j)
        for b in range(1, NS):
            A(f"  s_waitcnt vmcnt({(NS-1-b)*8+cap})")
            for j in range(8):
                kproc(b)(j)
    stamp(4)
    def pool():
        A(f"  v_readlane_b32 {sNx}, v{vP3a}, s31")
        if E > 64:
            A(f"  v_readlane_b32 s30, v{vP3b}, s31")
            A(f"  s_cmp_ge_u32 s31, 64")
            A(f"  s_cselect_b32 {sNx}, s30, {sNx}")

    sFb, sExp, sDif, sOne = "s65", "s66", "s67", "s76"

    def fbhook(proc):
        def f(j):
            proc(j)
            if fbm == 4:
                if j == 1:
                    lab = f"L_fb{len(A.L)}"
                    A(f"  s_and_b32 s31, {sI}, 1")
                    A(f"  s_or_b32 s31, s31, {sW}")
                    A(f"  s_cmp_lg_u32 s31, 0")
                    A(f"  s_cbranch_scc1 {lab}")
                    A("  s_waitcnt lgkmcnt(0)")
                    A(f"  s_sub_i32 s31, {sExp}, {sFb}")
                    A(f"  s_mul_i32 s31, s31, {sOne}")
                    A(f"  s_add_u32 {sExp}, {sExp}, 8")
                    A(f"  v_mov_b32 v{vX}, s31")
                    A(f"  v_mov_b32 v{vX+1}, 31104")
                    A(f"  ds_write_b32 v{vX+1}, v{vX}")
                    A(f"  s_mov_b32 {sFb}, {sOne}")
                    A(f"  s_atomic_add {sFb}, s[78:79], 0 glc")
                    A(f"{lab}:")
                if j == 5:
                    A(f"  v_mov_b32 v{vX+1}, 31104")
                    A(f"  ds_read_b32 v{vX}, v{vX+1}")
                if j == 6:
                    A("  s_waitcnt lgkmcnt(0)")
                    A(f"  v_readfirstlane_b32 {sDif}, v{vX}")
            elif j == 2 and fbm == 1:
                A(f"  s_mov_b32 {sDif}, 0")
                A(f"  s_atomic_add {sOne}, s[78:79], 0")
            elif j == 2 and fbm == 2:
                A("  s_waitcnt lgkmcnt(0)")
                A(f"  s_mov_b32 {sDif}, 0")
                A(f"  s_load_dword {sFb}, s[78:79], 0 glc")
            elif j == 2 and fbm == 3:
                A("  s_waitcnt lgkmcnt(0)")
                A(f"  s_mov_b32 {sDif}, 0")
            elif j == 2:
                A("  s_waitcnt lgkmcnt(0)")
                A(f"  s_sub_i32 {sDif}, {sExp}, {sFb}")
                A(f"  s_mul_i32 {sDif}, {sDif}, {sOne}")
                A(f"  s_add_u32 {sExp}, {sExp}, 28")
                A(f"  s_mov_b32 {sFb}, {sOne}")
                A(f"  s_atomic_add {sFb}, s[78:79], 0 glc")
        return f

    def fbloops(base, top, srd, proc, cn):
        for suf, cp in (("", cn), ("_s", [int(ch) for ch in str(fS)]), ("_f", [int(ch) for ch in str(fF)])):
            top(base + suf)
            stream_iter(tk(srd, 0, sOff), tk(srd, 0, sNx), fbhook(proc), cp)
            advance()
            A(f"  s_cmp_gt_i32 {sDif}, {fb}")
            A(f"  s_cbranch_scc1 {base}_s")
            A(f"  s_cmp_lt_i32 {sDif}, {-fb}")
            A(f"  s_cbranch_scc1 {base}_f")
            A(f"  s_branch {base}")

    def p1top(lab):
        A(f"{lab}:")
        A(f"  s_cmp_ge_u32 {sI}, {sIt}")
        A("  s_cbranch_scc1 L_p1d")
        A(f"  v_readlane_b32 {sNx}, v{vList}, {sI}")
        A(f"  s_add_u32 {sI}, {sI}, 1")

    if fb:
        A(f"  s_and_b32 s77, {sH}, 7")
        A(f"  s_lshl_b32 s77, s77, 2")
        A(f"  s_sub_u32 s77, {sIdx}, s77")
        A(f"  s_add_u32 s77, s77, {sH}")
        A(f"  s_and_b32 s77, s77, 31")
        cntoff("s78", "s77", "s79")
        A(f"  s_add_u32 s78, s28, s78")
        A(f"  s_addc_u32 s79, s29, 0")
        A(f"  s_xor_b32 {sOne}, {sAA}, 1")
        A(f"  s_mov_b32 {sExp}, {-5 if fbm == 4 else -16}")
        A(f"  s_mov_b32 {sFb}, {-5 if fbm == 4 else -16}")
        if fbm == 4:
            A(f"  s_sub_u32 s77, {sH}, {sS}")
            A(f"  s_and_b32 s77, s77, 31")
            cntoff("s78", "s77", "s79")
            A(f"  s_add_u32 s78, s28, s78")
            A(f"  s_addc_u32 s79, s29, 0")
            A(f"  v_mov_b32 v{vX}, 0")
            A(f"  v_mov_b32 v{vX+1}, 31104")
            A(f"  ds_write_b32 v{vX+1}, v{vX}")
        fbloops("L_k", p1top, KB, kproc(0), caps)
    A("L_loop:")
    A(f"  s_cmp_ge_u32 {sI}, {sIt}")
    A(f"  s_cbranch_scc1 {'L_dyn0' if D else 'L_p1d'}")
    A(f"  v_readlane_b32 {sNx}, v{vList}, {sI}")
    A(f"  s_add_u32 {sI}, {sI}, 1")
    if D:
        A(f"  s_cmp_lg_u32 {sI}, {NT}")
        A("  s_cbranch_scc1 L_iter")
        A("L_take:")
        A(f"  s_mov_b32 {sTk}, 1")
        A(f"  s_atomic_add {sTk}, {CNTP}, 0 glc")
        A("L_iter:")
    stream_iter(tk(KB, 0, sOff), tk(KB, 0, sNx), kproc(0))
    advance()
    A("  s_branch L_loop")
    if D:
        A("L_dyn0:")
        A(f"  s_cmp_eq_u32 {sAA}, 1")
        A("  s_cbranch_scc1 L_p1d")
        A("  s_waitcnt lgkmcnt(0)")
        A(f"  s_add_u32 s31, {sTk}, 1")
        A(f"  s_cmp_ge_u32 s31, {D}")
        A("  s_cbranch_scc1 L_p1d")
        pool()
        A(f"  s_mov_b32 m0, {sI}")
        A(f"  s_add_u32 {sI}, {sI}, 1")
        A(f"  s_mov_b32 {sIt}, {sI}")
        A(f"  v_writelane_b32 v{vList}, {sNx}, m0")
        A(f"  s_mov_b32 {sTk}, 0x10000")
        A(f"  s_cmp_ge_u32 {sI}, {NMAX}")
        A("  s_cbranch_scc1 L_iter")
        A("  s_branch L_take")
    A("L_p1d:")
    stamp(9)
    A(f"  v_readlane_b32 {sNx}, v{vList}, 0")
    A(f"  s_mov_b32 {sI}, 1")
    A(f"  s_lshl_b32 s30, {sW}, 13")
    A(f"  s_mov_b32 s15, 0x20000")
    A(f"  s_cmp_eq_u32 {sAA}, 1")
    A("  s_cselect_b32 s12, s56, s36")
    A("  s_cselect_b32 s13, s57, s37")
    A("  s_cselect_b32 s14, s58, s38")
    prep_next("s30", sNx, True)
    stream_iter(tk(KB, 0, sOff), tkn, kproc(0))
    advance()
    dpp("v_max_f32", vMr, vMr, vMr, "row_ror:4")
    scbase()
    dpp("v_max_f32", vMr, vMr, vMr, "row_ror:8")
    A(f"  v_mul_f32 v{vM}, {sC}, v{vMr}")
    A(f"  s_cmp_eq_u32 {sAA}, 1")
    A("  s_cbranch_scc1 L_event")

    def vproc(j):
        if j == 0:
            A("  s_waitcnt lgkmcnt(0)")
            probs()
        pv(vAcc, U0 + 4 * j, vPl if j < 4 else vP1l, vPh if j < 4 else vP1h, [KVL[j & 3]])

    capsV = [int(ch) for ch in str(capV)] if capV else caps
    capsF = [min(capF, cap + 1 + j, cap + 7 - j) for j in range(8)]

    def p2top(lab):
        A(f"{lab}:")
        A(f"  ds_read_b64 v[{vS0}:{vS0+1}], v{vSc}")
        A(f"  v_add_u32 v{vSc}, 128, v{vSc}")
        A(f"  s_cmp_ge_u32 {sI}, {sIt}")
        A("  s_cbranch_scc1 L_p2last")
        A(f"  v_readlane_b32 {sNx}, v{vList}, {sI}")
        A(f"  s_add_u32 {sI}, {sI}, 1")

    def vproc_peek(j):
        vproc(j)
        if j == 0:
            A(f"  s_cmp_ge_i32 {sTk}, {P3 - thr}")
            A(f"  s_cselect_b32 s23, 1, 0")
            A(f"  s_add_u32 s31, {sI}, {pk}")
            A(f"  s_cmp_lt_u32 s31, {sIt}")
            A("  s_cbranch_scc1 L_nopeek")
            A(f"  s_mov_b32 {sTk}, 0")
            A(f"  s_atomic_add {sTk}, {CNTP}, {CO2} glc")
            A("L_nopeek:")

    if fb:
        fbloops("L_p2", p2top, VB, vproc, capsV)
    if pk:
        A("L_p2:")
        A(f"  s_mov_b32 {sTk}, -1")
    p2top("L_p2s" if pk else "L_p2x" if fb else "L_p2")
    stream_iter(tk(VB, 0, sOff), tk(VB, 0, sNx), vproc_peek if pk else vproc, capsV)
    advance()
    if pk:
        A("  s_cmp_eq_u32 s23, 0")
        A("  s_cbranch_scc1 L_p2s")
        p2top("L_p2f")
        stream_iter(tk(VB, 0, sOff), tk(VB, 0, sNx), vproc, capsF)
        advance()
        A("  s_branch L_p2f")
    else:
        A("  s_branch L_p2")

    def p3tile(lab):
        A("  s_waitcnt lgkmcnt(0)")
        A(f"  s_add_u32 {sT1}, {sTk}, 1")
        A(f"  s_cmp_ge_u32 {sT1}, {P3}")
        A(f"  s_cbranch_scc1 {lab}")
        A(f"  s_lshr_b32 s31, {sT1}, 1")
        if D:
            A(f"  s_add_u32 s31, s31, {D}")
        pool()
        A(f"  s_bitcmp1_b32 {sT1}, 0")
        A(f"  s_cselect_b32 s31, {hx(TJ[4])}, 0")
        A(f"  s_xor_b32 {sNx}, {sNx}, s31")
        if fx and pair:
            A(f"  s_mul_i32 s31, s23, {P3}")
            A(f"  s_add_u32 s31, s31, {P3 - fx}")
            A(f"  s_cmp_ge_u32 {sT1}, s31")
            A(f"  s_cbranch_scc1 {lab}_f")
        elif fx:
            A(f"  s_cmp_ge_u32 {sT1}, {P3 - fx}")
            A(f"  s_cbranch_scc1 {lab}_f")

    def take():
        for _ in range(xa):
            A(f"  s_atomic_add {sAA}, {CNTP}, 0")
        A(f"  s_mov_b32 {sTk}, 1")
        A(f"  s_atomic_add {sTk}, {CNTP}, {CO2} glc")

    def fproc(j, r=U0):
        if j < 4:
            dots(r + 4 * j, vQ, j)
            if j == 3:
                red16(vT)
                softmax(vT, vM, vLs, vAcc, vPl, vPh)
        else:
            pv(vAcc, r + 4 * j, vPl, vPh, [KVL[j & 3]])

    def final_head(cur, proc):
        for k in range(LT, 8):
            cur(k)
        for k in range(8):
            ldx(KB if k < 4 else VB, slot(3) + 4 * k, sNx, TJ[k & 3])
        for j in range(JT, 8):
            if j > JT:
                A(f"  s_waitcnt vmcnt({16-j-1})")
            proc(j)

    def final_tile():
        issued = 8
        for k in range(8):
            w = f"  s_waitcnt vmcnt({issued-k-1})"
            loads = []
            while issued - k - 1 < cap and issued - 8 < min(nC, cap):
                loads.append(lambda q=issued - 8: wostream(q))
                issued += 1
            wait_issue(w, loads)
            fproc(k, slot(3))

    NWO = 16 - 8 * early
    nC = min(nC, NWO)
    wostream = lambda j: (wl(WOA, slot(2), vWo, sT0, 8192)(j) if j + 8 * early < 8 else wl(WOB, slot(1), vWo, sT0, 8192)(j + 8 * early - 8))
    capsP = [min(capP, cap + 1 + j, cap + 7 - j) for j in range(8)] if capP else caps
    JT = min(j for j in range(8) if j + 1 + capsP[j] > 8)
    LT = max([cap] + [j + 1 + capsP[j] for j in range(JT)])

    def split_iter(cur, proc, lab):
        assert steps(0, JT, cap, cur, None, proc, caps=capsP) == LT
        A(f"  s_waitcnt vmcnt({LT-JT-1})")
        p3tile(lab)
        if tke:
            take()
        steps(JT, 8, LT, cur, ft(sNx), proc, first_wait=False, caps=capsP)
        A(f"  s_mov_b32 {sOff}, {sNx}")

    def tail_iter(cur, proc):
        steps(JT, 8, LT, cur, wostream, proc, nmax=nC, first_wait=False, caps=capsP)

    A("L_p2last:")
    A("  s_waitcnt lgkmcnt(0)")
    stamp(10)
    vproc2 = lambda j: pv(vAcc, U0 + 4 * j, vPl if j < 4 else vP1l, vPh if j < 4 else vP1h, [KVL[j & 3]])
    woa = wl(WOA, slot(2), vWo, sT0, 8192)
    wob = wl(WOB, slot(1), vWo, sT0, 8192)
    if early:
        probs()
        stream_iter(tk(VB, 0, sOff), woa, vproc2)
        last_cur, last_proc = woa, (lambda j: None)
        if early == 2:
            stream_iter(woa, wob, last_proc)
            last_cur = wob
        take()
    else:
        take()
        if pair:
            A("  s_mov_b32 s23, 0")
        probs()
        last_cur, last_proc = tk(VB, 0, sOff), vproc2
    split_iter(last_cur, last_proc, "L_tail0")
    A("L_loop3:")
    if pair:
        A(f"  s_mov_b32 {sTk}, {sT1}")
        A("  s_cmp_eq_u32 s23, 1")
        A("  s_mov_b32 s23, 0")
        A("  s_cbranch_scc1 L_have")
        A(f"  s_cmp_lt_u32 {sT1}, {pair}")
        A("  s_cselect_b32 s23, 1, 0")
        A(f"  s_add_u32 {sTk}, s23, 1")
        A(f"  s_atomic_add {sTk}, {CNTP}, {CO2} glc")
        A("L_have:")
    elif not tke:
        take()
    split_iter(ft(sOff), fproc, "L_drain")
    A("  s_branch L_loop3")

    A("L_tail0:")
    stamp(6)
    tail_iter(last_cur, last_proc)
    A("  s_branch L_fin")
    A("L_drain:")
    stamp(6)
    tail_iter(ft(sOff), fproc)
    if fx:
        A("  s_branch L_fin")
        A("L_tail0_f:")
        stamp(6)
        final_head(last_cur, last_proc)
        A("  s_branch L_final")
        A("L_drain_f:")
        stamp(6)
        final_head(ft(sOff), fproc)
        A("L_final:")
        final_tile()
    A("L_fin:")
    nc = min(nC, cap)
    if wo == "C":
        for j in range(nc, NWO):
            wostream(j)
    elif wo == "CD":
        for j in range(nc, min(nF, NWO)):
            wostream(j)
        nc = max(nc, min(nF, NWO))
    if rk:
        A(f"  v_mov_b32 v4, {L_RK}")
        A(f"  v_mov_b32 v5, 1")
        A("  s_mov_b64 exec, 1")
        A(f"  ds_add_rtn_u32 v5, v4, v5")
        A("  s_mov_b64 exec, -1")
    fin(vAcc, vM, vLs, L_BPART)
    stamp(7)
    A("  s_waitcnt lgkmcnt(0)")
    if rk:
        A(f"  v_readfirstlane_b32 s23, v5")
        A(f"  s_cmp_ge_u32 s23, {rk}")
        A("  s_cbranch_scc1 L_late")
        for j in range(nc, NWO):
            wostream(j)
        A("L_late:")
    A("  s_barrier")
    A(f"  ds_read_u16 v{vPl}, v{vCo} offset:{L_OA}")
    vPo, bx = 4, slot(0)

    def dpolls(bx=bx):
        for k in range(4):
            if k:
                A(f"  s_add_u32 {sT2}, s31, {k*WG_STRIDE}")
            A(f"  buffer_load_dwordx4 v[{bx+4*k}:{bx+4*k+3}], v{vPo}, {WS}, {sT2 if k else 's31'} offen sc1")

    if dp:
        A(f"  s_mov_b32 s64, s28\n  s_mov_b32 s65, s29\n  s_mov_b32 s66, {WS_SIZE}\n  s_mov_b32 s67, 0x20000")
        A(f"  v_and_b32 v{vPo}, 0xfc, v{vCo}")
        A(f"  v_lshlrev_b32 v{vPo}, 2, v{vPo}")
        A(f"  v_bfe_u32 v5, v0, 3, 1")
        A(f"  v_lshl_add_u32 v{vPo}, v5, 14, v{vPo}")
        A(f"  v_and_b32 v5, 16, v0")
        A(f"  v_cmp_ne_u32 s[76:77], 0, v5")
        A(f"  s_lshl_b32 s31, {sH}, 15")
        A(f"  s_add_u32 s31, s31, {W_BP}")
        A(f"  s_mov_b32 {sSpin}, {SPIN}")
    if "D" in wo:
        A("  s_barrier")
        if dp == 2:
            dpolls()
        if rk:
            A(f"  s_cmp_lt_u32 s23, {rk}")
            A("  s_cbranch_scc1 L_early")
        for j in range(nc, NWO):
            wostream(j)
        if rk:
            A("L_early:")
    if dp == 1:
        dpolls()
    zero(vAcc)
    A(f"  s_waitcnt vmcnt({12 if dp else 8}) lgkmcnt(0)")
    A(f"  v_lshlrev_b32 v{vPh}, 16, v{vPl}")
    pv(vAcc, slot(2), vPl, vPh, range(8))
    redrows(vAcc, L_O2A)
    zero(vAcc + 2, 6)
    A("  s_waitcnt lgkmcnt(0)")
    A("  s_barrier")
    if dp:
        zero(vAcc, 2)

        def dcheck(bx):
            A(f"  v_max3_u32 v5, v{bx}, v{bx+1}, v{bx+2}")
            for i in range(3, 15, 2):
                A(f"  v_max3_u32 v5, v5, v{bx+i}, v{bx+i+1}")
            A(f"  v_max_u32 v5, v5, v{bx+15}")
            A(f"  v_max3_f32 v{vM}, v{bx+2}, v{bx+6}, v{bx+10}")
            A(f"  v_cmp_eq_u32 vcc, -1, v5")
            A(f"  v_max_f32 v{vM}, v{vM}, v{bx+14}")

        def dmerge(bx):
            dpp("v_max_f32", vM, vM, vM, "row_ror:8")
            for k in range(4):
                A(f"  v_cndmask_b32 v{bx+4*k}, v{bx+4*k}, v{bx+4*k+1}, s[76:77]")
            for k in range(4):
                A(f"  v_sub_f32 v{bx+4*k+2}, v{bx+4*k+2}, v{vM}")
            for k in range(4):
                A(f"  v_exp_f32 v{bx+4*k+2}, v{bx+4*k+2}")
            A(f"  v_mul_f32 v6, v{bx+2}, v{bx+3}")
            A(f"  v_mul_f32 v7, v{bx+2}, v{bx}")
            for k in range(1, 4):
                A(f"  v_fmac_f32 v6, v{bx+4*k+2}, v{bx+4*k+3}")
                A(f"  v_fmac_f32 v7, v{bx+4*k+2}, v{bx+4*k}")

        if pdp:
            dpolls(bx + 16)
            A("L_dp:")
            A("  s_waitcnt vmcnt(4)")
            dcheck(bx)
            A("  s_cbranch_vccz L_dp_ok0")
            dpolls(bx)
            A("  s_waitcnt vmcnt(4)")
            dcheck(bx + 16)
            A(f"  s_sub_u32 {sSpin}, {sSpin}, 1")
            A("  s_cbranch_scc1 L_dp_ok1")
            A("  s_cbranch_vccz L_dp_ok1")
            dpolls(bx + 16)
            A("  s_branch L_dp")
            A("L_dp_ok1:")
            dmerge(bx + 16)
            A("  s_branch L_dp_ok")
            A("L_dp_ok0:")
            dmerge(bx)
            A("L_dp_ok:")
        else:
            A("  s_branch L_dp_w")
            A("L_dp:")
            dpolls()
            A("L_dp_w:")
            A("  s_waitcnt vmcnt(0)")
            dcheck(bx)
            A(f"  s_sub_u32 {sSpin}, {sSpin}, 1")
            A("  s_cbranch_scc1 L_dp_ok")
            A("  s_cbranch_vccnz L_dp")
            A("L_dp_ok:")
            dmerge(bx)
        dpp("v_add_f32", 6, 6, 6, "row_ror:8")
        dpp("v_add_f32", 7, 7, 7, "row_ror:8")
        A("  v_rcp_f32 v6, v6")
        A("  v_mul_f32 v7, v7, v6")
        A(f"  v_cvt_pk_bf16_f32 v{vPl}, v7, 0")
        stamp(11)
    else:
        A(f"  ds_read_u16 v{vPl}, v{vCo} offset:{L_OB}")
        zero(vAcc, 2)
        A("  s_waitcnt vmcnt(0) lgkmcnt(0)")
    A(f"  v_lshlrev_b32 v{vPh}, 16, v{vPl}")
    pv(vAcc, slot(1), vPl, vPh, range(8))
    redrows(vAcc, L_O2B)
    stamp(8)
    if stamps:
        A(f"  s_cmp_lg_u32 {sW}, 0")
        A("  s_cbranch_scc1 L_nost0")
        A(f"  s_lshl_b32 {sT0}, s2, 8")
        A(f"  s_add_u32 {sT0}, {sT0}, {STAMP1}")
        A(f"  v_lshl_add_u32 v4, v0, 2, {sT0}")
        A("  s_mov_b64 exec, 0xffff")
        A("  global_store_dword v4, v252, s[28:29]")
        A("  s_mov_b64 exec, -1")
        A("L_nost0:")
    A("  s_waitcnt lgkmcnt(0)")
    A("  s_barrier")
    A("  s_endpgm")

    capsA = [min(capA, cap + 1 + j, cap + 7 - j) for j in range(8)]

    def akproc(j):
        for m in range(4):
            for i in range(8):
                d = vSA + 4 * i + (j & 3)
                A(f"  v_dot2_f32_bf16 v{d}, v{U0+4*j+m}, v{vQA+4*i+m}, {'0' if m == 0 else 'v%d' % d}")
        if j & 3 == 3:
            for a, b, bank in ((0, 0, 0x3), (1, 2, 0x3), (0, 1, 0xc), (1, 3, 0xc)):
                for i in range(8):
                    dpp("v_add_f32", vRA + 2 * i + a, vSA + 4 * i + b, vSA + 4 * i + b, "row_ror:8", bank)
            for a, bank in ((0, 0x5), (1, 0xa)):
                for i in range(8):
                    dpp("v_add_f32", vTA + i, vRA + 2 * i + a, vRA + 2 * i + a, "row_half_mirror", bank)
            for ctrl in ("quad_perm:[1,0,3,2]", "quad_perm:[2,3,0,1]"):
                for i in range(8):
                    dpp("v_add_f32", vTA + i, vTA + i, vTA + i, ctrl)
            for i in range(8):
                A(f"  v_max_f32 v{vMrA+i}, v{vMrA+i}, v{vTA+i}")
                A(f"  ds_write_b32 v{vX+4}, v{vTA+i} offset:{4096+128*i+4*(j>>2)}")

    def avproc(j):
        if j == 0:
            A("  s_waitcnt lgkmcnt(0)")
            for i in range(16):
                A(f"  v_fma_f32 v{vSA+i}, v{vSA+i}, {sC}, -v{vMA+i//2}")
            for i in range(16):
                A(f"  v_exp_f32 v{vSA+i}, v{vSA+i}")
            for i in range(16):
                A(f"  v_cvt_pk_bf16_f32 v{vCfA+2*i}, v{vSA+i}, 0")
                A(f"  v_add_f32 v{vLA+i//2}, v{vLA+i//2}, v{vSA+i}")
            for i in range(16):
                A(f"  v_lshlrev_b32 v{vCfA+2*i+1}, 16, v{vCfA+2*i}")
        for i in range(8):
            c = vCfA + 4 * i + 2 * (j >> 2)
            pv(vAccA + 8 * i, U0 + 4 * j, c, c + 1, [KVL[j & 3]])

    A("L_event:")
    A("  s_barrier")
    for i in range(8):
        A(f"  ds_read_b128 v[{vQA+4*i}:{vQA+4*i+3}], v{vX+5} offset:{L_QA+256*i}")
    for i in range(8):
        A(f"  v_mov_b32 v{vMrA+i}, 0xff7fffff")
        A(f"  v_mov_b32 v{vLA+i}, 0")
    A(f"  v_mov_b32 v{vX+4}, v{vSc}")
    A("  s_mov_b32 s31, 4")
    A("  s_waitcnt lgkmcnt(0)")
    A("L_ak:")
    A("  s_sub_u32 s31, s31, 1")
    A(f"  s_add_u32 {sNx}, {sOff}, 32768")
    A("  s_cmp_eq_u32 s31, 0")
    A("  s_cselect_b32 s12, s60, s56")
    A("  s_cselect_b32 s13, s61, s57")
    A(f"  s_cselect_b32 {sNx}, s30, {sNx}")
    stream_iter(tka(KA, sOff), tka(NXT, sNx), akproc, capsA)
    A(f"  s_mov_b32 {sOff}, {sNx}")
    A(f"  v_add_u32 v{vX+4}, 1024, v{vX+4}")
    A("  s_cbranch_scc0 L_ak")
    for i in range(8):
        dpp("v_max_f32", vMrA + i, vMrA + i, vMrA + i, "row_ror:4")
    for i in range(8):
        dpp("v_max_f32", vMrA + i, vMrA + i, vMrA + i, "row_ror:8")
    for i in range(8):
        A(f"  v_mul_f32 v{vMA+i}, {sC}, v{vMrA+i}")
    zero(vAccA, 64)
    A(f"  v_mov_b32 v{vX+4}, v{vSc}")
    A(f"  v_readlane_b32 s30, v{vList}, 0")
    A("  s_mov_b32 s31, 4")
    A("L_av:")
    for i in range(8):
        A(f"  ds_read_b64 v[{vSA+2*i}:{vSA+2*i+1}], v{vX+4} offset:{4096+128*i}")
    A("  s_sub_u32 s31, s31, 1")
    A(f"  s_add_u32 {sNx}, {sOff}, 32768")
    A("  s_cmp_eq_u32 s31, 0")
    A("  s_cselect_b32 s12, s36, s60")
    A("  s_cselect_b32 s13, s37, s61")
    A("  s_cselect_b32 s14, s38, s62")
    prep_next(sNx, "s30", False)
    stream_iter(tka(VA, sOff), tkn, avproc, capsA)
    advance()
    A(f"  v_add_u32 v{vX+4}, 1024, v{vX+4}")
    A("  s_cmp_eq_u32 s31, 0")
    A("  s_cbranch_scc0 L_av")
    for i in range(8):
        fin(vAccA + 8 * i, vMA + i, vLA + i, L_APART + RS * i)
    A("  s_waitcnt lgkmcnt(0)")
    A("  s_barrier")
    stamp(5)
    A("  s_branch L_p2")

    hL8, hZ, hA = 1, 2, 3
    hD = 8
    hE = 40
    hW, hL, hO, h16 = 58, 66, 68, 72
    sWG = "s30"

    def guard(r, n):
        for i in range(n):
            A(f"  v_min_u32 v{r+i}, -2, v{r+i}")

    def anysent(r, n, lab):
        A(f"  v_max3_u32 v{hW}, v{r}, v{r+1}, v{r+2}")
        i = 3
        while i < n:
            if i + 1 < n:
                A(f"  v_max3_u32 v{hW}, v{hW}, v{r+i}, v{r+i+1}")
                i += 2
            else:
                A(f"  v_max_u32 v{hW}, v{hW}, v{r+i}")
                i += 1
        A(f"  v_cmp_eq_u32 vcc, -1, v{hW}")
        A(f"  s_sub_u32 {sSpin}, {sSpin}, 1")
        A(f"  s_cbranch_scc1 {lab}_ok")
        A(f"  s_cbranch_vccnz {lab}")
        A(f"{lab}_ok:")

    def sum4(ldsoff, wsoff, copy=False):
        for v in range(4):
            A(f"  ds_read_b64 v[{hD+2*v}:{hD+2*v+1}], v{hL8} offset:{ldsoff+v*PS}")
        A("  s_waitcnt lgkmcnt(0)")
        A(f"  v_pk_add_f32 v[{hD}:{hD+1}], v[{hD}:{hD+1}], v[{hD+2}:{hD+3}]")
        A(f"  v_pk_add_f32 v[{hD+4}:{hD+5}], v[{hD+4}:{hD+5}], v[{hD+6}:{hD+7}]")
        A(f"  v_pk_add_f32 v[{hD}:{hD+1}], v[{hD}:{hD+1}], v[{hD+4}:{hD+5}]")
        guard(hD, 2)
        if copy:
            A(f"  buffer_store_dwordx2 v[{hD}:{hD+1}], v{hL8}, {WS}, s5 offen")
        A(f"  buffer_store_dwordx2 v[{hD}:{hD+1}], v{hL8}, {WS}, {sWG} offen offset:{wsoff} sc1")

    def qgather(lab, sbase, ldsaddr, ldsoff):
        A(f"  s_mov_b32 {sSpin}, {SPIN}")
        A(f"{lab}:")
        for p in range(8):
            if p:
                A(f"  s_add_u32 {sT2}, {sbase}, {p*WG_STRIDE}")
            A(f"  buffer_load_dwordx2 v[{hD+2*p}:{hD+2*p+1}], v{hL8}, {WS}, {sT2 if p else sbase} offen sc1")
        A("  s_waitcnt vmcnt(0)")
        anysent(hD, 16, lab)
        for st in (1, 2, 4):
            for p in range(0, 8, 2 * st):
                A(f"  v_pk_add_f32 v[{hD+2*p}:{hD+2*p+1}], v[{hD+2*p}:{hD+2*p+1}], v[{hD+2*(p+st)}:{hD+2*(p+st)+1}]")
        A(f"  v_cvt_pk_bf16_f32 v{hD}, v{hD}, v{hD+1}")
        A(f"  ds_write_b32 v{ldsaddr}, v{hD} offset:{ldsoff}")

    def merge(n, norm, o, e, st):
        M = hO + 2
        A(f"  v_max3_f32 v{M}, v{e}, v{e+st}, v{e+2*st}")
        i = 3
        while i < n:
            if i + 1 < n:
                A(f"  v_max3_f32 v{M}, v{M}, v{e+st*i}, v{e+st*(i+1)}")
                i += 2
            else:
                A(f"  v_max_f32 v{M}, v{M}, v{e+st*i}")
                i += 1
        for p in range(n):
            A(f"  v_sub_f32 v{hW+p}, v{e+st*p}, v{M}")
        for p in range(n):
            A(f"  v_exp_f32 v{hW+p}, v{hW+p}")
        A(f"  v_mul_f32 v{M+1}, v{hW}, v{e+1}")
        A(f"  v_mul_f32 v{hO}, v{hW}, v{o}")
        A(f"  v_mul_f32 v{hO+1}, v{hW}, v{o+1}")
        for p in range(1, n):
            A(f"  v_fmac_f32 v{M+1}, v{hW+p}, v{e+st*p+1}")
            A(f"  v_fmac_f32 v{hO}, v{hW+p}, v{o+st*p}")
            A(f"  v_fmac_f32 v{hO+1}, v{hW+p}, v{o+st*p+1}")
        if norm:
            A(f"  v_rcp_f32 v{hL}, v{M+1}")
            A(f"  v_mul_f32 v{hO}, v{hO}, v{hL}")
            A(f"  v_mul_f32 v{hO+1}, v{hO+1}, v{hL}")
            A(f"  v_cvt_pk_bf16_f32 v{hO}, v{hO}, v{hO+1}")

    def combine4(a8, az, ldsoff, so, wsoff):
        for v in range(4):
            A(f"  ds_read_b64 v[{hE+2*v}:{hE+2*v+1}], v{az} offset:{ldsoff+v*PS+512}")
        for v in range(4):
            A(f"  ds_read_b64 v[{hD+2*v}:{hD+2*v+1}], v{a8} offset:{ldsoff+v*PS}")
        A("  s_waitcnt lgkmcnt(0)")
        merge(4, False, hD, hE, 2)
        guard(hO, 4)
        A(f"  buffer_store_dwordx4 v[{hO}:{hO+3}], v{h16}, {WS}, {so} offen offset:{wsoff} sc1")

    def combine8(lab, sbase, stride, ldsoff, bar=False):
        def polls():
            for p in range(8):
                if p:
                    A(f"  s_add_u32 {sT2}, {sbase}, {p*stride}")
                so = sT2 if p else sbase
                A(f"  buffer_load_dwordx4 v[{hD+4*p}:{hD+4*p+3}], v{h16}, {WS}, {so} offen sc1")
        A(f"  s_mov_b32 {sSpin}, {SPIN}")
        if bar:
            polls()
            A("  s_barrier")
            A(f"  s_branch {lab}_w")
        A(f"{lab}:")
        polls()
        A(f"{lab}_w:")
        A("  s_waitcnt vmcnt(0)")
        anysent(hD, 32, lab)
        merge(8, True, hD, hD + 2, 4)
        A(f"  ds_write_b32 v{hA}, v{hO} offset:{ldsoff}")

    A("L_helper:")
    if prio:
        A(f"  s_setprio {prio}")
    A(f"  s_lshl_b32 {sWG}, s2, 12")
    for i in range(4):
        A(f"  v_mov_b32 v{hD+i}, -1")
    A(f"  s_mov_b32 s66, {WS_SIZE}\n  s_mov_b32 s67, 0x20000\n  s_mov_b32 s78, 4096\n  s_mov_b32 s79, 0x20000")
    A("  s_waitcnt lgkmcnt(0)")
    A("  s_mov_b32 s64, s28\n  s_mov_b32 s65, s29")
    for j in range(4 if not noclr & 1 else 0):
        A(f"  buffer_store_dwordx4 v[{hD}:{hD+3}], v{vL16}, {WS}, {sWG} offen offset:{j*1024} sc1")
    if dual:
        A(f"  s_lshl_b32 s5, s2, 9")
        A(f"  s_add_u32 s5, s5, {W_X}")
        A(f"  v_lshlrev_b32 v5, 3, v0")
        A(f"  buffer_store_dwordx2 v[{hD}:{hD+1}], v5, {WS}, s5 offen sc1")
    A("  s_mov_b32 s76, s24\n  s_mov_b32 s77, s25")
    A(f"  s_lshl_b32 {sT0}, {sH}, 3")
    A(f"  s_add_u32 s80, s26, {sT0}\n  s_addc_u32 s81, s27, 0")
    A(f"  s_lshl_b32 s31, {sH}, 13")
    A(f"  s_add_u32 s31, s31, {W_AP}")
    A(f"  s_cmp_eq_u32 {sAA}, 0")
    A("  s_cbranch_scc1 L_h_noclr")
    A(f"  s_add_u32 {sT2}, s31, 4096")
    for j in range(8 if not noclr & 2 else 0):
        A(f"  buffer_store_dwordx4 v[{hD}:{hD+3}], v{vL16}, {WS}, {'s31' if j < 4 else sT2} offen offset:{(j%4)*1024} sc1")
    A("L_h_noclr:")
    if pt & 1:
        A(f"  s_lshl_b32 {sT0}, {sH}, 23")
        A(f"  v_lshlrev_b32 v6, 21, v0")
        A(f"  v_add_u32 v7, {sT0}, v6")
        A("  s_mov_b64 exec, 15")
        A(f"  global_load_dword v{hE}, v7, s[16:17] nt")
        A(f"  global_load_dword v{hE+1}, v6, s[10:11] nt")
        A("  s_mov_b64 exec, -1")
    A(f"  v_lshlrev_b32 v4, 2, v0")
    A(f"  v_lshlrev_b32 v5, 3, v0")
    A("  s_waitcnt vmcnt(0)")
    A(f"  v_mov_b32 v{h16}, v{vL16}")
    A(f"  v_mov_b32 v{hA}, v4")
    A(f"  v_mov_b32 v{hL8}, v5")
    A(f"  v_mov_b32 v{hZ}, 0")
    if rk:
        A(f"  ds_write_b32 v{hZ}, v{hZ} offset:{L_RK}")
    A(f"  s_mov_b32 {sTk}, 1")
    A(f"  s_atomic_add {sTk}, {DBGP}, 0 glc")
    A("  s_waitcnt lgkmcnt(0)")
    stamp(1)
    A("  s_barrier")
    sum4(L_QBP, W_QB)
    A(f"  s_add_u32 {sTk}, {sTk}, 1")
    A(f"  s_mov_b32 {sSpin}, {SPIN}")
    A("L_h_flag:")
    A(f"  s_cmp_ge_u32 {sTk}, 8")
    A("  s_cbranch_scc1 L_h_flag_ok")
    if fl:
        A(f"  global_load_dword v{hE}, v{hZ}, {DBGP} sc1")
        A("  s_waitcnt vmcnt(0)")
        A(f"  v_readfirstlane_b32 {sTk}, v{hE}")
        A(f"  s_sub_u32 {sSpin}, {sSpin}, 1")
    else:
        A(f"  s_mov_b32 {sTk}, 0")
        A(f"  s_atomic_add {sTk}, {DBGP}, 0 glc")
        A(f"  s_sub_u32 {sSpin}, {sSpin}, 1")
        A("  s_waitcnt lgkmcnt(0)")
    A("  s_cbranch_scc0 L_h_flag")
    A("L_h_flag_ok:")
    stamp(2)
    A(f"  s_lshl_b32 {sT0}, {sH}, 15")
    qgather("L_h_qb", sT0, hA, L_Q)
    stamp(3)
    A("  s_waitcnt lgkmcnt(0)")
    A("  s_barrier")
    sum4(L_QAP, W_QA)
    if pt & 2:
        A(f"  s_lshl_b32 {sT0}, {sH}, 23")
        A(f"  v_lshlrev_b32 v6, 21, v0")
        A(f"  v_add_u32 v7, {sT0}, v6")
        A("  s_mov_b64 exec, 15")
        A(f"  global_load_dword v{hE}, v7, s[18:19] nt")
        A(f"  global_load_dword v{hE+1}, v6, s[12:13] nt")
        A(f"  global_load_dword v{hE+2}, v6, s[22:23] nt")
        A("  s_mov_b64 exec, -1")
    A(f"  s_mov_b32 {sSpin}, {SPIN}")
    A("L_h_all:")
    A(f"  global_load_dword v{hD+4}, v{hA}, s[26:27] sc1")
    A("  s_waitcnt vmcnt(0)")
    A(f"  v_cmp_gt_u32 vcc, 8, v{hD+4}")
    A("  s_nop 1")
    A("  s_and_b32 vcc_lo, vcc_lo, 0x55555555")
    A("  s_and_b32 vcc_hi, vcc_hi, 0x55555555")
    A(f"  s_sub_u32 {sSpin}, {sSpin}, 1")
    A("  s_cbranch_scc1 L_h_all_ok")
    A("  s_cmp_eq_u64 vcc, 0")
    A("  s_cbranch_scc0 L_h_all")
    A("L_h_all_ok:")
    stamp(4)
    A(f"  s_cmp_eq_u32 {sAA}, 0")
    A("  s_cbranch_scc1 L_h_noaa")
    A(f"  s_lshr_b32 {sT0}, {sH}, 3")
    A(f"  s_lshl_b32 {sT0}, {sT0}, 18")
    A(f"  s_add_u32 {sT0}, {sT0}, {W_QA}")
    A(f"  v_mov_b32 v6, v{hA}")
    A(f"  s_mov_b32 {sT1}, 8")
    A("L_h_qa_next:")
    qgather("L_h_qa", sT0, 6, L_QA)
    A(f"  s_add_u32 {sT0}, {sT0}, {8*WG_STRIDE}")
    A("  v_add_u32 v6, 256, v6")
    A(f"  s_sub_u32 {sT1}, {sT1}, 1")
    A(f"  s_cmp_lg_u32 {sT1}, 0")
    A("  s_cbranch_scc1 L_h_qa_next")
    A("  s_waitcnt lgkmcnt(0)")
    A("  s_barrier")
    A("  s_barrier")
    A(f"  v_mov_b32 v6, v{hL8}")
    A(f"  v_mov_b32 v7, 0")
    A(f"  s_mov_b32 {sT1}, 8")
    A("L_h_ap_next:")
    combine4(6, 7, L_APART, "s31", 0)
    A(f"  s_add_u32 s31, s31, 1024")
    A(f"  v_add_u32 v6, {RS}, v6")
    A(f"  v_add_u32 v7, {RS}, v7")
    A(f"  s_sub_u32 {sT1}, {sT1}, 1")
    A(f"  s_cmp_lg_u32 {sT1}, 0")
    A("  s_cbranch_scc1 L_h_ap_next")
    A("L_h_noaa:")
    A(f"  s_lshr_b32 {sT0}, {sH}, 3")
    A(f"  s_lshl_b32 {sT0}, {sT0}, 16")
    A(f"  s_and_b32 {sT1}, {sH}, 7")
    A(f"  s_lshl_b32 {sT1}, {sT1}, 10")
    A(f"  s_add_u32 {sT0}, {sT0}, {sT1}")
    A(f"  s_add_u32 {sT0}, {sT0}, {W_AP}")
    A(f"  v_lshlrev_b32 v6, 13, v0")
    A(f"  s_mov_b32 {sSpin}, {SPIN}")
    A("  s_mov_b64 exec, 0xff")
    A("L_h_apw:")
    if slp:
        A(f"  s_sleep {slp}")
    A(f"  buffer_load_dword v{hD}, v6, {WS}, {sT0} offen offset:12 sc1")
    A("  s_waitcnt vmcnt(0)")
    A(f"  v_cmp_eq_u32 vcc, -1, v{hD}")
    A(f"  s_sub_u32 {sSpin}, {sSpin}, 1")
    A("  s_cbranch_scc1 L_h_apw_ok")
    A("  s_cbranch_vccnz L_h_apw")
    A("L_h_apw_ok:")
    A("  s_mov_b64 exec, -1")
    combine8("L_h_ap8", sT0, 8192, L_OA)
    stamp(5)
    if touch:
        A(f"  s_lshl_b32 {sT0}, {sH}, 18")
        A(f"  v_mov_b32 v6, {sT0}")
        A("  s_mov_b64 exec, 1")
        A(f"  global_load_dword v{hD}, v6, s[12:13] nt")
        A(f"  global_load_dword v{hD+1}, v6, s[22:23] nt")
        if touch > 1:
            A(f"  global_load_dword v{hD+2}, v{hZ}, s[24:25] nt")
        A("  s_waitcnt vmcnt(0)")
        A("  s_mov_b64 exec, -1")
    A(f"  s_lshl_b32 {sT0}, {sH}, 15")
    A(f"  s_add_u32 {sT0}, {sT0}, {W_BP}")
    A("  v_and_b32 v6, 31, v0")
    A("  v_lshlrev_b32 v6, 15, v6")
    A("  v_lshrrev_b32 v7, 5, v0")
    A("  v_lshl_add_u32 v6, v7, 9, v6")
    A(f"  s_lshl_b32 {sT1}, {sS}, 12")
    A(f"  s_lshl_b32 s31, {sH}, 4")
    A(f"  s_add_u32 {sT1}, {sT1}, s31")
    A(f"  s_add_u32 {sT1}, {sT1}, {W_O2B}")
    if dual:
        A(f"  v_lshlrev_b32 v4, 12, v0")
        A(f"  s_lshl_b32 s4, {sS}, 9")
        A(f"  s_add_u32 s4, s4, s31")
        A(f"  s_add_u32 s4, s4, {W_X}")
        A(f"  s_sub_u32 s4, s4, {sT1}")
        A(f"  v_add_u32 v4, s4, v4")
        A(f"  v_cmp_gt_u32 vcc, 32, v0")
        A(f"  v_cndmask_b32 v4, v6, v4, vcc")
    A("  v_xor_b32 v7, 1, v7")
    A("  v_lshlrev_b32 v7, 11, v7")
    A(f"  s_lshl_b32 s31, {sS}, 8")
    A(f"  s_lshl_b32 {sTk}, {sH}, 3")
    A(f"  s_add_u32 s31, s31, {sTk}")
    A("  s_waitcnt lgkmcnt(0)")
    A("  s_barrier")
    stamp(6)
    combine4(hL8, hZ, L_BPART, sWG, W_BP)
    if "D" in wo and (dp or not poll1):
        A("  s_barrier")
    if not dp:
        combine8("L_h_bp8", sT0, WG_STRIDE, L_OB, "D" in wo and poll1)
    stamp(7)
    A("  s_waitcnt lgkmcnt(0)")
    A("  s_barrier")
    sum4(L_O2A, W_O2A)
    A("  s_barrier")
    sum4(L_O2B, W_O2B, dual)
    stamp(8)
    A(f"  s_mov_b32 {sSpin}, {SPIN}")
    if dual:
        A("L_h_fin:")
        A(f"  buffer_load_dwordx4 v[{hE+4}:{hE+7}], v4, {WS}, {sT1} offen sc1")
        A(f"  buffer_load_dwordx4 v[{hE}:{hE+3}], v6, {WS}, {sT1} offen sc1")
        A("  s_waitcnt vmcnt(1)")
        A(f"  v_max3_u32 v{hW}, v{hE+4}, v{hE+5}, v{hE+6}")
        A(f"  v_max_u32 v{hW}, v{hW}, v{hE+7}")
        A(f"  v_cmp_eq_u32 vcc, -1, v{hW}")
        A("  s_cbranch_vccz L_h_fin_x")
        A("  s_waitcnt vmcnt(0)")
        for i in range(4):
            A(f"  v_cndmask_b32 v{hE+i}, v{hE+4+i}, v{hE+i}, vcc")
        anysent(hE, 4, "L_h_fin")
        for i in range(4):
            A(f"  v_mov_b32 v{hE+4+i}, v{hE+i}")
        A("L_h_fin_x:")
        hE += 4
    elif not pipe:
        A("L_h_fin:")
        A(f"  buffer_load_dwordx4 v[{hE}:{hE+3}], v6, {WS}, {sT1} offen sc1")
        A("  s_waitcnt vmcnt(0)")
        anysent(hE, 4, "L_h_fin")
    else:
        for r in range(2):
            A(f"  buffer_load_dwordx4 v[{hD+4*r}:{hD+4*r+3}], v6, {WS}, {sT1} offen sc1")
        A("L_h_fin:")
        for r in range(3):
            q = (r + 2) % 3
            A(f"  buffer_load_dwordx4 v[{hD+4*q}:{hD+4*q+3}], v6, {WS}, {sT1} offen sc1")
            A("  s_waitcnt vmcnt(2)")
            A(f"  v_max3_u32 v{hW}, v{hD+4*r}, v{hD+4*r+1}, v{hD+4*r+2}")
            A(f"  v_max_u32 v{hW}, v{hW}, v{hD+4*r+3}")
            A(f"  v_cmp_eq_u32 vcc, -1, v{hW}")
            for i in range(4):
                A(f"  v_mov_b32 v{hE+i}, v{hD+4*r+i}")
            A("  s_cbranch_vccz L_h_fin_ok")
        A(f"  s_sub_u32 {sSpin}, {sSpin}, 1")
        A("  s_cbranch_scc0 L_h_fin")
        A("L_h_fin_ok:")
    for ctrl in ("row_ror:8", "row_ror:4", "quad_perm:[2,3,0,1]", "quad_perm:[1,0,3,2]"):
        for i in range(4):
            dpp("v_add_f32", hE + i, hE + i, hE + i, ctrl)
    for i in range(4):
        A(f"  v_mov_b32 v{hE+4+i}, v{hE+i}")
    for i in range(4):
        A(f"  v_permlane16_swap_b32 v{hE+i}, v{hE+4+i}")
    for i in range(4):
        A(f"  v_add_f32 v{hE+i}, v{hE+i}, v{hE+4+i}")
    A(f"  v_cvt_pk_bf16_f32 v{hE}, v{hE}, v{hE+1}")
    A(f"  v_cvt_pk_bf16_f32 v{hE+1}, v{hE+2}, v{hE+3}")
    A("  s_mov_b32 exec_lo, 1")
    A("  s_mov_b32 exec_hi, 1")
    A(f"  buffer_store_dwordx2 v[{hE}:{hE+1}], v7, {OUT}, s31 offen {osc}")
    if stamps:
        A("  s_mov_b64 exec, -1")
        stamp(9, True)
        A("  s_waitcnt vmcnt(0)")
        A(f"  s_lshl_b32 {sT0}, s2, 8")
        A(f"  s_add_u32 {sT0}, {sT0}, {STAMP1+64}")
        A(f"  v_lshl_add_u32 v253, v0, 2, {sT0}")
        A("  s_mov_b64 exec, 0xffff")
        A("  global_store_dword v253, v252, s[28:29]")
        A("  v_mov_b32 v8, s98\n  v_mov_b32 v9, s99\n  v_mov_b32 v10, s96\n  v_mov_b32 v11, s97")
        A(f"  s_lshl_b32 {sT0}, s2, 4")
        A(f"  s_add_u32 {sT0}, {sT0}, {STAMP0}")
        A(f"  v_mov_b32 v253, {sT0}")
        A("  s_mov_b64 exec, 1")
        A("  global_store_dwordx4 v253, v[8:11], s[28:29]")
    A("L_end:")
    A("  s_endpgm")
    A('.section .rodata,"a"')
    A(".p2align 6")
    A(f".amdhsa_kernel {KN}")
    A("  .amdhsa_next_free_vgpr 256")
    A("  .amdhsa_next_free_sgpr 102")
    A("  .amdhsa_accum_offset 256")
    A("  .amdhsa_group_segment_fixed_size 0")
    A("  .amdhsa_kernarg_size 104")
    A("  .amdhsa_user_sgpr_count 2")
    A("  .amdhsa_user_sgpr_kernarg_segment_ptr 1")
    A("  .amdhsa_system_sgpr_workgroup_id_x 1")
    A(".end_amdhsa_kernel")
    A.pad()
    return A.text()


if __name__ == "__main__":
    names = []
    for spec in sys.argv[1:]:
        out = None
        if "@" in spec:
            spec, out = spec.split("@")
        kv = dict(x.split("=") for x in spec.split(",") if x)
        p = {k: (v.replace("+", " ") if k in ("pol", "wo", "osc") else int(v)) for k, v in kv.items()}
        name = out or "k_" + spec.replace("=", "").replace(",", "_").replace("+", "") + ".s"
        open(name, "w").write(gen(**p))
        names.append(name)
    print(" ".join(os.path.relpath(n, "code") for n in names))
```

```python
import sys, os
sys.path.insert(0, os.path.dirname(os.path.abspath(__file__)))
from asmlib import Asm

KN = "concat_heads__sliding_block_cached__mha_block_cached__decode_kernel"
HEADER = open(os.path.join(os.path.dirname(os.path.abspath(__file__)), "header.txt")).read()

WG_STRIDE = 4096
W_QB, W_QA, W_BP, W_O2B, W_O2A, W_CNT = 0, 512, 1024, 2048, 2560, 3072
W_AP = 1 << 20
W_X = (1 << 20) + 32 * 8192
WS_BASE = W_X
STAMP0 = 0x20000000
STAMP1 = 0x20100000
PS = 544
RS = 4 * PS
L_QBP, L_QAP, L_BPART, L_O2A, L_O2B, L_APART = 0, RS, 2 * RS, 3 * RS, 4 * RS, 5 * RS
L_Q = 13 * RS
L_OA = L_Q + 256
L_OB = L_OA + 256
L_QA = L_OB + 256
L_RK = L_QA + 2048
L_SC = 32768
LDS_BYTES = 65536
SPIN = 1 << 20
DOC = '''
; Fused single-launch decode step, 256 workgroups (one per CU) x 5 waves; written by gen/gen.py (own generator).
;   workgroup w: head h = w>>3, slice s = w&7.  waves 0-3 stream HBM with a fixed number of 1-KiB loads in flight,
;   wave 4 (helper) does the hand-offs between workgroups.
;   1. q = x@wq: 128-row slices per workgroup, 8 partials per head exchanged through d_ws (K loads are prefetched meanwhile)
;      dealt dynamically as fused K+V tiles (online softmax).  Branch A (GQA window) is done by one workgroup per head group
;      between its two phases.
;   3. partial (o, max, sum) boxes are merged per head, o@wo is done in 128x128 blocks, 32 partial rows are summed per column.
;   write-through stores; readers poll with sc1 loads until no word holds the sentinel.  All spins are bounded.
'''
PATS = [
    "j0:10 j1:11 j2:12 v0:13 v1:14 s0:15 s1:16 s2:17 i0:18 i1:19 i2:20 i3:21 i4:22 h0: h1: h2: h3: h4:",
    "j0:10+12 j1:14+19 j2:22 v0:21 v1:13 s0:14 s1:15+18 s2:11 i0:10 i1:15 i2:16+17 i3:17 i4:20 h0: h1: h2:10+17 h3:20 h4:13",
    "j0:20 j1:11 j2:18+22 v0:13 v1:21 s0:14 s1:10 s2:17 i0:16+19 i1:15 i2:12 i3:18 i4:16 h0:10 h1:17 h2:10 h3:15+21 h4:10",
    "j0:12 j1:11 j2:13 v0:16 v1:21 s0:14+22 s1:10 s2:17 i0:18 i1:15 i2:21+22 i3:20+22 i4:19 h0: h1:16 h2:21 h3:15+18 h4:22",
    "j0:10+19 j1:16+22 j2:22 v0:21 v1:13 s0:20 s1:12 s2:11+14 i0:14 i1:15 i2:19 i3:17 i4:11+18 h0:13 h1: h2:13 h3: h4:13+16",
    "j0:13 j1:17+21 j2:11+12 v0:20 v1:21 s0:13+14 s1:16 s2:18+22 i0:15 i1:18 i2:12 i3:13+19 i4:10+21 h0:18 h1: h2: h3: h4:15",
    "j0:12+22 j1:11+19 j2:21 v0:14 v1:13 s0:15 s1:16 s2:17 i0:11+22 i1:10 i2:12+13 i3:18 i4:20 h0:20 h1:12 h2:19 h3: h4:21",
    "j0:9 j1:19+20 j2:13 v0:21 v1:11 s0:9+10 s1:14 s2:17 i0:15 i1:12 i2:20+21 i3:18 i4:22 h0:10 h1:13+17 h2:10 h3:22 h4:10+15 k0:16 k1:8",
    "j0:16 j1:12 j2:13 v0:21 v1:11 s0:14 s1:10 s2:17+19+21 i0:8 i1:22 i2:19 i3:11+18+21 i4:20 h0:13 h1:19 h2:8 h3: h4:22 k0:8+9+15 k1:15",
    "j0:21 j1:9+11+19 j2:9 v0:12+22 v1:13 s0:12+14+15+19 s1:16 s2:17 i0:11+22 i1:18 i2:10 i3:20 i4:12 h0:13 h1:10+18 h2: h3: h4: k0:8 k1:14",
    "j0:8 j1:14 j2:20 v0:9+13 v1:10+12 s0:13+18 s1:11+12 s2:17 i0:15 i1:19 i2:21 i3:22 i4:13 h0: h1:17 h2:8 h3: h4:10+14 k0:12+16 k1:10+13",
    "j0:8 j1:21 j2:22 v0:9 v1:11 s0:10 s1:11+14 s2:17 i0:19 i1:15 i2:13+21 i3:12+19 i4:8+18 h0:10 h1:9+15+17 h2: h3: h4: k0:16 k1:13+15+20",
    "j0:12+18 j1:8+11 j2:9 v0:16 v1:15 s0:10 s1:14 s2:17+18 i0:13+21 i1:16+19 i2:12+16+21 i3:20 i4:22 h0:21 h1: h2:16 h3: h4:15 k0:13 k1:8",
    "j0:9+21 j1:8+21 j2:15 v0:10+12 v1:13 s0:18 s1:10 s2:11 i0:16 i1:19 i2:9+22 i3:20 i4:12+14+15 h0: h1:12 h2: h3:10 h4:16 k0:8 k1:17+22",
    "j0:13 j1:12+13 j2:8 v0:21 v1:11+22 s0:8+15 s1:14 s2:17 i0:16 i1:22 i2:20 i3:18 i4:10 h0: h1:8+9 h2:20+21+22 h3: h4: k0:19+22 k1:9",
    "j0:12 j1:9 j2:21 v0:11 v1:13 s0:14+16 s1:9+10 s2:17 i0:16 i1:20 i2:18 i3:22 i4:19+22 h0:12 h1:21 h2: h3:15 h4:8+21 k0:8+12 k1:15",
    "j0:8+9 j1:18 j2:10+21 v0:13 v1:19+20 s0:21 s1:14 s2:8+17 i0:9 i1:22 i2:11 i3:20 i4:12 h0:10 h1:11+17+20 h2:9 h3:20+22 h4:8 k0:15 k1:16",
    "j0:9 j1:21 j2:8+11+13 v0:15 v1:12+16+19 s0:14+21 s1:10 s2:15+17 i0:16 i1:18 i2:22 i3:19 i4:20 h0:10 h1:17+22 h2: h3:13 h4: k0:11 k1:8+9+15",
    "j0:16+21 j1:12 j2:19 v0:15 v1:9+21 s0:10+18 s1:21 s2:11+17 i0:13 i1:10 i2:14+19+22 i3:9+21+22 i4:12+20 h0: h1:12 h2: h3:10 h4: k0:17+22 k1:8",
]


def parse_pat(t):
    c = {}
    for w in t.split():
        k, b = w.split(":")
        c[k] = sum(1 << int(x) for x in b.split("+") if x)
    c.setdefault("k0", 256)
    c.setdefault("k1", 512)
    rows = [c[k] for k in c if k[0] != "h"]
    for bit in range(8, 23):
        p = next(x for x in rows if x >> bit & 1)
        rows.remove(p)
        rows = [x ^ p if x >> bit & 1 else x for x in rows]
    return c


def gen(NS=3, stamps=0, pol="nt", wo="CD", prio=3, cap=52, cap0=5, ust=1, n=31, na=25, nC=8, tke=0, capA=7, early=0, poll1=1, nF=8, touch=0, osc="", pipe=0, fx=24, pat=16, tab=0, D=0, uB=27, capP=0, pt=0, capV=66555555, pk=0, thr=56, capF=7, hoist=0, fb=0, fS=44444445, fF=66666665, csp=1, noclr=0, fbm=0, slp=0, sub=0, dp=1, xa=0, fl=0, pdp=0, pair=0, c00=0, dual=0, rk=0, nh=0):
    A = Asm()
    WS_SIZE = WS_BASE + (256 * 512 if dual else 0)
    lo, frac = divmod(cap, 10)
    caps = [lo + (1 if (j + 1) * frac // 10 > j * frac // 10 else 0) for j in range(8)]
    if frac == 5:
        caps = [lo + 1 - (j & 1) for j in range(8)]
    if cap > 1000:
        caps = [int(ch) for ch in str(cap)]
    cap = caps[7]
    nst = [0]

    sH, sS, sW = "s84", "s85", "s3"
    sIdx, sOff, sTk, sIt = "s86", "s87", "s88", "s89"
    sT0, sT1, sT2, sC = "s90", "s91", "s93", "s92"
    sSpin, sAA = "s94", "s95"
    KB, VB, WQB, WQA, WOB, WOA, KA, VA, WS, XB, XA, OUT = ["s[%d:%d]" % (i, i + 3) for i in range(32, 80, 4)]
    DBGP, CNTP = "s[80:81]", "s[82:83]"
    vL16, vWq, vWo = 1, 2, 3
    vQ, vAcc, vM, vLs = 4, 8, 16, 17
    vS0, vR0, vR1, vT, vMx, vAl, vPl, vPh, vMn = 18, 22, 23, 24, 25, 26, 28, 29, 30
    vLo, vLm, vCo = 240, 241, 242
    vX = 244
    vList, vMr, vSc, vL16b = 243, 250, 251, 31
    vP1l, vP1h = 20, 21
    sI, sThr, sPend = "s100", "s24", "s25"
    E1 = 4 * (32 - na)
    E = E1 + 28 * (32 - n) - 7 * nh
    assert not nh or (n == 31 and not sub and not D)
    P3 = 2 * (E - D)
    if sub:
        E, E1, P3, fx = E // 4, E1 // 4, P3 // 4, fx // 4
    assert E <= 128 and 32 - n <= 3
    COL = parse_pat(PATS[pat])
    TJ = [(COL["j0"] if j & 1 else 0) ^ (COL["j1"] if j & 2 else 0) ^ (COL["j2"] if j & 4 else 0) for j in range(8)]
    vP3a, vP3b = 254, 255
    NMAX = 48
    CO2 = 0x80 if csp else 0x100
    assert n > na and 28 * (NMAX - n) >= D
    NT, NTA = n, na
    assert P3 >= 0
    slot = lambda b: 32 + 32 * b
    vWQB, vWQA = 160, 192
    vQA, vAccA, vMA, vLA = 128, 160, 224, 232
    vSA, vRA, vMrA, vTA, vCfA = 64, 96, 112, 120, 80
    NXT = "s[12:15]"

    def stamp(k, force=False):
        if stamps == 1 or (stamps and force):
            A(f"  s_memrealtime s[96:97]")
            A(f"  s_waitcnt lgkmcnt(0)")
            A(f"  v_writelane_b32 v252, s96, {k}")

    def dpp(op, d, a, b, ctrl, bank=0xf):
        A(f"  {op}_dpp v{d}, v{a}, v{b} {ctrl} row_mask:0xf bank_mask:{bank:#x}")

    def kvload(srd, r, so, va=vL16):
        for j in range(4):
            A(f"  buffer_load_dwordx4 v[{r+4*j}:{r+4*j+3}], v{va}, {srd}, {so} offen offset:{j*1024} {pol}")

    def wload(srd, r, voff, sbase, step, j0=0, n=8):
        for j in range(j0, j0 + n):
            if j:
                A(f"  s_add_u32 {sT2}, {sbase}, {j*step}")
            so = sT2 if j else sbase
            A(f"  buffer_load_dwordx4 v[{r+4*j}:{r+4*j+3}], v{voff}, {srd}, {so} offen {pol}")

    def qk(k, q):
        for m in range(4):
            for j in range(4):
                if m == 0:
                    A(f"  v_dot2_f32_bf16 v{vS0+j}, v{k+4*j}, v{q}, 0")
                else:
                    A(f"  v_dot2c_f32_bf16 v{vS0+j}, v{k+4*j+m}, v{q+m}")

    def dots(k, q, j):
        d = vS0 + (j & 3)
        A(f"  v_dot2_f32_bf16 v{d}, v{k}, v{q}, 0")
        for m in range(1, 4):
            A(f"  v_dot2_f32_bf16 v{d}, v{k+m}, v{q+m}, v{d}")

    def ld(srd, r, va, so, off=0):
        A(f"  buffer_load_dwordx4 v[{r}:{r+3}], v{va}, {srd}, {so} offen offset:{off} {pol}")

    vKV, vAd, vNx = 253, 27, 30
    kmask = COL["k0"] | COL["k1"]
    plain = not any(v & kmask for k, v in COL.items() if k[0] != "k")
    TABN = ["j0", "j1", "j2", "v0", "v1", "s0", "s1", "s2", "i0", "i1", "i2", "i3", "i4", "h0", "h1", "h2", "h3", "h4", "k0", "k1"]
    vTab = 7
    if tab:
        plain = False
        TJ = [0] + ["s%d" % (3 + j) for j in range(1, 8)]
    hx = lambda x: x if isinstance(x, str) else hex(x)

    def col(nm):
        if not tab:
            return hex(COL[nm])
        A(f"  v_readlane_b32 s64, v{vTab}, {TABN.index(nm)}")
        return "s64"

    def ldx(srd, r, so, x):
        if x:
            A(f"  s_xor_b32 {sT2}, {so}, {hx(x)}")
        if plain:
            ld(srd, r, vKV, sT2 if x else so)
        else:
            A(f"  v_xor_b32 v{vAd}, {sT2 if x else so}, v{vKV}")
            ld(srd, r, vAd, "0")

    def tk(srd, b, so):
        return lambda j: ldx(srd, slot(b) + 4 * j, so, TJ[j])

    def tka(srd, so):
        return lambda j: ld(srd, slot(0) + 4 * j, vL16 if j < 4 else vL16b, so, (j & 3) * 1024)

    def tkn(j):
        A(f"  v_xor_b32 v{vAd}, s{16+j}, v{vNx}")
        ld(NXT, slot(0) + 4 * j, vAd, "0")

    def prep_next(sa, sb, a_if_scc):
        A("  s_cselect_b32 s23, 1, 0")
        for j in range(cap):
            A(f"  s_add_u32 s{16+j}, {sa}, {j*1024}")
            A(f"  s_xor_b32 {sT2}, {sb}, {hx(TJ[j])}")
            A(f"  s_cmp_eq_u32 s23, {1 if a_if_scc else 0}")
            A(f"  s_cselect_b32 s{16+j}, s{16+j}, {sT2}")
        A(f"  s_mov_b32 {sPend}, s16")
        A("  s_cselect_b64 vcc, -1, 0")
        A(f"  v_cndmask_b32 v{vNx}, v{vKV}, v{vL16}, vcc")

    def advance():
        A(f"  s_mov_b32 {sOff}, {sPend}")

    def ft(so):
        return lambda j: ldx(KB if j < 4 else VB, slot(0) + 4 * j, so, TJ[j & 3])

    def xormap(d, x):
        bits = [("i%d" % k, k) for k in range(5)] + [("v%d" % k, 5 + k) for k in range(2)] + \
               [("s%d" % k, 7 + k) for k in range(3)] + [("h%d" % k, 10 + k) for k in range(5)]
        first = True
        for nm, b in bits:
            if not COL[nm] and not tab:
                continue
            A(f"  v_bfe_i32 v{vX+3}, v{x}, {b}, 1")
            if first:
                A(f"  v_and_b32 v{d}, {col(nm)}, v{vX+3}")
                first = False
            else:
                A(f"  v_and_b32 v{vX+3}, {col(nm)}, v{vX+3}")
                A(f"  v_xor_b32 v{d}, v{d}, v{vX+3}")

    def wl(srd, r, voff, sbase, step):
        def f(j):
            if j:
                A(f"  s_add_u32 {sT2}, {sbase}, {j*step}")
            ld(srd, r + 4 * j, voff, sT2 if j else sbase)
        return f

    def wait_issue(wait, loads):
        mark = len(A.L)
        parts = []
        for k, f in enumerate(loads):
            m = len(A.L)
            f()
            seg = A.L[m:]
            if k & 1:
                seg = [x.replace(sT2, "s101").replace(f"v{vAd},", "v25,") for x in seg]
            parts.append(seg)
        del A.L[mark:]
        if hoist and wait and len(loads) <= 2:
            pre = [x for seg in parts for x in seg if "buffer_load" not in x]
            post = [x for seg in parts for x in seg if "buffer_load" in x]
            A.L += pre + [wait] + post
        else:
            A.L += ([wait] if wait else []) + [x for seg in parts for x in seg]

    def steps(j0, j1, lead, cur, nxt, proc, nmax=8, first_wait=True, caps=caps):
        for j in range(j0, j1):
            w = f"  s_waitcnt vmcnt({lead-j-1})" if first_wait or j > j0 else None
            loads = []
            while lead < min(j + 1 + caps[j], 8 + nmax):
                loads.append(lambda f=(cur if lead < 8 else nxt), k=lead & 7: f(k))
                lead += 1
            wait_issue(w, loads)
            proc(j)
        return lead

    def stream_iter(cur, nxt, proc, caps=caps):
        assert steps(0, 8, cap, cur, nxt, proc, caps=caps) == 8 + cap

    def red16(t):
        dpp("v_add_f32", vR0, vS0, vS0, "row_ror:8", 0x3)
        dpp("v_add_f32", vR1, vS0 + 2, vS0 + 2, "row_ror:8", 0x3)
        dpp("v_add_f32", vR0, vS0 + 1, vS0 + 1, "row_ror:8", 0xc)
        dpp("v_add_f32", vR1, vS0 + 3, vS0 + 3, "row_ror:8", 0xc)
        dpp("v_add_f32", t, vR0, vR0, "row_half_mirror", 0x5)
        dpp("v_add_f32", t, vR1, vR1, "row_half_mirror", 0xa)
        dpp("v_add_f32", t, t, t, "quad_perm:[1,0,3,2]")
        dpp("v_add_f32", t, t, t, "quad_perm:[2,3,0,1]")

    def softmax(t, m, l, acc, pl, ph):
        dpp("v_max_f32", vMx, t, t, "row_ror:4")
        dpp("v_max_f32", vMx, vMx, vMx, "row_ror:8")
        A(f"  v_mul_f32 v{vMx}, {sC}, v{vMx}")
        A(f"  v_max_f32 v{vMn}, v{m}, v{vMx}")
        A(f"  v_fma_f32 v{t}, v{t}, {sC}, -v{vMn}")
        A(f"  v_sub_f32 v{vAl}, v{m}, v{vMn}")
        A(f"  v_exp_f32 v{t}, v{t}")
        A(f"  v_exp_f32 v{vAl}, v{vAl}")
        A(f"  v_mov_b32 v{m}, v{vMn}")
        A(f"  v_cvt_pk_bf16_f32 v{pl}, v{t}, 0")
        A(f"  v_fma_f32 v{l}, v{l}, v{vAl}, v{t}")
        A(f"  v_lshlrev_b32 v{ph}, 16, v{pl}")
        for i in range(4):
            A(f"  v_pk_mul_f32 v[{acc+2*i}:{acc+2*i+1}], v[{acc+2*i}:{acc+2*i+1}], v[{vAl}:{vAl+1}] op_sel_hi:[1,0]")

    def pv(acc, v, pl, ph, lanes):
        for j, ln in enumerate(lanes):
            for m in range(4):
                dpp("v_dot2c_f32_bf16", acc + 2 * m, pl, v + 4 * j + m, f"row_newbcast:{ln}")
                dpp("v_dot2c_f32_bf16", acc + 2 * m + 1, ph, v + 4 * j + m, f"row_newbcast:{ln}")

    KVL = [0, 8, 4, 12]

    def zero(acc, n=8):
        for i in range(n):
            A(f"  v_mov_b32 v{acc+i}, 0")

    def redrows(acc, ldsoff):
        for a, b in ((0, 4), (2, 6), (1, 5), (3, 7)):
            A(f"  v_permlane32_swap_b32 v{acc+a}, v{acc+b}")
        for a, b in ((0, 4), (2, 6), (1, 5), (3, 7)):
            A(f"  v_add_f32 v{acc+a}, v{acc+a}, v{acc+b}")
        A(f"  v_permlane16_swap_b32 v{acc}, v{acc+2}")
        A(f"  v_permlane16_swap_b32 v{acc+1}, v{acc+3}")
        A(f"  v_add_f32 v{acc}, v{acc}, v{acc+2}")
        A(f"  v_add_f32 v{acc+1}, v{acc+1}, v{acc+3}")
        A(f"  ds_write_b64 v{vLo}, v[{acc}:{acc+1}] offset:{ldsoff}")

    def allrows(op, d, x):
        t1, t2 = vX + 2, vX + 3
        A(f"  v_mov_b32 v{t1}, v{x}")
        A(f"  v_mov_b32 v{t2}, v{x}")
        A(f"  v_permlane32_swap_b32 v{t1}, v{t2}")
        A(f"  {op} v{t1}, v{t1}, v{t2}")
        A(f"  v_mov_b32 v{t2}, v{t1}")
        A(f"  v_permlane16_swap_b32 v{t1}, v{t2}")
        A(f"  {op} v{d}, v{t1}, v{t2}")

    def fin(acc, m, l, ldsoff):
        M, Ls = vX, vX + 1
        allrows("v_max_f32", M, m)
        A(f"  v_sub_f32 v{vAl}, v{m}, v{M}")
        A(f"  v_exp_f32 v{vAl}, v{vAl}")
        dpp("v_add_f32", vR0, l, l, "row_ror:4")
        for i in range(4):
            A(f"  v_pk_mul_f32 v[{acc+2*i}:{acc+2*i+1}], v[{acc+2*i}:{acc+2*i+1}], v[{vAl}:{vAl+1}] op_sel_hi:[1,0]")
        dpp("v_add_f32", vR0, vR0, vR0, "row_ror:8")
        A(f"  v_mul_f32 v{vR0}, v{vR0}, v{vAl}")
        allrows("v_add_f32", Ls, vR0)
        A(f"  ds_write_b64 v{vLm}, v[{M}:{M+1}] offset:{ldsoff}")
        redrows(acc, ldsoff)

    def score(u):
        red16(vT)
        A(f"  v_max_f32 v{vMr}, v{vMr}, v{vT}")
        A(f"  ds_write_b32 v{vSc}, v{vT} offset:{4*u}")
        if u:
            A(f"  v_add_u32 v{vSc}, 128, v{vSc}")

    def scbase():
        A(f"  s_lshl_b32 {sT1}, {sW}, 13")
        A(f"  s_add_u32 {sT1}, {sT1}, {L_SC}")
        A(f"  v_lshrrev_b32 v{vSc}, 2, v0")
        A(f"  v_lshl_add_u32 v{vSc}, v{vSc}, 3, {sT1}")

    def probs():
        A(f"  v_fma_f32 v{vS0}, v{vS0}, {sC}, -v{vM}")
        A(f"  v_fma_f32 v{vS0+1}, v{vS0+1}, {sC}, -v{vM}")
        A(f"  v_exp_f32 v{vS0}, v{vS0}")
        A(f"  v_exp_f32 v{vS0+1}, v{vS0+1}")
        A(f"  v_cvt_pk_bf16_f32 v{vPl}, v{vS0}, 0")
        A(f"  v_add_f32 v{vLs}, v{vLs}, v{vS0}")
        A(f"  v_cvt_pk_bf16_f32 v{vP1l}, v{vS0+1}, 0")
        A(f"  v_lshlrev_b32 v{vPh}, 16, v{vPl}")
        A(f"  v_add_f32 v{vLs}, v{vLs}, v{vS0+1}")
        A(f"  v_lshlrev_b32 v{vP1h}, 16, v{vP1l}")

    A(HEADER.rstrip().replace("@LAUNCH@", f"; @launch grid=(256,1,1) block=(320,1,1) lds={LDS_BYTES}"))
    A(DOC.strip("\n"))
    A('.amdgcn_target "amdgcn-amd-amdhsa--gfx950"')
    A(".text")
    A(f".globl {KN}")
    A(".p2align 8")
    A(f".type {KN},@function")
    A(f"{KN}:")
    A("  s_cmp_ge_u32 s2, 256")
    A("  s_cbranch_scc1 L_end")
    if stamps:
        A("  s_memrealtime s[98:99]")
    A("  s_load_dwordx16 s[4:19], s[0:1], 0")
    A("  s_load_dwordx8 s[20:27], s[0:1], 64")
    A("  s_load_dwordx2 s[28:29], s[0:1], 96")
    A("  v_lshrrev_b32 v1, 6, v0")
    A("  v_and_b32 v0, 63, v0")
    A(f"  v_readfirstlane_b32 {sW}, v1")
    A(f"  s_lshr_b32 {sH}, s2, 3")
    A(f"  s_and_b32 {sS}, s2, 7")
    A(f"  s_and_b32 {sT0}, {sH}, 7")
    A(f"  s_cmp_eq_u32 {sT0}, {sS}")
    A(f"  s_cselect_b32 {sAA}, 1, 0")
    A(f"  v_lshlrev_b32 v{vL16}, 4, v0")
    if stamps:
        A("  v_mov_b32 v252, 0")
    A(f"  s_cmp_eq_u32 {sW}, 4")
    A("  s_cbranch_scc1 L_helper")
    A(f"  s_mov_b32 {sC}, 0x3e0293ee")
    A("  v_lshrrev_b32 v4, 4, v0")
    A("  v_and_b32 v5, 15, v0")
    for i in list(range(32, 64, 4)) + [68, 72]:
        A(f"  s_mov_b32 s{i+3}, 0x20000")
    A("  s_mov_b32 s34, 0x800000\n  s_mov_b32 s38, 0x800000")
    A("  s_mov_b32 s42, 0x800000\n  s_mov_b32 s46, 0x800000\n  s_mov_b32 s50, 0x800000\n  s_mov_b32 s54, 0x800000")
    A("  s_mov_b32 s58, 0x20000\n  s_mov_b32 s62, 0x20000")
    A(f"  s_mov_b32 s70, 2048\n  s_mov_b32 s74, 2048")
    A(f"  v_lshlrev_b32 v{vWq}, 13, v4")
    A(f"  v_lshl_add_u32 v{vWq}, v5, 4, v{vWq}")
    A(f"  v_and_b32 v6, 7, v5")
    A(f"  v_lshl_add_u32 v6, v6, 2, v4")
    A(f"  s_lshl_b32 {sT0}, {sW}, 5")
    A(f"  v_add_u32 v6, {sT0}, v6")
    A(f"  v_lshlrev_b32 v{vCo}, 1, v6")
    A(f"  s_lshl_b32 {sT1}, {sS}, 7")
    A(f"  s_add_u32 {sT0}, {sT0}, {sT1}")
    A(f"  s_lshl_b32 {sT0}, {sT0}, 13")
    A(f"  s_lshl_b32 {sT1}, {sH}, 8")
    A(f"  s_add_u32 {sT0}, {sT0}, {sT1}")
    A(f"  s_lshl_b32 {sT1}, {sS}, 8")
    A("  s_waitcnt lgkmcnt(0)")
    A("  s_mov_b32 s40, s20\n  s_mov_b32 s41, s21\n  s_mov_b32 s68, s14\n  s_mov_b32 s69, s15")
    A("  s_mov_b32 s72, s4\n  s_mov_b32 s73, s5\n  s_mov_b32 s44, s10\n  s_mov_b32 s45, s11")
    stamp(12)
    if tab:
        A(f"  v_lshlrev_b32 v{vTab}, 2, v0")
        A(f"  v_add_u32 v{vTab}, 0x30000000, v{vTab}")
        A(f"  global_load_dword v{vTab}, v{vTab}, s[28:29]")
    A(f"  buffer_load_ushort v{vPl}, v{vCo}, {XB}, {sT1} offen {pol}")
    A(f"  buffer_load_ushort v{vX+4}, v{vCo}, {XA}, {sT1} offen {pol}")
    SST = 32 * 4096 * (1 if ust > 1 else 2)
    items = [(wl(WQB, vWQB, vWq, sT0, 32768), j) for j in range(8)] + [(wl(WQA, vWQA, vWq, sT0, 32768), j) for j in range(8)]
    for b in range(NS):
        items += [(tk(KB, b, sOff), j) for j in range(8)]

    def issue(u):
        f, j = items[u]
        if u >= 16 and j == 0:
            A(f"  v_readlane_b32 {sOff}, v{vList}, {(u-16)//8}")
        f(j)

    c00 = c00 or cap0
    for u in range(c00):
        issue(u)
    A(f"  s_lshl_b32 s30, {sH}, 23")
    A(f"  s_add_u32 s32, s16, s30\n  s_addc_u32 s33, s17, 0\n  s_add_u32 s36, s18, s30\n  s_addc_u32 s37, s19, 0")
    A(f"  s_lshl_b32 {sIdx}, {sS}, 2")
    A(f"  s_add_u32 {sIdx}, {sIdx}, {sW}")
    A(f"  v_add_u32 v{vL16b}, 4096, v{vL16}")
    if tab:
        A(f"  s_waitcnt vmcnt({cap0+2})")
    A(f"  v_bfe_i32 v{vX}, v0, 4, 1")
    A(f"  v_and_b32 v{vX}, {col('k0')}, v{vX}")
    A(f"  v_bfe_i32 v{vX+1}, v0, 5, 1")
    A(f"  v_and_b32 v{vX+1}, {col('k1')}, v{vX+1}")
    A(f"  v_xor_b32 v{vX}, v{vX}, v{vX+1}")
    A(f"  v_lshl_add_u32 v{vKV}, v5, 4, v{vX}")
    A(f"  s_lshl_b32 s30, s2, 7")
    A(f"  s_lshl_b32 s31, {sW}, 5")
    A(f"  s_or_b32 s30, s30, s31")
    A(f"  v_and_b32 v{vX}, 31, v0")
    A(f"  v_or_b32 v{vX}, s30, v{vX}")
    xormap(vList, vX)
    E2 = E - E1
    for t, e0 in ((vP3a, 0), (vP3b, 64)):
        if e0 >= E:
            break
        A(f"  s_and_b32 s31, {sH}, 7")
        A(f"  s_lshl_b32 s31, s31, 2")
        if sub:
            A(f"  s_lshr_b32 s31, s31, 2")
            A(f"  v_mul_u32_u24 v{vX+2}, 9363, v0")
            A(f"  v_lshrrev_b32 v{vX+2}, 16, v{vX+2}")
            A(f"  v_mul_u32_u24 v{vX+1}, 7, v{vX+2}")
            A(f"  v_sub_u32 v{vX+1}, v0, v{vX+1}")
            A(f"  v_add_u32 v{vX+2}, {NT}, v{vX+2}")
            A(f"  v_cmp_le_u32 vcc, s31, v{vX+1}")
            A(f"  v_cndmask_b32 v{vX+3}, 0, 1, vcc")
            A(f"  v_add_u32 v{vX+1}, v{vX+1}, v{vX+3}")
            A(f"  v_lshl_add_u32 v{vX+1}, v{vX+1}, 7, v{vX+2}")
            A(f"  s_lshl_b32 s31, s31, 7")
            A(f"  s_add_u32 s31, s31, {NTA - E2}")
            A(f"  v_add_u32 v{vX+2}, s31, v0")
            A(f"  v_cmp_gt_u32 vcc, {E2}, v0")
            A(f"  v_cndmask_b32 v{vX}, v{vX+2}, v{vX+1}, vcc")
            A(f"  s_lshl_b32 s31, {sW}, 5")
            A(f"  v_or_b32 v{vX}, s31, v{vX}")
        else:
            A(f"  v_add_u32 v{vX}, {e0}, v0")
            if nh:
                w = 4 - nh
                A(f"  v_mul_u32_u24 v{vX+2}, {-(-65536 // w)}, v{vX}")
                A(f"  v_lshrrev_b32 v{vX+2}, 16, v{vX+2}")
                A(f"  v_mul_u32_u24 v{vX+2}, {nh}, v{vX+2}")
                A(f"  v_add3_u32 v{vX+1}, v{vX}, v{vX+2}, {nh}")
                A(f"  v_mov_b32 v{vX+2}, {NT}")
            else:
                A(f"  v_mul_u32_u24 v{vX+2}, 2341, v{vX}")
                A(f"  v_lshrrev_b32 v{vX+2}, 16, v{vX+2}")
                A(f"  v_mul_u32_u24 v{vX+1}, 28, v{vX+2}")
                A(f"  v_sub_u32 v{vX+1}, v{vX}, v{vX+1}")
                A(f"  v_add_u32 v{vX+2}, {NT}, v{vX+2}")
            A(f"  v_cmp_le_u32 vcc, s31, v{vX+1}")
            A(f"  v_cndmask_b32 v{vX+3}, 0, 4, vcc")
            A(f"  v_add_u32 v{vX+1}, v{vX+1}, v{vX+3}")
            A(f"  v_lshl_add_u32 v{vX+1}, v{vX+1}, 5, v{vX+2}")
            A(f"  v_cmp_gt_u32 vcc, {E2}, v{vX}")
            A(f"  v_subrev_u32 v{vX}, {E2}, v{vX}")
            A(f"  v_and_b32 v{vX+2}, 3, v{vX}")
            A(f"  v_add_u32 v{vX+2}, s31, v{vX+2}")
            A(f"  v_lshrrev_b32 v{vX+3}, 2, v{vX}")
            A(f"  v_add_u32 v{vX+3}, {NTA}, v{vX+3}")
            A(f"  v_lshl_add_u32 v{vX+2}, v{vX+2}, 5, v{vX+3}")
            A(f"  v_cndmask_b32 v{vX}, v{vX+2}, v{vX+1}, vcc")
        A(f"  s_lshl_b32 s31, {sH}, 10")
        A(f"  v_and_b32 v{vX}, 0x3ff, v{vX}")
        A(f"  v_or_b32 v{vX}, s31, v{vX}")
        xormap(t, vX)
    A(f"  s_lshr_b32 {sT1}, {sH}, 3")
    A(f"  s_lshl_b32 {sT1}, {sT1}, 23")
    A(f"  s_and_b32 s30, {sH}, 7")
    A(f"  s_lshl_b32 s30, s30, 17")
    A(f"  s_add_u32 {sT1}, {sT1}, s30")
    A(f"  s_add_u32 {sT1}, {sT1}, {28672*256}")
    A("  s_mov_b32 s48, s22\n  s_mov_b32 s49, s23\n  s_mov_b32 s52, s12\n  s_mov_b32 s53, s13")
    A(f"  s_add_u32 s56, s6, {sT1}\n  s_addc_u32 s57, s7, 0\n  s_add_u32 s60, s8, {sT1}\n  s_addc_u32 s61, s9, 0")
    def cntoff(d, g, t):
        A(f"  s_lshl_b32 {d}, {g}, 15")
        A(f"  s_add_u32 {d}, {d}, {W_CNT}")
        if csp:
            A(f"  s_and_b32 {t}, {g}, 7")
            A(f"  s_lshl_b32 {t}, {t}, 12")
            A(f"  s_add_u32 {d}, {d}, {t}")
            A(f"  s_lshr_b32 {t}, {g}, 3")
            A(f"  s_lshl_b32 {t}, {t}, 8")
            A(f"  s_add_u32 {d}, {d}, {t}")

    if sub:
        A(f"  s_lshl_b32 s31, {sW}, 1")
        A(f"  s_add_u32 s31, s31, {sH}")
        A(f"  s_and_b32 s31, s31, 7")
        A(f"  s_lshl_b32 s30, {sH}, 3")
        A(f"  s_add_u32 s30, s30, s31")
        A(f"  s_lshl_b32 s30, s30, 12")
        A(f"  s_lshr_b32 s31, {sH}, 3")
        A(f"  s_add_u32 s31, s31, {sW}")
        A(f"  s_and_b32 s31, s31, 3")
        A(f"  s_lshl_b32 s31, s31, 8")
        A(f"  s_add_u32 s30, s30, s31")
        A(f"  s_add_u32 s30, s30, {W_CNT}")
    else:
        cntoff("s30", sH, "s31")
    A(f"  s_add_u32 s82, s28, s30\n  s_addc_u32 s83, s29, 0")
    A(f"  v_lshlrev_b32 v{vWo}, 11, v4")
    A(f"  v_lshl_add_u32 v{vWo}, v5, 4, v{vWo}")
    A(f"  v_lshlrev_b32 v{vLo}, 5, v5")
    A(f"  v_lshl_add_u32 v{vLo}, v4, 3, v{vLo}")
    A(f"  s_mul_i32 {sT1}, {sW}, {PS}")
    A(f"  v_add_u32 v{vLo}, {sT1}, v{vLo}")
    A(f"  s_add_u32 {sT1}, {sT1}, 512")
    A(f"  v_mov_b32 v{vLm}, {sT1}")
    A(f"  v_lshlrev_b32 v{vX+5}, 4, v5")
    if tab:
        for j in range(1, 8):
            A(f"  v_readlane_b32 s{3+j}, v{vTab}, {20+j}")
    zero(vAcc)
    U0, U1 = slot(0), slot(0) + 16
    sNx = sPend

    def kproc(b):
        def f(j):
            dots(slot(b) + 4 * j, vQ, j)
            if j & 3 == 3:
                score(j >> 2)
        return f

    def pre_b2():
        A(f"  s_lshl_b32 {sT0}, {sH}, 7")
        A(f"  s_lshl_b32 {sT1}, {sW}, 5")
        A(f"  s_add_u32 {sT0}, {sT0}, {sT1}")
        A(f"  s_lshl_b32 {sT0}, {sT0}, 11")
        A(f"  s_lshl_b32 {sT1}, {sS}, 8")
        A(f"  s_add_u32 {sT0}, {sT0}, {sT1}")
        zero(vAcc)
        A(f"  v_mov_b32 v{vMr}, 0xff7fffff")
        A(f"  v_mov_b32 v{vM}, 0xff7fffff")
        A(f"  v_mov_b32 v{vLs}, 0")
        scbase()
        A(f"  s_mov_b32 {sI}, {NS+1}")
        if nh:
            A(f"  s_cmp_lt_u32 {sW}, {nh}")
            A(f"  s_cselect_b32 {sIt}, {NT+1}, {NT}")
        A(f"  s_cmp_eq_u32 {sAA}, 1")
        A(f"  s_cselect_b32 {sIt}, {NTA}, {sIt if nh else NT}")

    def b2():
        stamp(2)
        A("  s_waitcnt lgkmcnt(0)")
        A("  s_barrier")
        A(f"  ds_read_b128 v[{vQ}:{vQ+3}], v{vX+5} offset:{L_Q}")

    NB = len(items)
    if uB:
        items += [(tk(KB, 0, sOff), j) for j in range(cap)]
    nxt = c00
    done = 16
    for u in range(NB):
        if not uB and u >= 16 and nxt >= len(items):
            break
        w = f"  s_waitcnt vmcnt({nxt-u-1})"
        loads = []
        while nxt < min(len(items), u + 1 + cap0) and (nxt < NB or done > 16 + nxt - NB):
            loads.append(lambda k=nxt: issue(k))
            nxt += 1
        wait_issue(w, loads)
        if u == 0:
            stamp(13)
            A(f"  v_lshlrev_b32 v{vPh}, 16, v{vPl}")
        if u < 8:
            pv(vAcc, vWQB + 4 * u, vPl, vPh, [u])
        elif u < 16:
            pv(vAcc, vWQA + 4 * (u - 8), vPl, vPh, [u - 8])
        if u == 7:
            redrows(vAcc, L_QBP)
            stamp(1)
            A("  s_waitcnt lgkmcnt(0)")
            A("  s_barrier")
            stamp(14)
            zero(vAcc)
            A(f"  v_mov_b32 v{vPl}, v{vX+4}")
            A(f"  v_lshlrev_b32 v{vPh}, 16, v{vX+4}")
        if u == 15:
            redrows(vAcc, L_QAP)
            stamp(15)
        if u == 16:
            pre_b2()
        if uB and u == uB:
            b2()
        if uB and u > uB:
            if u == uB + 1:
                A("  s_waitcnt lgkmcnt(0)")
                stamp(3)
            left = NB - 1 - u
            k = u + 1 - done if left == 0 else min(u + 1 - done, 3)
            for _ in range(k):
                kproc((done - 16) // 8)((done - 16) % 8)
                done += 1
    if uB:
        assert done == NB
        while nxt < len(items):
            issue(nxt)
            nxt += 1
    else:
        A(f"  v_readlane_b32 {sOff}, v{vList}, {NS}")
        b2()
        A("  s_waitcnt lgkmcnt(0)")
        stamp(3)
        A(f"  s_waitcnt vmcnt({(NS-1)*8})")
        for j in range(8):
            kproc(0)(j)
            if j < cap:
                tk(KB, 0, sOff)(j)
        for b in range(1, NS):
            A(f"  s_waitcnt vmcnt({(NS-1-b)*8+cap})")
            for j in range(8):
                kproc(b)(j)
    stamp(4)
    def pool():
        A(f"  v_readlane_b32 {sNx}, v{vP3a}, s31")
        if E > 64:
            A(f"  v_readlane_b32 s30, v{vP3b}, s31")
            A(f"  s_cmp_ge_u32 s31, 64")
            A(f"  s_cselect_b32 {sNx}, s30, {sNx}")

    sFb, sExp, sDif, sOne = "s65", "s66", "s67", "s76"

    def fbhook(proc):
        def f(j):
            proc(j)
            if fbm == 4:
                if j == 1:
                    lab = f"L_fb{len(A.L)}"
                    A(f"  s_and_b32 s31, {sI}, 1")
                    A(f"  s_or_b32 s31, s31, {sW}")
                    A(f"  s_cmp_lg_u32 s31, 0")
                    A(f"  s_cbranch_scc1 {lab}")
                    A("  s_waitcnt lgkmcnt(0)")
                    A(f"  s_sub_i32 s31, {sExp}, {sFb}")
                    A(f"  s_mul_i32 s31, s31, {sOne}")
                    A(f"  s_add_u32 {sExp}, {sExp}, 8")
                    A(f"  v_mov_b32 v{vX}, s31")
                    A(f"  v_mov_b32 v{vX+1}, 31104")
                    A(f"  ds_write_b32 v{vX+1}, v{vX}")
                    A(f"  s_mov_b32 {sFb}, {sOne}")
                    A(f"  s_atomic_add {sFb}, s[78:79], 0 glc")
                    A(f"{lab}:")
                if j == 5:
                    A(f"  v_mov_b32 v{vX+1}, 31104")
                    A(f"  ds_read_b32 v{vX}, v{vX+1}")
                if j == 6:
                    A("  s_waitcnt lgkmcnt(0)")
                    A(f"  v_readfirstlane_b32 {sDif}, v{vX}")
            elif j == 2 and fbm == 1:
                A(f"  s_mov_b32 {sDif}, 0")
                A(f"  s_atomic_add {sOne}, s[78:79], 0")
            elif j == 2 and fbm == 2:
                A("  s_waitcnt lgkmcnt(0)")
                A(f"  s_mov_b32 {sDif}, 0")
                A(f"  s_load_dword {sFb}, s[78:79], 0 glc")
            elif j == 2 and fbm == 3:
                A("  s_waitcnt lgkmcnt(0)")
                A(f"  s_mov_b32 {sDif}, 0")
            elif j == 2:
                A("  s_waitcnt lgkmcnt(0)")
                A(f"  s_sub_i32 {sDif}, {sExp}, {sFb}")
                A(f"  s_mul_i32 {sDif}, {sDif}, {sOne}")
                A(f"  s_add_u32 {sExp}, {sExp}, 28")
                A(f"  s_mov_b32 {sFb}, {sOne}")
                A(f"  s_atomic_add {sFb}, s[78:79], 0 glc")
        return f

    def fbloops(base, top, srd, proc, cn):
        for suf, cp in (("", cn), ("_s", [int(ch) for ch in str(fS)]), ("_f", [int(ch) for ch in str(fF)])):
            top(base + suf)
            stream_iter(tk(srd, 0, sOff), tk(srd, 0, sNx), fbhook(proc), cp)
            advance()
            A(f"  s_cmp_gt_i32 {sDif}, {fb}")
            A(f"  s_cbranch_scc1 {base}_s")
            A(f"  s_cmp_lt_i32 {sDif}, {-fb}")
            A(f"  s_cbranch_scc1 {base}_f")
            A(f"  s_branch {base}")

    def p1top(lab):
        A(f"{lab}:")
        A(f"  s_cmp_ge_u32 {sI}, {sIt}")
        A("  s_cbranch_scc1 L_p1d")
        A(f"  v_readlane_b32 {sNx}, v{vList}, {sI}")
        A(f"  s_add_u32 {sI}, {sI}, 1")

    if fb:
        A(f"  s_and_b32 s77, {sH}, 7")
        A(f"  s_lshl_b32 s77, s77, 2")
        A(f"  s_sub_u32 s77, {sIdx}, s77")
        A(f"  s_add_u32 s77, s77, {sH}")
        A(f"  s_and_b32 s77, s77, 31")
        cntoff("s78", "s77", "s79")
        A(f"  s_add_u32 s78, s28, s78")
        A(f"  s_addc_u32 s79, s29, 0")
        A(f"  s_xor_b32 {sOne}, {sAA}, 1")
        A(f"  s_mov_b32 {sExp}, {-5 if fbm == 4 else -16}")
        A(f"  s_mov_b32 {sFb}, {-5 if fbm == 4 else -16}")
        if fbm == 4:
            A(f"  s_sub_u32 s77, {sH}, {sS}")
            A(f"  s_and_b32 s77, s77, 31")
            cntoff("s78", "s77", "s79")
            A(f"  s_add_u32 s78, s28, s78")
            A(f"  s_addc_u32 s79, s29, 0")
            A(f"  v_mov_b32 v{vX}, 0")
            A(f"  v_mov_b32 v{vX+1}, 31104")
            A(f"  ds_write_b32 v{vX+1}, v{vX}")
        fbloops("L_k", p1top, KB, kproc(0), caps)
    A("L_loop:")
    A(f"  s_cmp_ge_u32 {sI}, {sIt}")
    A(f"  s_cbranch_scc1 {'L_dyn0' if D else 'L_p1d'}")
    A(f"  v_readlane_b32 {sNx}, v{vList}, {sI}")
    A(f"  s_add_u32 {sI}, {sI}, 1")
    if D:
        A(f"  s_cmp_lg_u32 {sI}, {NT}")
        A("  s_cbranch_scc1 L_iter")
        A("L_take:")
        A(f"  s_mov_b32 {sTk}, 1")
        A(f"  s_atomic_add {sTk}, {CNTP}, 0 glc")
        A("L_iter:")
    stream_iter(tk(KB, 0, sOff), tk(KB, 0, sNx), kproc(0))
    advance()
    A("  s_branch L_loop")
    if D:
        A("L_dyn0:")
        A(f"  s_cmp_eq_u32 {sAA}, 1")
        A("  s_cbranch_scc1 L_p1d")
        A("  s_waitcnt lgkmcnt(0)")
        A(f"  s_add_u32 s31, {sTk}, 1")
        A(f"  s_cmp_ge_u32 s31, {D}")
        A("  s_cbranch_scc1 L_p1d")
        pool()
        A(f"  s_mov_b32 m0, {sI}")
        A(f"  s_add_u32 {sI}, {sI}, 1")
        A(f"  s_mov_b32 {sIt}, {sI}")
        A(f"  v_writelane_b32 v{vList}, {sNx}, m0")
        A(f"  s_mov_b32 {sTk}, 0x10000")
        A(f"  s_cmp_ge_u32 {sI}, {NMAX}")
        A("  s_cbranch_scc1 L_iter")
        A("  s_branch L_take")
    A("L_p1d:")
    stamp(9)
    A(f"  v_readlane_b32 {sNx}, v{vList}, 0")
    A(f"  s_mov_b32 {sI}, 1")
    A(f"  s_lshl_b32 s30, {sW}, 13")
    A(f"  s_mov_b32 s15, 0x20000")
    A(f"  s_cmp_eq_u32 {sAA}, 1")
    A("  s_cselect_b32 s12, s56, s36")
    A("  s_cselect_b32 s13, s57, s37")
    A("  s_cselect_b32 s14, s58, s38")
    prep_next("s30", sNx, True)
    stream_iter(tk(KB, 0, sOff), tkn, kproc(0))
    advance()
    dpp("v_max_f32", vMr, vMr, vMr, "row_ror:4")
    scbase()
    dpp("v_max_f32", vMr, vMr, vMr, "row_ror:8")
    A(f"  v_mul_f32 v{vM}, {sC}, v{vMr}")
    A(f"  s_cmp_eq_u32 {sAA}, 1")
    A("  s_cbranch_scc1 L_event")

    def vproc(j):
        if j == 0:
            A("  s_waitcnt lgkmcnt(0)")
            probs()
        pv(vAcc, U0 + 4 * j, vPl if j < 4 else vP1l, vPh if j < 4 else vP1h, [KVL[j & 3]])

    capsV = [int(ch) for ch in str(capV)] if capV else caps
    capsF = [min(capF, cap + 1 + j, cap + 7 - j) for j in range(8)]

    def p2top(lab):
        A(f"{lab}:")
        A(f"  ds_read_b64 v[{vS0}:{vS0+1}], v{vSc}")
        A(f"  v_add_u32 v{vSc}, 128, v{vSc}")
        A(f"  s_cmp_ge_u32 {sI}, {sIt}")
        A("  s_cbranch_scc1 L_p2last")
        A(f"  v_readlane_b32 {sNx}, v{vList}, {sI}")
        A(f"  s_add_u32 {sI}, {sI}, 1")

    def vproc_peek(j):
        vproc(j)
        if j == 0:
            A(f"  s_cmp_ge_i32 {sTk}, {P3 - thr}")
            A(f"  s_cselect_b32 s23, 1, 0")
            A(f"  s_add_u32 s31, {sI}, {pk}")
            A(f"  s_cmp_lt_u32 s31, {sIt}")
            A("  s_cbranch_scc1 L_nopeek")
            A(f"  s_mov_b32 {sTk}, 0")
            A(f"  s_atomic_add {sTk}, {CNTP}, {CO2} glc")
            A("L_nopeek:")

    if fb:
        fbloops("L_p2", p2top, VB, vproc, capsV)
    if pk:
        A("L_p2:")
        A(f"  s_mov_b32 {sTk}, -1")
    p2top("L_p2s" if pk else "L_p2x" if fb else "L_p2")
    stream_iter(tk(VB, 0, sOff), tk(VB, 0, sNx), vproc_peek if pk else vproc, capsV)
    advance()
    if pk:
        A("  s_cmp_eq_u32 s23, 0")
        A("  s_cbranch_scc1 L_p2s")
        p2top("L_p2f")
        stream_iter(tk(VB, 0, sOff), tk(VB, 0, sNx), vproc, capsF)
        advance()
        A("  s_branch L_p2f")
    else:
        A("  s_branch L_p2")

    def p3tile(lab):
        A("  s_waitcnt lgkmcnt(0)")
        A(f"  s_add_u32 {sT1}, {sTk}, 1")
        A(f"  s_cmp_ge_u32 {sT1}, {P3}")
        A(f"  s_cbranch_scc1 {lab}")
        A(f"  s_lshr_b32 s31, {sT1}, 1")
        if D:
            A(f"  s_add_u32 s31, s31, {D}")
        pool()
        A(f"  s_bitcmp1_b32 {sT1}, 0")
        A(f"  s_cselect_b32 s31, {hx(TJ[4])}, 0")
        A(f"  s_xor_b32 {sNx}, {sNx}, s31")
        if fx and pair:
            A(f"  s_mul_i32 s31, s23, {P3}")
            A(f"  s_add_u32 s31, s31, {P3 - fx}")
            A(f"  s_cmp_ge_u32 {sT1}, s31")
            A(f"  s_cbranch_scc1 {lab}_f")
        elif fx:
            A(f"  s_cmp_ge_u32 {sT1}, {P3 - fx}")
            A(f"  s_cbranch_scc1 {lab}_f")

    def take():
        for _ in range(xa):
            A(f"  s_atomic_add {sAA}, {CNTP}, 0")
        A(f"  s_mov_b32 {sTk}, 1")
        A(f"  s_atomic_add {sTk}, {CNTP}, {CO2} glc")

    def fproc(j, r=U0):
        if j < 4:
            dots(r + 4 * j, vQ, j)
            if j == 3:
                red16(vT)
                softmax(vT, vM, vLs, vAcc, vPl, vPh)
        else:
            pv(vAcc, r + 4 * j, vPl, vPh, [KVL[j & 3]])

    def final_head(cur, proc):
        for k in range(LT, 8):
            cur(k)
        for k in range(8):
            ldx(KB if k < 4 else VB, slot(3) + 4 * k, sNx, TJ[k & 3])
        for j in range(JT, 8):
            if j > JT:
                A(f"  s_waitcnt vmcnt({16-j-1})")
            proc(j)

    def final_tile():
        issued = 8
        for k in range(8):
            w = f"  s_waitcnt vmcnt({issued-k-1})"
            loads = []
            while issued - k - 1 < cap and issued - 8 < min(nC, cap):
                loads.append(lambda q=issued - 8: wostream(q))
                issued += 1
            wait_issue(w, loads)
            fproc(k, slot(3))

    NWO = 16 - 8 * early
    nC = min(nC, NWO)
    wostream = lambda j: (wl(WOA, slot(2), vWo, sT0, 8192)(j) if j + 8 * early < 8 else wl(WOB, slot(1), vWo, sT0, 8192)(j + 8 * early - 8))
    capsP = [min(capP, cap + 1 + j, cap + 7 - j) for j in range(8)] if capP else caps
    JT = min(j for j in range(8) if j + 1 + capsP[j] > 8)
    LT = max([cap] + [j + 1 + capsP[j] for j in range(JT)])

    def split_iter(cur, proc, lab):
        assert steps(0, JT, cap, cur, None, proc, caps=capsP) == LT
        A(f"  s_waitcnt vmcnt({LT-JT-1})")
        p3tile(lab)
        if tke:
            take()
        steps(JT, 8, LT, cur, ft(sNx), proc, first_wait=False, caps=capsP)
        A(f"  s_mov_b32 {sOff}, {sNx}")

    def tail_iter(cur, proc):
        steps(JT, 8, LT, cur, wostream, proc, nmax=nC, first_wait=False, caps=capsP)

    A("L_p2last:")
    A("  s_waitcnt lgkmcnt(0)")
    stamp(10)
    vproc2 = lambda j: pv(vAcc, U0 + 4 * j, vPl if j < 4 else vP1l, vPh if j < 4 else vP1h, [KVL[j & 3]])
    woa = wl(WOA, slot(2), vWo, sT0, 8192)
    wob = wl(WOB, slot(1), vWo, sT0, 8192)
    if early:
        probs()
        stream_iter(tk(VB, 0, sOff), woa, vproc2)
        last_cur, last_proc = woa, (lambda j: None)
        if early == 2:
            stream_iter(woa, wob, last_proc)
            last_cur = wob
        take()
    else:
        take()
        if pair:
            A("  s_mov_b32 s23, 0")
        probs()
        last_cur, last_proc = tk(VB, 0, sOff), vproc2
    split_iter(last_cur, last_proc, "L_tail0")
    A("L_loop3:")
    if pair:
        A(f"  s_mov_b32 {sTk}, {sT1}")
        A("  s_cmp_eq_u32 s23, 1")
        A("  s_mov_b32 s23, 0")
        A("  s_cbranch_scc1 L_have")
        A(f"  s_cmp_lt_u32 {sT1}, {pair}")
        A("  s_cselect_b32 s23, 1, 0")
        A(f"  s_add_u32 {sTk}, s23, 1")
        A(f"  s_atomic_add {sTk}, {CNTP}, {CO2} glc")
        A("L_have:")
    elif not tke:
        take()
    split_iter(ft(sOff), fproc, "L_drain")
    A("  s_branch L_loop3")

    A("L_tail0:")
    stamp(6)
    tail_iter(last_cur, last_proc)
    A("  s_branch L_fin")
    A("L_drain:")
    stamp(6)
    tail_iter(ft(sOff), fproc)
    if fx:
        A("  s_branch L_fin")
        A("L_tail0_f:")
        stamp(6)
        final_head(last_cur, last_proc)
        A("  s_branch L_final")
        A("L_drain_f:")
        stamp(6)
        final_head(ft(sOff), fproc)
        A("L_final:")
        final_tile()
    A("L_fin:")
    nc = min(nC, cap)
    if wo == "C":
        for j in range(nc, NWO):
            wostream(j)
    elif wo == "CD":
        for j in range(nc, min(nF, NWO)):
            wostream(j)
        nc = max(nc, min(nF, NWO))
    if rk:
        A(f"  v_mov_b32 v4, {L_RK}")
        A(f"  v_mov_b32 v5, 1")
        A("  s_mov_b64 exec, 1")
        A(f"  ds_add_rtn_u32 v5, v4, v5")
        A("  s_mov_b64 exec, -1")
    fin(vAcc, vM, vLs, L_BPART)
    stamp(7)
    A("  s_waitcnt lgkmcnt(0)")
    if rk:
        A(f"  v_readfirstlane_b32 s23, v5")
        A(f"  s_cmp_ge_u32 s23, {rk}")
        A("  s_cbranch_scc1 L_late")
        for j in range(nc, NWO):
            wostream(j)
        A("L_late:")
    A("  s_barrier")
    A(f"  ds_read_u16 v{vPl}, v{vCo} offset:{L_OA}")
    vPo, bx = 4, slot(0)

    def dpolls(bx=bx):
        for k in range(4):
            if k:
                A(f"  s_add_u32 {sT2}, s31, {k*WG_STRIDE}")
            A(f"  buffer_load_dwordx4 v[{bx+4*k}:{bx+4*k+3}], v{vPo}, {WS}, {sT2 if k else 's31'} offen sc1")

    if dp:
        A(f"  s_mov_b32 s64, s28\n  s_mov_b32 s65, s29\n  s_mov_b32 s66, {WS_SIZE}\n  s_mov_b32 s67, 0x20000")
        A(f"  v_and_b32 v{vPo}, 0xfc, v{vCo}")
        A(f"  v_lshlrev_b32 v{vPo}, 2, v{vPo}")
        A(f"  v_bfe_u32 v5, v0, 3, 1")
        A(f"  v_lshl_add_u32 v{vPo}, v5, 14, v{vPo}")
        A(f"  v_and_b32 v5, 16, v0")
        A(f"  v_cmp_ne_u32 s[76:77], 0, v5")
        A(f"  s_lshl_b32 s31, {sH}, 15")
        A(f"  s_add_u32 s31, s31, {W_BP}")
        A(f"  s_mov_b32 {sSpin}, {SPIN}")
    if "D" in wo:
        A("  s_barrier")
        if dp == 2:
            dpolls()
        if rk:
            A(f"  s_cmp_lt_u32 s23, {rk}")
            A("  s_cbranch_scc1 L_early")
        for j in range(nc, NWO):
            wostream(j)
        if rk:
            A("L_early:")
    if dp == 1:
        dpolls()
    zero(vAcc)
    A(f"  s_waitcnt vmcnt({12 if dp else 8}) lgkmcnt(0)")
    A(f"  v_lshlrev_b32 v{vPh}, 16, v{vPl}")
    pv(vAcc, slot(2), vPl, vPh, range(8))
    redrows(vAcc, L_O2A)
    zero(vAcc + 2, 6)
    A("  s_waitcnt lgkmcnt(0)")
    A("  s_barrier")
    if dp:
        zero(vAcc, 2)

        def dcheck(bx):
            A(f"  v_max3_u32 v5, v{bx}, v{bx+1}, v{bx+2}")
            for i in range(3, 15, 2):
                A(f"  v_max3_u32 v5, v5, v{bx+i}, v{bx+i+1}")
            A(f"  v_max_u32 v5, v5, v{bx+15}")
            A(f"  v_max3_f32 v{vM}, v{bx+2}, v{bx+6}, v{bx+10}")
            A(f"  v_cmp_eq_u32 vcc, -1, v5")
            A(f"  v_max_f32 v{vM}, v{vM}, v{bx+14}")

        def dmerge(bx):
            dpp("v_max_f32", vM, vM, vM, "row_ror:8")
            for k in range(4):
                A(f"  v_cndmask_b32 v{bx+4*k}, v{bx+4*k}, v{bx+4*k+1}, s[76:77]")
            for k in range(4):
                A(f"  v_sub_f32 v{bx+4*k+2}, v{bx+4*k+2}, v{vM}")
            for k in range(4):
                A(f"  v_exp_f32 v{bx+4*k+2}, v{bx+4*k+2}")
            A(f"  v_mul_f32 v6, v{bx+2}, v{bx+3}")
            A(f"  v_mul_f32 v7, v{bx+2}, v{bx}")
            for k in range(1, 4):
                A(f"  v_fmac_f32 v6, v{bx+4*k+2}, v{bx+4*k+3}")
                A(f"  v_fmac_f32 v7, v{bx+4*k+2}, v{bx+4*k}")

        if pdp:
            dpolls(bx + 16)
            A("L_dp:")
            A("  s_waitcnt vmcnt(4)")
            dcheck(bx)
            A("  s_cbranch_vccz L_dp_ok0")
            dpolls(bx)
            A("  s_waitcnt vmcnt(4)")
            dcheck(bx + 16)
            A(f"  s_sub_u32 {sSpin}, {sSpin}, 1")
            A("  s_cbranch_scc1 L_dp_ok1")
            A("  s_cbranch_vccz L_dp_ok1")
            dpolls(bx + 16)
            A("  s_branch L_dp")
            A("L_dp_ok1:")
            dmerge(bx + 16)
            A("  s_branch L_dp_ok")
            A("L_dp_ok0:")
            dmerge(bx)
            A("L_dp_ok:")
        else:
            A("  s_branch L_dp_w")
            A("L_dp:")
            dpolls()
            A("L_dp_w:")
            A("  s_waitcnt vmcnt(0)")
            dcheck(bx)
            A(f"  s_sub_u32 {sSpin}, {sSpin}, 1")
            A("  s_cbranch_scc1 L_dp_ok")
            A("  s_cbranch_vccnz L_dp")
            A("L_dp_ok:")
            dmerge(bx)
        dpp("v_add_f32", 6, 6, 6, "row_ror:8")
        dpp("v_add_f32", 7, 7, 7, "row_ror:8")
        A("  v_rcp_f32 v6, v6")
        A("  v_mul_f32 v7, v7, v6")
        A(f"  v_cvt_pk_bf16_f32 v{vPl}, v7, 0")
        stamp(11)
    else:
        A(f"  ds_read_u16 v{vPl}, v{vCo} offset:{L_OB}")
        zero(vAcc, 2)
        A("  s_waitcnt vmcnt(0) lgkmcnt(0)")
    A(f"  v_lshlrev_b32 v{vPh}, 16, v{vPl}")
    pv(vAcc, slot(1), vPl, vPh, range(8))
    redrows(vAcc, L_O2B)
    stamp(8)
    if stamps:
        A(f"  s_cmp_lg_u32 {sW}, 0")
        A("  s_cbranch_scc1 L_nost0")
        A(f"  s_lshl_b32 {sT0}, s2, 8")
        A(f"  s_add_u32 {sT0}, {sT0}, {STAMP1}")
        A(f"  v_lshl_add_u32 v4, v0, 2, {sT0}")
        A("  s_mov_b64 exec, 0xffff")
        A("  global_store_dword v4, v252, s[28:29]")
        A("  s_mov_b64 exec, -1")
        A("L_nost0:")
    A("  s_waitcnt lgkmcnt(0)")
    A("  s_barrier")
    A("  s_endpgm")

    capsA = [min(capA, cap + 1 + j, cap + 7 - j) for j in range(8)]

    def akproc(j):
        for m in range(4):
            for i in range(8):
                d = vSA + 4 * i + (j & 3)
                A(f"  v_dot2_f32_bf16 v{d}, v{U0+4*j+m}, v{vQA+4*i+m}, {'0' if m == 0 else 'v%d' % d}")
        if j & 3 == 3:
            for a, b, bank in ((0, 0, 0x3), (1, 2, 0x3), (0, 1, 0xc), (1, 3, 0xc)):
                for i in range(8):
                    dpp("v_add_f32", vRA + 2 * i + a, vSA + 4 * i + b, vSA + 4 * i + b, "row_ror:8", bank)
            for a, bank in ((0, 0x5), (1, 0xa)):
                for i in range(8):
                    dpp("v_add_f32", vTA + i, vRA + 2 * i + a, vRA + 2 * i + a, "row_half_mirror", bank)
            for ctrl in ("quad_perm:[1,0,3,2]", "quad_perm:[2,3,0,1]"):
                for i in range(8):
                    dpp("v_add_f32", vTA + i, vTA + i, vTA + i, ctrl)
            for i in range(8):
                A(f"  v_max_f32 v{vMrA+i}, v{vMrA+i}, v{vTA+i}")
                A(f"  ds_write_b32 v{vX+4}, v{vTA+i} offset:{4096+128*i+4*(j>>2)}")

    def avproc(j):
        if j == 0:
            A("  s_waitcnt lgkmcnt(0)")
            for i in range(16):
                A(f"  v_fma_f32 v{vSA+i}, v{vSA+i}, {sC}, -v{vMA+i//2}")
            for i in range(16):
                A(f"  v_exp_f32 v{vSA+i}, v{vSA+i}")
            for i in range(16):
                A(f"  v_cvt_pk_bf16_f32 v{vCfA+2*i}, v{vSA+i}, 0")
                A(f"  v_add_f32 v{vLA+i//2}, v{vLA+i//2}, v{vSA+i}")
            for i in range(16):
                A(f"  v_lshlrev_b32 v{vCfA+2*i+1}, 16, v{vCfA+2*i}")
        for i in range(8):
            c = vCfA + 4 * i + 2 * (j >> 2)
            pv(vAccA + 8 * i, U0 + 4 * j, c, c + 1, [KVL[j & 3]])

    A("L_event:")
    A("  s_barrier")
    for i in range(8):
        A(f"  ds_read_b128 v[{vQA+4*i}:{vQA+4*i+3}], v{vX+5} offset:{L_QA+256*i}")
    for i in range(8):
        A(f"  v_mov_b32 v{vMrA+i}, 0xff7fffff")
        A(f"  v_mov_b32 v{vLA+i}, 0")
    A(f"  v_mov_b32 v{vX+4}, v{vSc}")
    A("  s_mov_b32 s31, 4")
    A("  s_waitcnt lgkmcnt(0)")
    A("L_ak:")
    A("  s_sub_u32 s31, s31, 1")
    A(f"  s_add_u32 {sNx}, {sOff}, 32768")
    A("  s_cmp_eq_u32 s31, 0")
    A("  s_cselect_b32 s12, s60, s56")
    A("  s_cselect_b32 s13, s61, s57")
    A(f"  s_cselect_b32 {sNx}, s30, {sNx}")
    stream_iter(tka(KA, sOff), tka(NXT, sNx), akproc, capsA)
    A(f"  s_mov_b32 {sOff}, {sNx}")
    A(f"  v_add_u32 v{vX+4}, 1024, v{vX+4}")
    A("  s_cbranch_scc0 L_ak")
    for i in range(8):
        dpp("v_max_f32", vMrA + i, vMrA + i, vMrA + i, "row_ror:4")
    for i in range(8):
        dpp("v_max_f32", vMrA + i, vMrA + i, vMrA + i, "row_ror:8")
    for i in range(8):
        A(f"  v_mul_f32 v{vMA+i}, {sC}, v{vMrA+i}")
    zero(vAccA, 64)
    A(f"  v_mov_b32 v{vX+4}, v{vSc}")
    A(f"  v_readlane_b32 s30, v{vList}, 0")
    A("  s_mov_b32 s31, 4")
    A("L_av:")
    for i in range(8):
        A(f"  ds_read_b64 v[{vSA+2*i}:{vSA+2*i+1}], v{vX+4} offset:{4096+128*i}")
    A("  s_sub_u32 s31, s31, 1")
    A(f"  s_add_u32 {sNx}, {sOff}, 32768")
    A("  s_cmp_eq_u32 s31, 0")
    A("  s_cselect_b32 s12, s36, s60")
    A("  s_cselect_b32 s13, s37, s61")
    A("  s_cselect_b32 s14, s38, s62")
    prep_next(sNx, "s30", False)
    stream_iter(tka(VA, sOff), tkn, avproc, capsA)
    advance()
    A(f"  v_add_u32 v{vX+4}, 1024, v{vX+4}")
    A("  s_cmp_eq_u32 s31, 0")
    A("  s_cbranch_scc0 L_av")
    for i in range(8):
        fin(vAccA + 8 * i, vMA + i, vLA + i, L_APART + RS * i)
    A("  s_waitcnt lgkmcnt(0)")
    A("  s_barrier")
    stamp(5)
    A("  s_branch L_p2")

    hL8, hZ, hA = 1, 2, 3
    hD = 8
    hE = 40
    hW, hL, hO, h16 = 58, 66, 68, 72
    sWG = "s30"

    def guard(r, n):
        for i in range(n):
            A(f"  v_min_u32 v{r+i}, -2, v{r+i}")

    def anysent(r, n, lab):
        A(f"  v_max3_u32 v{hW}, v{r}, v{r+1}, v{r+2}")
        i = 3
        while i < n:
            if i + 1 < n:
                A(f"  v_max3_u32 v{hW}, v{hW}, v{r+i}, v{r+i+1}")
                i += 2
            else:
                A(f"  v_max_u32 v{hW}, v{hW}, v{r+i}")
                i += 1
        A(f"  v_cmp_eq_u32 vcc, -1, v{hW}")
        A(f"  s_sub_u32 {sSpin}, {sSpin}, 1")
        A(f"  s_cbranch_scc1 {lab}_ok")
        A(f"  s_cbranch_vccnz {lab}")
        A(f"{lab}_ok:")

    def sum4(ldsoff, wsoff, copy=False):
        for v in range(4):
            A(f"  ds_read_b64 v[{hD+2*v}:{hD+2*v+1}], v{hL8} offset:{ldsoff+v*PS}")
        A("  s_waitcnt lgkmcnt(0)")
        A(f"  v_pk_add_f32 v[{hD}:{hD+1}], v[{hD}:{hD+1}], v[{hD+2}:{hD+3}]")
        A(f"  v_pk_add_f32 v[{hD+4}:{hD+5}], v[{hD+4}:{hD+5}], v[{hD+6}:{hD+7}]")
        A(f"  v_pk_add_f32 v[{hD}:{hD+1}], v[{hD}:{hD+1}], v[{hD+4}:{hD+5}]")
        guard(hD, 2)
        if copy:
            A(f"  buffer_store_dwordx2 v[{hD}:{hD+1}], v{hL8}, {WS}, s5 offen")
        A(f"  buffer_store_dwordx2 v[{hD}:{hD+1}], v{hL8}, {WS}, {sWG} offen offset:{wsoff} sc1")

    def qgather(lab, sbase, ldsaddr, ldsoff):
        A(f"  s_mov_b32 {sSpin}, {SPIN}")
        A(f"{lab}:")
        for p in range(8):
            if p:
                A(f"  s_add_u32 {sT2}, {sbase}, {p*WG_STRIDE}")
            A(f"  buffer_load_dwordx2 v[{hD+2*p}:{hD+2*p+1}], v{hL8}, {WS}, {sT2 if p else sbase} offen sc1")
        A("  s_waitcnt vmcnt(0)")
        anysent(hD, 16, lab)
        for st in (1, 2, 4):
            for p in range(0, 8, 2 * st):
                A(f"  v_pk_add_f32 v[{hD+2*p}:{hD+2*p+1}], v[{hD+2*p}:{hD+2*p+1}], v[{hD+2*(p+st)}:{hD+2*(p+st)+1}]")
        A(f"  v_cvt_pk_bf16_f32 v{hD}, v{hD}, v{hD+1}")
        A(f"  ds_write_b32 v{ldsaddr}, v{hD} offset:{ldsoff}")

    def merge(n, norm, o, e, st):
        M = hO + 2
        A(f"  v_max3_f32 v{M}, v{e}, v{e+st}, v{e+2*st}")
        i = 3
        while i < n:
            if i + 1 < n:
                A(f"  v_max3_f32 v{M}, v{M}, v{e+st*i}, v{e+st*(i+1)}")
                i += 2
            else:
                A(f"  v_max_f32 v{M}, v{M}, v{e+st*i}")
                i += 1
        for p in range(n):
            A(f"  v_sub_f32 v{hW+p}, v{e+st*p}, v{M}")
        for p in range(n):
            A(f"  v_exp_f32 v{hW+p}, v{hW+p}")
        A(f"  v_mul_f32 v{M+1}, v{hW}, v{e+1}")
        A(f"  v_mul_f32 v{hO}, v{hW}, v{o}")
        A(f"  v_mul_f32 v{hO+1}, v{hW}, v{o+1}")
        for p in range(1, n):
            A(f"  v_fmac_f32 v{M+1}, v{hW+p}, v{e+st*p+1}")
            A(f"  v_fmac_f32 v{hO}, v{hW+p}, v{o+st*p}")
            A(f"  v_fmac_f32 v{hO+1}, v{hW+p}, v{o+st*p+1}")
        if norm:
            A(f"  v_rcp_f32 v{hL}, v{M+1}")
            A(f"  v_mul_f32 v{hO}, v{hO}, v{hL}")
            A(f"  v_mul_f32 v{hO+1}, v{hO+1}, v{hL}")
            A(f"  v_cvt_pk_bf16_f32 v{hO}, v{hO}, v{hO+1}")

    def combine4(a8, az, ldsoff, so, wsoff):
        for v in range(4):
            A(f"  ds_read_b64 v[{hE+2*v}:{hE+2*v+1}], v{az} offset:{ldsoff+v*PS+512}")
        for v in range(4):
            A(f"  ds_read_b64 v[{hD+2*v}:{hD+2*v+1}], v{a8} offset:{ldsoff+v*PS}")
        A("  s_waitcnt lgkmcnt(0)")
        merge(4, False, hD, hE, 2)
        guard(hO, 4)
        A(f"  buffer_store_dwordx4 v[{hO}:{hO+3}], v{h16}, {WS}, {so} offen offset:{wsoff} sc1")

    def combine8(lab, sbase, stride, ldsoff, bar=False):
        def polls():
            for p in range(8):
                if p:
                    A(f"  s_add_u32 {sT2}, {sbase}, {p*stride}")
                so = sT2 if p else sbase
                A(f"  buffer_load_dwordx4 v[{hD+4*p}:{hD+4*p+3}], v{h16}, {WS}, {so} offen sc1")
        A(f"  s_mov_b32 {sSpin}, {SPIN}")
        if bar:
            polls()
            A("  s_barrier")
            A(f"  s_branch {lab}_w")
        A(f"{lab}:")
        polls()
        A(f"{lab}_w:")
        A("  s_waitcnt vmcnt(0)")
        anysent(hD, 32, lab)
        merge(8, True, hD, hD + 2, 4)
        A(f"  ds_write_b32 v{hA}, v{hO} offset:{ldsoff}")

    A("L_helper:")
    if prio:
        A(f"  s_setprio {prio}")
    A(f"  s_lshl_b32 {sWG}, s2, 12")
    for i in range(4):
        A(f"  v_mov_b32 v{hD+i}, -1")
    A(f"  s_mov_b32 s66, {WS_SIZE}\n  s_mov_b32 s67, 0x20000\n  s_mov_b32 s78, 4096\n  s_mov_b32 s79, 0x20000")
    A("  s_waitcnt lgkmcnt(0)")
    A("  s_mov_b32 s64, s28\n  s_mov_b32 s65, s29")
    for j in range(4 if not noclr & 1 else 0):
        A(f"  buffer_store_dwordx4 v[{hD}:{hD+3}], v{vL16}, {WS}, {sWG} offen offset:{j*1024} sc1")
    if dual:
        A(f"  s_lshl_b32 s5, s2, 9")
        A(f"  s_add_u32 s5, s5, {W_X}")
        A(f"  v_lshlrev_b32 v5, 3, v0")
        A(f"  buffer_store_dwordx2 v[{hD}:{hD+1}], v5, {WS}, s5 offen sc1")
    A("  s_mov_b32 s76, s24\n  s_mov_b32 s77, s25")
    A(f"  s_lshl_b32 {sT0}, {sH}, 3")
    A(f"  s_add_u32 s80, s26, {sT0}\n  s_addc_u32 s81, s27, 0")
    A(f"  s_lshl_b32 s31, {sH}, 13")
    A(f"  s_add_u32 s31, s31, {W_AP}")
    A(f"  s_cmp_eq_u32 {sAA}, 0")
    A("  s_cbranch_scc1 L_h_noclr")
    A(f"  s_add_u32 {sT2}, s31, 4096")
    for j in range(8 if not noclr & 2 else 0):
        A(f"  buffer_store_dwordx4 v[{hD}:{hD+3}], v{vL16}, {WS}, {'s31' if j < 4 else sT2} offen offset:{(j%4)*1024} sc1")
    A("L_h_noclr:")
    if pt & 1:
        A(f"  s_lshl_b32 {sT0}, {sH}, 23")
        A(f"  v_lshlrev_b32 v6, 21, v0")
        A(f"  v_add_u32 v7, {sT0}, v6")
        A("  s_mov_b64 exec, 15")
        A(f"  global_load_dword v{hE}, v7, s[16:17] nt")
        A(f"  global_load_dword v{hE+1}, v6, s[10:11] nt")
        A("  s_mov_b64 exec, -1")
    A(f"  v_lshlrev_b32 v4, 2, v0")
    A(f"  v_lshlrev_b32 v5, 3, v0")
    A("  s_waitcnt vmcnt(0)")
    A(f"  v_mov_b32 v{h16}, v{vL16}")
    A(f"  v_mov_b32 v{hA}, v4")
    A(f"  v_mov_b32 v{hL8}, v5")
    A(f"  v_mov_b32 v{hZ}, 0")
    if rk:
        A(f"  ds_write_b32 v{hZ}, v{hZ} offset:{L_RK}")
    A(f"  s_mov_b32 {sTk}, 1")
    A(f"  s_atomic_add {sTk}, {DBGP}, 0 glc")
    A("  s_waitcnt lgkmcnt(0)")
    stamp(1)
    A("  s_barrier")
    sum4(L_QBP, W_QB)
    A(f"  s_add_u32 {sTk}, {sTk}, 1")
    A(f"  s_mov_b32 {sSpin}, {SPIN}")
    A("L_h_flag:")
    A(f"  s_cmp_ge_u32 {sTk}, 8")
    A("  s_cbranch_scc1 L_h_flag_ok")
    if fl:
        A(f"  global_load_dword v{hE}, v{hZ}, {DBGP} sc1")
        A("  s_waitcnt vmcnt(0)")
        A(f"  v_readfirstlane_b32 {sTk}, v{hE}")
        A(f"  s_sub_u32 {sSpin}, {sSpin}, 1")
    else:
        A(f"  s_mov_b32 {sTk}, 0")
        A(f"  s_atomic_add {sTk}, {DBGP}, 0 glc")
        A(f"  s_sub_u32 {sSpin}, {sSpin}, 1")
        A("  s_waitcnt lgkmcnt(0)")
    A("  s_cbranch_scc0 L_h_flag")
    A("L_h_flag_ok:")
    stamp(2)
    A(f"  s_lshl_b32 {sT0}, {sH}, 15")
    qgather("L_h_qb", sT0, hA, L_Q)
    stamp(3)
    A("  s_waitcnt lgkmcnt(0)")
    A("  s_barrier")
    sum4(L_QAP, W_QA)
    if pt & 2:
        A(f"  s_lshl_b32 {sT0}, {sH}, 23")
        A(f"  v_lshlrev_b32 v6, 21, v0")
        A(f"  v_add_u32 v7, {sT0}, v6")
        A("  s_mov_b64 exec, 15")
        A(f"  global_load_dword v{hE}, v7, s[18:19] nt")
        A(f"  global_load_dword v{hE+1}, v6, s[12:13] nt")
        A(f"  global_load_dword v{hE+2}, v6, s[22:23] nt")
        A("  s_mov_b64 exec, -1")
    A(f"  s_mov_b32 {sSpin}, {SPIN}")
    A("L_h_all:")
    A(f"  global_load_dword v{hD+4}, v{hA}, s[26:27] sc1")
    A("  s_waitcnt vmcnt(0)")
    A(f"  v_cmp_gt_u32 vcc, 8, v{hD+4}")
    A("  s_nop 1")
    A("  s_and_b32 vcc_lo, vcc_lo, 0x55555555")
    A("  s_and_b32 vcc_hi, vcc_hi, 0x55555555")
    A(f"  s_sub_u32 {sSpin}, {sSpin}, 1")
    A("  s_cbranch_scc1 L_h_all_ok")
    A("  s_cmp_eq_u64 vcc, 0")
    A("  s_cbranch_scc0 L_h_all")
    A("L_h_all_ok:")
    stamp(4)
    A(f"  s_cmp_eq_u32 {sAA}, 0")
    A("  s_cbranch_scc1 L_h_noaa")
    A(f"  s_lshr_b32 {sT0}, {sH}, 3")
    A(f"  s_lshl_b32 {sT0}, {sT0}, 18")
    A(f"  s_add_u32 {sT0}, {sT0}, {W_QA}")
    A(f"  v_mov_b32 v6, v{hA}")
    A(f"  s_mov_b32 {sT1}, 8")
    A("L_h_qa_next:")
    qgather("L_h_qa", sT0, 6, L_QA)
    A(f"  s_add_u32 {sT0}, {sT0}, {8*WG_STRIDE}")
    A("  v_add_u32 v6, 256, v6")
    A(f"  s_sub_u32 {sT1}, {sT1}, 1")
    A(f"  s_cmp_lg_u32 {sT1}, 0")
    A("  s_cbranch_scc1 L_h_qa_next")
    A("  s_waitcnt lgkmcnt(0)")
    A("  s_barrier")
    A("  s_barrier")
    A(f"  v_mov_b32 v6, v{hL8}")
    A(f"  v_mov_b32 v7, 0")
    A(f"  s_mov_b32 {sT1}, 8")
    A("L_h_ap_next:")
    combine4(6, 7, L_APART, "s31", 0)
    A(f"  s_add_u32 s31, s31, 1024")
    A(f"  v_add_u32 v6, {RS}, v6")
    A(f"  v_add_u32 v7, {RS}, v7")
    A(f"  s_sub_u32 {sT1}, {sT1}, 1")
    A(f"  s_cmp_lg_u32 {sT1}, 0")
    A("  s_cbranch_scc1 L_h_ap_next")
    A("L_h_noaa:")
    A(f"  s_lshr_b32 {sT0}, {sH}, 3")
    A(f"  s_lshl_b32 {sT0}, {sT0}, 16")
    A(f"  s_and_b32 {sT1}, {sH}, 7")
    A(f"  s_lshl_b32 {sT1}, {sT1}, 10")
    A(f"  s_add_u32 {sT0}, {sT0}, {sT1}")
    A(f"  s_add_u32 {sT0}, {sT0}, {W_AP}")
    A(f"  v_lshlrev_b32 v6, 13, v0")
    A(f"  s_mov_b32 {sSpin}, {SPIN}")
    A("  s_mov_b64 exec, 0xff")
    A("L_h_apw:")
    if slp:
        A(f"  s_sleep {slp}")
    A(f"  buffer_load_dword v{hD}, v6, {WS}, {sT0} offen offset:12 sc1")
    A("  s_waitcnt vmcnt(0)")
    A(f"  v_cmp_eq_u32 vcc, -1, v{hD}")
    A(f"  s_sub_u32 {sSpin}, {sSpin}, 1")
    A("  s_cbranch_scc1 L_h_apw_ok")
    A("  s_cbranch_vccnz L_h_apw")
    A("L_h_apw_ok:")
    A("  s_mov_b64 exec, -1")
    combine8("L_h_ap8", sT0, 8192, L_OA)
    stamp(5)
    if touch:
        A(f"  s_lshl_b32 {sT0}, {sH}, 18")
        A(f"  v_mov_b32 v6, {sT0}")
        A("  s_mov_b64 exec, 1")
        A(f"  global_load_dword v{hD}, v6, s[12:13] nt")
        A(f"  global_load_dword v{hD+1}, v6, s[22:23] nt")
        if touch > 1:
            A(f"  global_load_dword v{hD+2}, v{hZ}, s[24:25] nt")
        A("  s_waitcnt vmcnt(0)")
        A("  s_mov_b64 exec, -1")
    A(f"  s_lshl_b32 {sT0}, {sH}, 15")
    A(f"  s_add_u32 {sT0}, {sT0}, {W_BP}")
    A("  v_and_b32 v6, 31, v0")
    A("  v_lshlrev_b32 v6, 15, v6")
    A("  v_lshrrev_b32 v7, 5, v0")
    A("  v_lshl_add_u32 v6, v7, 9, v6")
    A(f"  s_lshl_b32 {sT1}, {sS}, 12")
    A(f"  s_lshl_b32 s31, {sH}, 4")
    A(f"  s_add_u32 {sT1}, {sT1}, s31")
    A(f"  s_add_u32 {sT1}, {sT1}, {W_O2B}")
    if dual:
        A(f"  v_lshlrev_b32 v4, 12, v0")
        A(f"  s_lshl_b32 s4, {sS}, 9")
        A(f"  s_add_u32 s4, s4, s31")
        A(f"  s_add_u32 s4, s4, {W_X}")
        A(f"  s_sub_u32 s4, s4, {sT1}")
        A(f"  v_add_u32 v4, s4, v4")
        A(f"  v_cmp_gt_u32 vcc, 32, v0")
        A(f"  v_cndmask_b32 v4, v6, v4, vcc")
    A("  v_xor_b32 v7, 1, v7")
    A("  v_lshlrev_b32 v7, 11, v7")
    A(f"  s_lshl_b32 s31, {sS}, 8")
    A(f"  s_lshl_b32 {sTk}, {sH}, 3")
    A(f"  s_add_u32 s31, s31, {sTk}")
    A("  s_waitcnt lgkmcnt(0)")
    A("  s_barrier")
    stamp(6)
    combine4(hL8, hZ, L_BPART, sWG, W_BP)
    if "D" in wo and (dp or not poll1):
        A("  s_barrier")
    if not dp:
        combine8("L_h_bp8", sT0, WG_STRIDE, L_OB, "D" in wo and poll1)
    stamp(7)
    A("  s_waitcnt lgkmcnt(0)")
    A("  s_barrier")
    sum4(L_O2A, W_O2A)
    A("  s_barrier")
    sum4(L_O2B, W_O2B, dual)
    stamp(8)
    A(f"  s_mov_b32 {sSpin}, {SPIN}")
    if dual:
        A("L_h_fin:")
        A(f"  buffer_load_dwordx4 v[{hE+4}:{hE+7}], v4, {WS}, {sT1} offen sc1")
        A(f"  buffer_load_dwordx4 v[{hE}:{hE+3}], v6, {WS}, {sT1} offen sc1")
        A("  s_waitcnt vmcnt(1)")
        A(f"  v_max3_u32 v{hW}, v{hE+4}, v{hE+5}, v{hE+6}")
        A(f"  v_max_u32 v{hW}, v{hW}, v{hE+7}")
        A(f"  v_cmp_eq_u32 vcc, -1, v{hW}")
        A("  s_cbranch_vccz L_h_fin_x")
        A("  s_waitcnt vmcnt(0)")
        for i in range(4):
            A(f"  v_cndmask_b32 v{hE+i}, v{hE+4+i}, v{hE+i}, vcc")
        anysent(hE, 4, "L_h_fin")
        for i in range(4):
            A(f"  v_mov_b32 v{hE+4+i}, v{hE+i}")
        A("L_h_fin_x:")
        hE += 4
    elif not pipe:
        A("L_h_fin:")
        A(f"  buffer_load_dwordx4 v[{hE}:{hE+3}], v6, {WS}, {sT1} offen sc1")
        A("  s_waitcnt vmcnt(0)")
        anysent(hE, 4, "L_h_fin")
    else:
        for r in range(2):
            A(f"  buffer_load_dwordx4 v[{hD+4*r}:{hD+4*r+3}], v6, {WS}, {sT1} offen sc1")
        A("L_h_fin:")
        for r in range(3):
            q = (r + 2) % 3
            A(f"  buffer_load_dwordx4 v[{hD+4*q}:{hD+4*q+3}], v6, {WS}, {sT1} offen sc1")
            A("  s_waitcnt vmcnt(2)")
            A(f"  v_max3_u32 v{hW}, v{hD+4*r}, v{hD+4*r+1}, v{hD+4*r+2}")
            A(f"  v_max_u32 v{hW}, v{hW}, v{hD+4*r+3}")
            A(f"  v_cmp_eq_u32 vcc, -1, v{hW}")
            for i in range(4):
                A(f"  v_mov_b32 v{hE+i}, v{hD+4*r+i}")
            A("  s_cbranch_vccz L_h_fin_ok")
        A(f"  s_sub_u32 {sSpin}, {sSpin}, 1")
        A("  s_cbranch_scc0 L_h_fin")
        A("L_h_fin_ok:")
    for ctrl in ("row_ror:8", "row_ror:4", "quad_perm:[2,3,0,1]", "quad_perm:[1,0,3,2]"):
        for i in range(4):
            dpp("v_add_f32", hE + i, hE + i, hE + i, ctrl)
    for i in range(4):
        A(f"  v_mov_b32 v{hE+4+i}, v{hE+i}")
    for i in range(4):
        A(f"  v_permlane16_swap_b32 v{hE+i}, v{hE+4+i}")
    for i in range(4):
        A(f"  v_add_f32 v{hE+i}, v{hE+i}, v{hE+4+i}")
    A(f"  v_cvt_pk_bf16_f32 v{hE}, v{hE}, v{hE+1}")
    A(f"  v_cvt_pk_bf16_f32 v{hE+1}, v{hE+2}, v{hE+3}")
    A("  s_mov_b32 exec_lo, 1")
    A("  s_mov_b32 exec_hi, 1")
    A(f"  buffer_store_dwordx2 v[{hE}:{hE+1}], v7, {OUT}, s31 offen {osc}")
    if stamps:
        A("  s_mov_b64 exec, -1")
        stamp(9, True)
        A("  s_waitcnt vmcnt(0)")
        A(f"  s_lshl_b32 {sT0}, s2, 8")
        A(f"  s_add_u32 {sT0}, {sT0}, {STAMP1+64}")
        A(f"  v_lshl_add_u32 v253, v0, 2, {sT0}")
        A("  s_mov_b64 exec, 0xffff")
        A("  global_store_dword v253, v252, s[28:29]")
        A("  v_mov_b32 v8, s98\n  v_mov_b32 v9, s99\n  v_mov_b32 v10, s96\n  v_mov_b32 v11, s97")
        A(f"  s_lshl_b32 {sT0}, s2, 4")
        A(f"  s_add_u32 {sT0}, {sT0}, {STAMP0}")
        A(f"  v_mov_b32 v253, {sT0}")
        A("  s_mov_b64 exec, 1")
        A("  global_store_dwordx4 v253, v[8:11], s[28:29]")
    A("L_end:")
    A("  s_endpgm")
    A('.section .rodata,"a"')
    A(".p2align 6")
    A(f".amdhsa_kernel {KN}")
    A("  .amdhsa_next_free_vgpr 256")
    A("  .amdhsa_next_free_sgpr 102")
    A("  .amdhsa_accum_offset 256")
    A("  .amdhsa_group_segment_fixed_size 0")
    A("  .amdhsa_kernarg_size 104")
    A("  .amdhsa_user_sgpr_count 2")
    A("  .amdhsa_user_sgpr_kernarg_segment_ptr 1")
    A("  .amdhsa_system_sgpr_workgroup_id_x 1")
    A(".end_amdhsa_kernel")
    A.pad()
    return A.text()


if __name__ == "__main__":
    names = []
    for spec in sys.argv[1:]:
        out = None
        if "@" in spec:
            spec, out = spec.split("@")
        kv = dict(x.split("=") for x in spec.split(",") if x)
        p = {k: (v.replace("+", " ") if k in ("pol", "wo", "osc") else int(v)) for k, v in kv.items()}
        name = out or "k_" + spec.replace("=", "").replace(",", "_").replace("+", "") + ".s"
        open(name, "w").write(gen(**p))
        names.append(name)
    print(" ".join(os.path.relpath(n, "code") for n in names))
```
